```python
import torch

def _softmax(x, axis=-1):
    return torch.softmax(x, dim=axis)
def _gelu(x):
    return torch.nn.functional.gelu(x, approximate="tanh")
def _silu(x):
    return torch.nn.functional.silu(x)
def _sigmoid(x):
    return torch.sigmoid(x)
def _layernorm(x, axis=-1, eps=1e-5):
    m = x.mean(dim=axis, keepdim=True)
    v = x.var(dim=axis, keepdim=True, unbiased=False)
    return (x - m) / torch.sqrt(v + eps)
def _scatter_add(tgt, idx, src, axis=0):
    return tgt.clone().index_add_(axis, idx, src)
def _segment_sum(src, seg, n):
    out = torch.zeros((n,) + src.shape[1:], dtype=src.dtype)
    return out.index_add_(0, seg, src)
def _pad(x, pw):
    flat = tuple(v for pair in reversed(pw) for v in pair)
    return torch.nn.functional.pad(x, flat)

kernel_name = 'interleave_layers__gqa_block_cached__dense_activation_gelu__decode'

def setup_inputs():

    _w = (lambda a: (lambda t: t.to(torch.bfloat16) if t.is_floating_point() else t)(torch.as_tensor(a)))
    def _A_setup():
        B, Sq, D = 2, 1, 512
        Hq, Hkv, Sk, Dh = 32, 32, 4096, 128
        assert Hq % Hkv == 0, (Hq, Hkv)
        return {
            "x": _w((lambda *s: torch.randn(*s, dtype=torch.bfloat16) * 0.05)(B, Sq, D)),
            "k_cache": _w((lambda *s: torch.randn(*s, dtype=torch.bfloat16) * 0.8)(B, Hkv, Sk, Dh)),
            "v_cache": _w((lambda *s: torch.randn(*s, dtype=torch.bfloat16) * 1.6)(B, Hkv, Sk, Dh)),
            "wq": _w((lambda *s: torch.randn(*s, dtype=torch.bfloat16) * 0.8)(D, Hq * Dh) * (D ** -0.5)),
            "wo": _w((lambda *s: torch.randn(*s, dtype=torch.bfloat16) * 1.6)(Hq * Dh, D) * ((Hq * Dh) ** -0.5)),
        }
    _A_in = _A_setup()

    def _B_setup():
        B, S, D, F = 2, 1, 512, 1376
        return {
            "x": _w((lambda *s: torch.randn(*s, dtype=torch.bfloat16) * 0.05)(B, S, D)),
            "w1": _w((lambda *s: torch.randn(*s, dtype=torch.bfloat16) * 0.4)(D, F) * (D ** -0.5)),
            "b1": _w((lambda *s: torch.randn(*s, dtype=torch.bfloat16) * 0.4)(F) * 0.01),
            "w2": _w((lambda *s: torch.randn(*s, dtype=torch.bfloat16) * 0.4)(F, D) * (F ** -0.5)),
            "b2": _w((lambda *s: torch.randn(*s, dtype=torch.bfloat16) * 0.4)(D) * 0.01),
        }
    _B_in = _B_setup()

    return {
        "A_x": _A_in["x"],
        "A_k_cache": _A_in["k_cache"],
        "A_v_cache": _A_in["v_cache"],
        "A_wq": _A_in["wq"],
        "A_wo": _A_in["wo"],
        "B_x": _B_in["x"],
        "B_w1": _B_in["w1"],
        "B_b1": _B_in["b1"],
        "B_w2": _B_in["w2"],
        "B_b2": _B_in["b2"],
    }

def reference(A_x, A_k_cache, A_v_cache, A_wq, A_wo, B_x, B_w1, B_b1, B_w2, B_b2):
    def _A_ref(x, k_cache, v_cache, wq, wo):
        B, Sq, D = x.shape
        Hq, Dh = 32, 128
        Hkv = k_cache.shape[1]
        rep = Hq // Hkv
        q = (lambda x, *d: x.permute(*d))((x @ wq).reshape(B, Sq, Hq, Dh), 0, 2, 1, 3)
        k = (lambda x, n, axis: torch.repeat_interleave(x, n, dim=axis))(k_cache, rep, axis=1)
        v = (lambda x, n, axis: torch.repeat_interleave(x, n, dim=axis))(v_cache, rep, axis=1)
        scores = torch.einsum("bhqd,bhkd->bhqk", q, k) * (Dh ** -0.5)
        p = _softmax(scores, axis=-1)
        o = torch.einsum("bhqk,bhkd->bhqd", p, v)
        return (lambda x, *d: x.permute(*d))(o, 0, 2, 1, 3).reshape(B, Sq, Hq * Dh) @ wo

    def _B_ref(x, w1, b1, w2, b2):
        h = torch.einsum("bsd,df->bsf", x, w1) + b1
        h = _gelu(h)
        return torch.einsum("bsf,fd->bsd", h, w2) + b2

    x = A_x
    x = x + _A_ref(_layernorm(x, axis=-1), A_k_cache, A_v_cache, A_wq, A_wo)
    x = x + _B_ref(_layernorm(x, axis=-1), B_w1, B_b1, B_w2, B_b2)
    x = x + _A_ref(_layernorm(x, axis=-1), A_k_cache, A_v_cache, A_wq, A_wo)
    x = x + _B_ref(_layernorm(x, axis=-1), B_w1, B_b1, B_w2, B_b2)
    return x
```

```python
import re

TRANS = ("v_exp_f32", "v_log_f32", "v_rcp_f32", "v_rsq_f32", "v_sqrt_f32", "v_sin_f32", "v_cos_f32")

def regs_of(op):
    op = op.strip()
    neg = op.startswith("-")
    if neg: op = op[1:]
    if op.startswith("abs(") or op.startswith("|"):
        op = op.strip("|").replace("abs(", "").rstrip(")")
    m = re.fullmatch(r"([vas])(\d+)", op)
    if m: return [op]
    m = re.fullmatch(r"([vas])\[(\d+):(\d+)\]", op)
    if m: return [f"{m.group(1)}{k}" for k in range(int(m.group(2)), int(m.group(3)) + 1)]
    if op in ("vcc", "exec"): return [op + "_lo", op + "_hi"]
    if op in ("vcc_lo", "vcc_hi", "exec_lo", "exec_hi", "m0"): return [op]
    return []

def split_ops(s):
    out, depth, cur = [], 0, ""
    for ch in s:
        if ch in "[(": depth += 1
        if ch in "])": depth -= 1
        if ch == "," and depth == 0:
            out.append(cur.strip()); cur = ""
        else:
            cur += ch
    if cur.strip(): out.append(cur.strip())
    return out

class Ins:
    __slots__ = ("mn", "kind", "w", "r", "dpp", "a", "b", "c", "trans", "states", "wide_store", "lds_dma", "sread")
    def __init__(s):
        s.w = set(); s.r = set(); s.dpp = set(); s.a = set(); s.b = set(); s.c = set(); s.trans = False
        s.states = 1; s.wide_store = set(); s.lds_dma = False; s.kind = ""; s.sread = set()

def parse(text):
    t = text.split(";")[0].strip()
    mn, _, rest = t.partition(" ")
    ops = split_ops(rest)
    mods = ""
    if ops:
        last = ops[-1]; depth = 0
        for k, ch in enumerate(last):
            if ch in "[(": depth += 1
            if ch in "])": depth -= 1
            if ch == " " and depth == 0:
                mods = last[k+1:]; ops[-1] = last[:k]; break
    I = Ins(); I.mn = mn
    R = lambda k: set(regs_of(ops[k])) if k < len(ops) else set()
    if mn.startswith("v_mfma"):
        I.kind = "mfma"; I.w = R(0); I.a = R(1); I.b = R(2); I.c = R(3); I.r = I.a | I.b | I.c
    elif mn.startswith("v_"):
        I.kind = "valu"
        base = mn.replace("_e32", "").replace("_e64", "").replace("_dpp", "")
        I.trans = base in TRANS
        if base.startswith("v_permlane") and "swap" in base:
            I.kind = "perm"; I.w = R(0) | R(1); I.r = R(0) | R(1)
        elif base.startswith("v_readlane") or base.startswith("v_readfirstlane"):
            I.kind = "rdlane"; I.w = R(0); I.r = R(1) | R(2)
        else:
            I.w = R(0)
            for k in range(1, len(ops)): I.r |= R(k)
            if base.startswith("v_add_co") or base.startswith("v_addc_co") or base.startswith("v_sub_co"):
                I.w |= R(1)
            if base.startswith("v_fmac") or mn.endswith("_dpp"): I.r |= R(0)
            if base == "v_cndmask_b32" and len(ops) == 3: I.r |= {"vcc_lo", "vcc_hi"}
            if mn.endswith("_dpp"): I.dpp = R(1)
    elif mn.startswith("buffer_") or mn.startswith("global_"):
        I.kind = "vmem"
        lds = " lds" in (" " + mods) or "_lds_" in mn
        allr = set()
        for k in range(len(ops)): allr |= R(k)
        if lds:
            I.lds_dma = True; I.r = allr | {"m0"}
        elif "load" in mn:
            I.w = R(0); I.r = set()
            for k in range(1, len(ops)): I.r |= R(k)
        else:
            I.r = allr
            if mn.endswith("x4") or mn.endswith("x3"):
                I.wide_store = R(0) if mn.startswith("buffer_") else R(1)
    elif mn.startswith("ds_"):
        I.kind = "ds"
        if mn.startswith("ds_read") or mn.startswith("ds_bpermute") or mn.startswith("ds_swizzle"):
            I.w = R(0)
            for k in range(1, len(ops)): I.r |= R(k)
        else:
            for k in range(len(ops)): I.r |= R(k)
    elif mn.startswith("s_"):
        I.kind = "salu"
        if mn == "s_nop": I.states = int(ops[0], 0) + 1
        elif mn.startswith("s_cmp") or mn.startswith("s_cbranch") or mn.startswith("s_bitcmp") or mn in ("s_waitcnt", "s_barrier", "s_branch", "s_endpgm", "s_sleep", "s_setprio"):
            for k in range(len(ops)): I.r |= R(k)
        else:
            I.w = R(0)
            for k in range(1, len(ops)): I.r |= R(k)
    else:
        raise ValueError("cannot parse: " + text)
    return I

def isv(r): return r[0] in "va" and r[1:].isdigit()
def iss(r): return not isv(r)

def need(P, C):
    n = 0
    pv = P.kind in ("valu", "perm", "rdlane")
    cv = C.kind in ("valu", "perm", "rdlane")
    if pv:
        pw_v = {r for r in P.w if isv(r)}
        pw_s = {r for r in P.w if iss(r)}
        if C.kind == "mfma" and pw_v & C.r: n = max(n, 2)
        if C.dpp & pw_v: n = max(n, 2)
        if C.kind == "perm" and pw_v & C.r: n = max(n, 2)
        if C.kind == "rdlane" and pw_v & C.r: n = max(n, 1)
        if P.trans and (pw_v & C.r) and not C.trans: n = max(n, 1)
        if pw_s:
            if cv and pw_s & C.r: n = max(n, 4 if C.kind == "rdlane" else 2)
            if C.kind == "vmem" and pw_s & C.r: n = max(n, 5)
            if C.kind == "mfma" and pw_s & {"exec_lo", "exec_hi"}: n = max(n, 4)
    if P.kind == "mfma":
        if C.kind == "mfma":
            if P.w & (C.a | C.b): n = max(n, 8)
            if P.w & C.c and P.w != C.c: n = max(n, 6)
        elif cv:
            if P.w & (C.r | C.w): n = max(n, 8)
            if P.c & C.w: n = max(n, 3)
        elif C.kind in ("vmem", "ds"):
            if P.w & (C.r | C.w): n = max(n, 8)
    if P.kind == "salu" and "m0" in P.w and C.lds_dma: n = max(n, 1)
    if P.wide_store and (P.wide_store & C.w): n = max(n, 2)
    return n

class Asm:
    def __init__(s):
        s.L = []; s.hist = []; s.nops = 0
        s.vm_issued = 0; s.vm_done = 0
        s.ds_issued = 0; s.ds_done = 0
        s.uid = 0
    def raw(s, text): s.L.append(text)
    def label(s, name):
        s.L.append(name + ":")
    def newlabel(s, p="L"):
        s.uid += 1; return f"{p}_{s.uid}"
    def comment(s, t): s.L.append("    ; " + t)
    def __call__(s, text):
        for line in text.split("\n"):
            line = line.strip()
            if not line: continue
            if line.endswith(":"): s.label(line[:-1]); continue
            I = parse(line)
            dist = 0; pad = 0
            for P in reversed(s.hist):
                pad = max(pad, need(P, I) - dist)
                dist += P.states
                if dist >= 8: break
            if pad > 0:
                s.L.append(f"    s_nop {pad-1}"); N = parse(f"s_nop {pad-1}"); s.hist.append(N); s.nops += pad
            s.L.append("    " + line); s.hist.append(I)
            s.hist = s.hist[-12:]
    def vm(s, text, optional=False):
        s(text)
        if optional: return None
        s.vm_issued += 1
        return s.vm_issued - 1
    def wait_vm(s, i):
        if i < s.vm_done: return
        n = s.vm_issued - 1 - i
        assert n <= 63, n
        s(f"s_waitcnt vmcnt({n})"); s.vm_done = i + 1
    def wait_vm0(s):
        s("s_waitcnt vmcnt(0)"); s.vm_done = s.vm_issued
    def ds(s, text):
        s(text); s.ds_issued += 1; return s.ds_issued - 1
    def wait_ds(s, i):
        if i < s.ds_done: return
        n = s.ds_issued - 1 - i
        if n > 15: n = 15; i = s.ds_issued - 1 - 15
        s(f"s_waitcnt lgkmcnt({n})"); s.ds_done = i + 1
    def wait_ds0(s):
        s("s_waitcnt lgkmcnt(0)"); s.ds_done = s.ds_issued
    def text(s): return "\n".join(s.L) + "\n"
```

```python
import sys, math
from asmlib import Asm

NAME = "interleave_layers__gqa_block_cached__dense_activation_gelu__decode"
HEADER = open("cdna_kernels/%s.s.ref" % NAME).read().split("; Override launch")[0]

L_WQ, L_WO, L_W1, L_W2 = 0, 16384, 32768, 49152
L_ACC = 55296
L_SO = 57344
L_KV = 61440
NLDS = 25
ACC2 = [L_ACC + 0, L_ACC + 128]
ACC4 = [L_ACC + 256, L_ACC + 640]
ACC7 = L_ACC + 1024
L_ST = L_ACC + 1536
OB, ST, AP, X1, HB, YP, X2, QB = 0x0, 0x10000, 0x18000, 0x20000, 0x24000, 0x28000, 0x30000, 0x34000
LSTRIDE = 0x40000
QB0 = 0x80000
WS_BYTES = 0x84000
TS_OFF = 0x100000

sW, sG, sI, sHH, sB = "s3", "s4", "s5", "s6", "s7"
rK, rV, rWS, rX, rWQ, rWO, rW1, rW2, rB1, rB2, rOUT, rDBG = [f"s[{k}:{k+3}]" for k in range(8, 56, 4)]
mA, mAlo, m16, m8, sAlive, mOV = [f"s[{k}:{k+1}]" for k in range(56, 68, 2)]
sCnt, sMode, sLayer, sRot, sKVl, sSK, sSV, sT0, sT1, sT2 = [f"s{k}" for k in range(68, 78)]
sOown, sSTown, sOg, sSTg, sAPown, sAPg, sX1own, sX1g, sHown, sHg, sYPown, sYPg, sX2own, sX2g, sQown, sQg = [f"s{k}" for k in range(78, 94)]
sA2, sA4, sTau = "s94", "s95", "s96"
sTS = "s[98:99]"
LIMIT = 300000

C_SCALE = math.log2(math.e) / math.sqrt(128.0)
import struct
def f2u(x): return "0x%08x" % struct.unpack("<I", struct.pack("<f", x))[0]

def kloc(f):
    return ("l", f) if f < 12 else ("r", f"a[{4*(f-12)}:{4*(f-12)+3}]")
def vloc(f):
    if f < 13: return ("l", 12 + f)
    if f < 25: return ("r", f"a[{208+4*(f-13)}:{208+4*(f-13)+3}]")
    return ("r", f"v[{100+4*(f-25)}:{100+4*(f-25)+3}]")
def q4(b): return f"v[{b}:{b+3}]"
def q2(b): return f"v[{b}:{b+1}]"

class Gen:
    def __init__(s, kvpol="nt", wpol="", ts=False, lag=16, forceG=False):
        s.A = Asm(); s.kvpol = kvpol; s.wpol = wpol; s.ts = ts; s.lag = lag; s.forceG = forceG
        s.tail = []
        s.nts = 0
    def stamp(s, name):
        if not s.ts: return
        A = s.A
        k = s.nts; s.nts += 1
        s.tsnames = getattr(s, "tsnames", []) + [name]
        A(f"s_memrealtime {sTS}")
        A(f"s_lshl_b32 s97, {sLayer}, 5\ns_add_u32 m0, s97, {k}")
        A("s_waitcnt lgkmcnt(0)")
        A.ds_done = A.ds_issued
        A(f"v_writelane_b32 v12, s98, m0")
    def publish(s, text_fmt):
        A = s.A
        slow = A.newlabel("L_slow"); back = A.newlabel("L_back")
        A(f"s_cmp_eq_u32 {sMode}, 0")
        A(f"s_cbranch_scc1 {slow}")
        A.vm(text_fmt.format(pol=""), optional=True)
        A.label(back)
        s.tail.append(f"{slow}:\n    " + text_fmt.format(pol="sc1") + f"\n    s_branch {back}")
    def poll_head(s):
        lab = s.A.newlabel("L_poll"); s.A.label(lab); return lab
    def poll_budget(s):
        A = s.A
        A(f"s_add_u32 {sCnt}, {sCnt}, 1")
        A(f"s_cmp_lt_u32 {sCnt}, {LIMIT}")
        A(f"s_cselect_b64 {sAlive}, -1, 0")
    def poll_check(s, lab, regs, tmp):
        A = s.A
        regs = list(regs)
        if len(regs) == 1:
            A(f"v_cmp_eq_u32 vcc, -1, v{regs[0]}")
        else:
            if len(regs) % 2 == 0:
                A(f"v_max_u32 v{tmp}, v{regs[0]}, v{regs[1]}"); rest = regs[2:]
            else:
                A(f"v_max3_u32 v{tmp}, v{regs[0]}, v{regs[1]}, v{regs[2]}"); rest = regs[3:]
            for k in range(0, len(rest), 2):
                A(f"v_max3_u32 v{tmp}, v{tmp}, v{rest[k]}, v{rest[k+1]}")
            A(f"v_cmp_eq_u32 vcc, -1, v{tmp}")
        A(f"s_and_b64 vcc, vcc, {sAlive}")
        A(f"s_cbranch_scc1 {lab}")
    def tr_reads(s, tile, nsteps, base):
        A = s.A
        for kk in range(nsteps):
            for hf in range(2):
                A.ds(f"ds_read_b64_tr_b16 {q2(base + 4*kk + 2*hf)}, v8 offset:{tile + kk*1024 + hf*128}")
    def kv_load(s, kind, f):
        A = s.A
        if kind == "k":
            u, rem = f // 4, (f % 4) * 1024; loc = kloc(f); srd, vo, so = rK, "v6", sSK
        else:
            u, rem = f // 4, ((f % 4) >> 1) * 512 + (f & 1) * 128; loc = vloc(f); srd, vo, so = rV, "v7", sSV
        if f % 4 == 0:
            A(f"s_add_u32 {so}, {sRot}, {u*4096}")
            A(f"s_and_b32 {so}, {so}, 0xffff")
        if loc[0] == "r":
            return A.vm(f"buffer_load_dwordx4 {loc[1]}, {vo}, {srd}, {so} offen offset:{rem} {s.kvpol}")
        A(f"s_add_u32 m0, {sKVl}, {loc[1]*1024 - rem}")
        return A.vm(f"buffer_load_dwordx4 {vo}, {srd}, {so} offen offset:{rem} {s.kvpol} lds")
    def ln_tile_pre(s, tile=None):
        A = s.A
        if tile is not None: s.tr_reads(tile, 4, 16)
        A("v_and_b32 v56, 15, v0")
        A("v_cmp_eq_u32 vcc, 2, v56")
        A("v_mov_b32 v57, 0x3f803f80")
        A("v_cndmask_b32 v32, 0, v57, vcc")
        for k in range(33, 48): A(f"v_mov_b32 v{k}, v32")
    def ln_tile_addr(s, acc):
        A = s.A
        A("v_and_b32 v58, 15, v0")
        A("v_lshlrev_b32 v58, 2, v58")
        A(f"v_add_u32 v58, {acc}, v58")
        A("v_lshlrev_b32 v59, 3, v0")
        A(f"v_add_u32 v59, {acc}, v59")
        A("v_and_b32 v60, 7, v0")
        A("v_lshlrev_b32 v60, 3, v60")
        A(f"v_add_u32 v60, {acc}, v60")
        A("v_bfe_u32 v62, v0, 3, 1")
        A("v_mul_u32_u24 v61, 68, v62")
        A(f"v_add_u32 v61, {acc}, v61")
        A("v_lshlrev_b32 v62, 2, v62")
        A(f"v_add_u32 v62, {acc}, v62")
    def ln_tile_mma(s):
        A = s.A
        A.wait_ds0()
        for kk in range(4):
            A(f"v_mfma_f32_16x16x32_bf16 v[48:51], {q4(32+4*kk)}, {q4(16+4*kk)}, {'0' if kk == 0 else 'v[48:51]'}")
            A(f"v_mfma_f32_16x16x32_bf16 v[52:55], {q4(32+4*kk)}, {q4(32+4*kk)}, {'0' if kk == 0 else 'v[52:55]'}")
        A(f"s_mov_b64 exec, {m16}")
        for c in range(3): A.ds(f"ds_add_f32 v58, v{48+c} offset:{64*c}")
        for c in range(3): A.ds(f"ds_add_f32 v58, v{52+c} offset:{192+64*c}")
        A("s_mov_b64 exec, -1")
        A.wait_ds0()
        A("s_barrier")
    def ln_tile_final(s):
        A = s.A
        A.ds("ds_read_b32 v68, v61 offset:192")
        A.ds("ds_read_b32 v69, v62 offset:320")
        A.ds("ds_read_b64 v[64:65], v59")
        A.ds("ds_read_b64 v[66:67], v60 offset:128")
        A.wait_ds(A.ds_issued - 3)
        A(f"v_mul_f32 v70, {f2u(1/512)}, v69")
        A(f"v_mul_f32 v68, {f2u(1/512)}, v68")
        A("v_fma_f32 v68, -v70, v70, v68")
        A("v_max_f32 v68, 0, v68")
        A(f"v_add_f32 v68, {f2u(1e-5)}, v68")
        A("v_rsq_f32 v72, v68")
        A.wait_ds0()
        A("v_pk_fma_f32 v[64:65], v[66:67], v[70:71], v[64:65] op_sel_hi:[1,0,1] neg_lo:[1,0,0] neg_hi:[1,0,0]")
        A("v_pk_mul_f32 v[64:65], v[64:65], v[72:73] op_sel_hi:[1,0]")
    def att_prefetchK(s):
        A = s.A
        s.stg = {}
        for f in range(8):
            s.stg[("k", f)] = (64 + 4*f, A.ds(f"ds_read_b128 {q4(64+4*f)}, v1 offset:{f*1024}"))
    def build_aq(s, t):
        A = s.A
        for k in range(4):
            A(f"v_mov_b32_dpp v{16+4*t+k}, v{96+k} quad_perm:[0,1,2,3] row_mask:0xf bank_mask:{1<<t:#x}")
    def attention(s, p1=None):
        A = s.A
        stg = s.stg
        free = []
        def ldsread(kind, f, slotreg):
            slot = kloc(f)[1] if kind == "k" else vloc(f)[1]
            if p1: A.wait_vm(p1.ids[(kind, f)])
            stg[(kind, f)] = (slotreg, A.ds(f"ds_read_b128 {q4(slotreg)}, v1 offset:{slot*1024}"))
        def operand(kind, f):
            loc = kloc(f) if kind == "k" else vloc(f)
            if loc[0] == "r":
                if p1: A.wait_vm(p1.ids[(kind, f)])
                return loc[1]
            reg, did = stg[(kind, f)]
            A.wait_ds(did)
            return q4(reg)
        order = [0, 1, 3, 4, 2] + list(range(5, 16))
        D = lambda n: 48 + 4 * (n % 3)
        A(f"v_mov_b32 v63, {f2u(C_SCALE)}")
        A("v_mov_b32 v61, 0")
        vq = list(range(13))
        def dppsum(n, c):
            u = order[n]
            if c == 0: A(f"v_mov_b32_dpp v{32+u}, v{D(n)} quad_perm:[0,0,0,0] row_mask:0xf bank_mask:0xf")
            else: A(f"v_add_f32_dpp v{32+u}, v{D(n)+c}, v{32+u} quad_perm:[{c},{c},{c},{c}] row_mask:0xf bank_mask:0xf")
        s.build_aq(0)
        for n, u in enumerate(order):
            for t in range(4):
                op = operand("k", 4*u + t)
                A(f"v_mfma_f32_16x16x32_bf16 {q4(D(n))}, {q4(16+4*t)}, {op}, {'0' if t == 0 else q4(D(n))}")
                if n == 0 and t < 3: s.build_aq(t + 1)
                if n >= 2: dppsum(n - 2, t)
            if n == 0:
                for k in range(4): ldsread("k", 8 + k, 64 + 4*k)
            if n == 1: free += [80, 84, 88, 92, 96]
            if n == 4: free += [64, 68, 72, 76]
            if n >= 2 and free and vq:
                ldsread("v", vq.pop(0), free.pop(0))
            if n >= 3 and n % 2 == 1:
                a, b = order[n-3], order[n-2]
                if n == 3: A(f"v_max_f32 v60, v{32+a}, v{32+b}")
                else: A(f"v_max3_f32 v60, v60, v{32+a}, v{32+b}")
            if p1: p1.issue_more(1)
        if p1: A("s_barrier")
        for n in (14, 15):
            for c in range(4): dppsum(n, c)
        A(f"v_max3_f32 v60, v60, v{32+order[14]}, v{32+order[15]}")
        A("v_max_f32_dpp v60, v60, v60 row_ror:4 row_mask:0xf bank_mask:0xf")
        A("v_max_f32_dpp v60, v60, v60 row_ror:8 row_mask:0xf bank_mask:0xf")
        A("v_max_f32_dpp v60, v60, v60 row_bcast:15 row_mask:0xa bank_mask:0xf")
        A("v_max_f32_dpp v60, v60, v60 row_bcast:31 row_mask:0xc bank_mask:0xf")
        A("v_mul_f32 v60, v63, v60")
        A(f"v_readlane_b32 {sT0}, v60, 63")
        A(f"v_mov_b32 v62, {sT0}")
        def expo(u, part):
            t = 24 + (u % 2)
            if part == 0: A(f"v_fma_f32 v{t}, v{32+u}, v63, -v62")
            elif part == 1: A(f"v_exp_f32 v{t}, v{t}")
            elif part == 2: A(f"v_cvt_pk_bf16_f32 v{32+u}, v{t}, v{t}")
            else: A(f"v_add_f32 v61, v61, v{t}")
        def band(u, sidx, c):
            n = (4*c - 2 - 8*sidx) % 16
            A(f"v_and_b32_dpp v{16+4*sidx+c}, v{32+u}, v{2+c} row_ror:{n} row_mask:0xf bank_mask:0xf")
        for part in range(4):
            expo(0, part); expo(1, part)
        for c in range(4): band(0, 0, c)
        red = ["v_add_f32_dpp v61, v61, v61 row_ror:4 row_mask:0xf bank_mask:0xf",
               "v_add_f32_dpp v61, v61, v61 row_ror:8 row_mask:0xf bank_mask:0xf",
               "v_add_f32_dpp v61, v61, v61 row_bcast:15 row_mask:0xa bank_mask:0xf",
               "v_add_f32_dpp v61, v61, v61 row_bcast:31 row_mask:0xc bank_mask:0xf"]
        for u in range(16):
            if p1: p1.issue_upto(4*u + 3 + s.lag)
            def mm(j):
                f = 4*u + j
                op = operand("v", f)
                o = 48 + 4*(j & 1)
                first = (u == 0 and j < 2)
                A(f"v_mfma_f32_16x16x32_bf16 {q4(o)}, {op}, {q4(16+4*(j>>1))}, {'0' if first else q4(o)}")
                if vloc(f)[0] == "l":
                    free.append(stg[("v", f)][0])
                    if vq: ldsread("v", vq.pop(0), free.pop(0))
            nx = u + 2 < 16
            mm(0)
            band(u, 1, 0); band(u, 1, 1)
            if nx: expo(u + 2, 0)
            mm(1)
            band(u, 1, 2); band(u, 1, 3)
            if nx: expo(u + 2, 1)
            elif u == 14: A(red[0])
            else: A(red[2])
            mm(2)
            if u + 1 < 16: band(u + 1, 0, 0); band(u + 1, 0, 1)
            if nx: expo(u + 2, 2)
            mm(3)
            if u + 1 < 16: band(u + 1, 0, 2); band(u + 1, 0, 3)
            if nx: expo(u + 2, 3)
            elif u == 14: A(red[1])
            else: A(red[3])
    def build(s):
        A = s.A
        A.raw(HEADER.rstrip())
        A.raw("; @launch grid=(256,1,1) block=(256,1,1) lds=163840")
        A.raw('.amdgcn_target "amdgcn-amd-amdhsa--gfx950"\n.text')
        A.raw(f".globl {NAME}_kernel\n.p2align 8\n.type {NAME}_kernel,@function\n{NAME}_kernel:")
        A("s_cmp_ge_u32 s2, 256\ns_cbranch_scc1 L_end")
        A("s_load_dwordx16 s[56:71], s[0:1], 0")
        A("s_load_dwordx8 s[72:79], s[0:1], 64")
        A("s_load_dwordx2 s[80:81], s[0:1], 96")
        if s.ts: A("v_mov_b32 v12, 0")
        A("v_lshrrev_b32 v1, 6, v0")
        A("v_and_b32 v0, 63, v0")
        A(f"v_readfirstlane_b32 {sW}, v1")
        A(f"s_and_b32 {sG}, s2, 7\ns_lshr_b32 {sI}, s2, 3\ns_lshr_b32 {sHH}, s2, 6\ns_bfe_u32 {sB}, s2, 0x10005")
        A("v_and_b32 v16, 3, v0")
        A("v_bfe_u32 v17, v0, 2, 2")
        A("v_lshrrev_b32 v18, 4, v0")
        A("v_lshlrev_b32 v6, 4, v16\nv_lshl_add_u32 v6, v17, 8, v6\nv_lshl_add_u32 v6, v18, 6, v6")
        A("v_and_b32 v19, 7, v0\nv_bfe_u32 v20, v0, 3, 1")
        A("v_lshlrev_b32 v7, 4, v19\nv_lshl_add_u32 v7, v20, 8, v7\nv_lshl_add_u32 v7, v18, 10, v7")
        A("s_waitcnt lgkmcnt(0)")
        A(f"s_lshl_b32 s82, {sB}, 5\ns_lshl_b32 s83, {sG}, 2\ns_add_u32 s82, s82, s83\ns_add_u32 s82, s82, {sHH}\ns_lshl_b32 s82, s82, 20")
        A(f"s_and_b32 s83, {sI}, 3\ns_lshl_b32 s83, s83, 18\ns_add_u32 s82, s82, s83\ns_lshl_b32 s83, {sW}, 16\ns_add_u32 s82, s82, s83")
        A("s_add_u32 s8, s58, s82\ns_addc_u32 s9, s59, 0\ns_mov_b32 s10, 0x10000\ns_mov_b32 s11, 0x20000")
        A("s_add_u32 s12, s60, s82\ns_addc_u32 s13, s61, 0\ns_mov_b32 s14, 0x10000\ns_mov_b32 s15, 0x20000")
        def srd(k, lo, n):
            A(f"s_mov_b32 s{k}, s{lo}\ns_mov_b32 s{k+1}, s{lo+1}\ns_mov_b32 s{k+2}, {n}\ns_mov_b32 s{k+3}, 0x20000")
        srd(16, 80, WS_BYTES if not s.ts else TS_OFF + 0x40000)
        srd(20, 56, 2048); srd(24, 62, 4 << 20); srd(28, 64, 4 << 20); srd(32, 68, 512*2752)
        A(f"s_mul_i32 s83, {sG}, {176*1024}\ns_add_u32 s36, s72, s83\ns_addc_u32 s37, s73, 0")
        A(f"s_sub_u32 s38, {1376*1024}, s83\ns_min_u32 s38, s38, {176*1024}\ns_mov_b32 s39, 0x20000")
        srd(40, 70, 2752); srd(44, 74, 1024); srd(48, 76, 2048); srd(52, 78, 256)
        A("s_mov_b32 s56, 0x00030003\ns_mov_b32 s57, 0x00030003\ns_mov_b32 s58, 0x00030003\ns_mov_b32 s59, 0")
        A("s_mov_b32 s60, 0xffff\ns_mov_b32 s61, 0\ns_mov_b32 s62, 0xff\ns_mov_b32 s63, 0")
        A("s_mov_b32 s66, 0x33333333\ns_mov_b32 s67, 0xcccccccc")
        A(f"s_mov_b32 {sCnt}, 0\ns_mov_b32 {sMode}, 0\ns_mov_b32 {sLayer}, 0")
        A(f"s_lshl_b32 {sRot}, s2, 2\ns_add_u32 {sRot}, {sRot}, {sW}\ns_and_b32 {sRot}, {sRot}, 15\ns_lshl_b32 {sRot}, {sRot}, 12")
        A(f"s_mul_i32 {sKVl}, {sW}, {NLDS*1024}\ns_add_u32 {sKVl}, {sKVl}, {L_KV}")
        A(f"s_mul_i32 {sTau}, {sG}, 11\ns_add_u32 {sTau}, {sTau}, {sI}")
        s.stamp("start")
        ids = {}
        for f in range(4): ids[("k", f)] = s.kv_load("k", f)
        A("v_mov_b32 v22, -1\nv_mov_b32 v23, -1")
        A(f"s_lshl_b32 {sT0}, s2, 11\ns_lshl_b32 {sT1}, {sW}, 9\ns_add_u32 {sT0}, {sT0}, {sT1}")
        A("v_lshlrev_b32 v21, 3, v0")
        A.vm(f"buffer_store_dwordx2 v[22:23], v21, {rWS}, {sT0} offen sc1")
        A(f"s_lshl_b32 {sT0}, {sG}, 5\ns_add_u32 {sT0}, {sT0}, {sI}\ns_lshl_b32 {sOown}, {sT0}, 8")
        A(f"s_lshl_b32 {sOg}, {sG}, 13")
        A(f"s_lshl_b32 {sT0}, {sG}, 2\ns_add_u32 {sT1}, {sT0}, {sHH}\ns_add_u32 {sT0}, {sT0}, {sW}")
        A(f"s_lshl_b32 {sSTg}, {sT0}, 7\ns_add_u32 {sSTg}, {sSTg}, {ST}")
        A(f"s_and_b32 {sT2}, {sI}, 7\ns_lshl_b32 {sSTown}, {sT2}, 3\ns_lshl_b32 {sT0}, {sT1}, 7\ns_add_u32 {sSTown}, {sSTown}, {sT0}\ns_add_u32 {sSTown}, {sSTown}, {ST}")
        A(f"s_lshl_b32 {sT0}, {sT1}, 9\ns_lshl_b32 {sT2}, {sT2}, 5\ns_add_u32 {sQown}, {sT0}, {sT2}\ns_lshl_b32 {sT2}, {sB}, 8\ns_add_u32 {sQg}, {sT0}, {sT2}")
        A(f"s_add_u32 {sQown}, {sQown}, {QB0}\ns_add_u32 {sQg}, {sQg}, {QB0}")
        A(f"s_lshl_b32 {sAPg}, {sI}, 10\ns_add_u32 {sAPg}, {sAPg}, {AP}\ns_lshl_b32 {sT0}, {sG}, 7\ns_add_u32 {sAPown}, {sAPg}, {sT0}")
        A(f"s_add_u32 {sYPg}, {sAPg}, {YP-AP}\ns_add_u32 {sYPown}, {sAPown}, {YP-AP}")
        A(f"s_lshl_b32 {sT2}, {sI}, 5")
        A(f"s_lshl_b32 {sX1g}, {sG}, 11\ns_add_u32 {sX1g}, {sX1g}, {X1}\ns_add_u32 {sX1own}, {sX1g}, {sT2}")
        A(f"s_add_u32 {sX2g}, {sX1g}, {X2-X1}\ns_add_u32 {sX2own}, {sX1own}, {X2-X1}")
        A(f"s_lshl_b32 {sHg}, {sG}, 10\ns_add_u32 {sHg}, {sHg}, {HB}\ns_add_u32 {sHown}, {sHg}, {sT2}")
        A(f"s_mov_b32 {sA2}, {ACC2[0]}\ns_mov_b32 {sA4}, {ACC4[0]}")
        A("v_lshlrev_b32 v24, 2, v19\nv_lshl_add_u32 v25, v20, 8, v24\nv_lshl_add_u32 v26, v20, 10, v24")
        A(f"s_mov_b64 exec, {m16}")
        A.vm(f"buffer_store_dword v22, v25, {rWS}, {sQown} offen sc1")
        A.vm(f"buffer_load_dword v13, v26, {rX}, {sT2} offen")
        A.vm(f"buffer_load_dword v15, v24, {rB2}, {sT2} offen")
        A(f"s_lshl_b32 {sT0}, {sTau}, 5")
        A.vm(f"buffer_load_dword v14, v24, {rB1}, {sT0} offen")
        A("s_mov_b64 exec, -1")
        A(f"v_lshlrev_b32 v1, 4, v0\nv_add_u32 v1, {sKVl}, v1")
        A(f"s_lshl_b32 {sT0}, {sW}, 12")
        A(f"v_lshlrev_b32 v8, 3, v16\nv_lshl_add_u32 v8, v17, 5, v8\nv_lshl_add_u32 v8, v18, 8, v8\nv_add_u32 v8, {sT0}, v8")
        A("v_and_b32 v27, 1, v0")
        A(f"s_lshl_b32 {sT0}, {sW}, 8")
        A(f"v_lshlrev_b32 v9, 4, v18\nv_lshl_add_u32 v9, v27, 10, v9\nv_add_u32 v9, {sT0}, v9")
        A("v_bfe_u32 v28, v0, 1, 2")
        A(f"s_lshl_b32 {sT0}, {sW}, 11")
        A(f"v_lshlrev_b32 v10, 4, v18\nv_lshl_add_u32 v10, v20, 7, v10\nv_lshl_add_u32 v10, v28, 8, v10\nv_lshl_add_u32 v10, v27, 10, v10\nv_add_u32 v10, {sT0}, v10")
        A("v_and_b32 v28, 1, v18\nv_lshlrev_b32 v11, 5, v27\nv_lshl_add_u32 v11, v28, 4, v11")
        A("v_mov_b32 v29, 0xffff\nv_mov_b32 v30, 0xffff0000\nv_cmp_eq_u32 vcc, 1, v27\nv_cndmask_b32 v29, v29, v30, vcc")
        for c in range(4):
            A(f"v_cmp_eq_u32 vcc, {c}, v17\nv_cndmask_b32 v{2+c}, 0, v29, vcc")
        A(f"v_mov_b32 v30, 0\nv_mov_b32 v31, 0\nv_add_u32 v21, {L_SO}, v21")
        A.ds("ds_write_b64 v21, v[30:31]")
        A("v_lshrrev_b32 v83, 1, v0\nv_lshlrev_b32 v84, 4, v27")
        A("v_lshl_add_u32 v80, v83, 13, v84\nv_lshl_add_u32 v81, v83, 10, v84\nv_mul_u32_u24 v82, 2752, v83\nv_add_u32 v82, v82, v84")
        s.ln_tile_pre()
        A(f"s_mov_b64 exec, {mA}")
        for kk in range(4): A.vm(f"buffer_load_dwordx4 {q4(32+4*kk)}, v9, {rX}, 0 offen offset:{kk*64}")
        A("s_mov_b64 exec, -1")
        A(f"s_lshl_b32 {sT0}, {sW}, 20\ns_lshl_b32 {sT1}, {sG}, 10\ns_add_u32 {sT0}, {sT0}, {sT1}\ns_add_u32 {sT0}, {sT0}, {sT2}")
        A(f"s_lshl_b32 {sT1}, {sW}, 12")
        for j in range(4):
            A(f"s_add_u32 m0, {sT1}, {L_WQ + j*1024}")
            last = A.vm(f"buffer_load_dwordx4 v80, {rWQ}, {sT0} offen {s.wpol} lds")
            A(f"s_add_u32 {sT0}, {sT0}, {32*8192}")
        for f in range(4, 16): ids[("k", f)] = s.kv_load("k", f)
        s.ln_tile_addr(L_SO)
        A.wait_ds0()
        A("s_barrier")
        A.wait_vm(last)
        s.tr_reads(L_WQ, 4, 16)
        s.ln_tile_mma()
        skip = A.newlabel("L_skip")
        A(f"s_cmp_lg_u32 {sW}, 0\ns_cbranch_scc1 {skip}")
        A(f"s_mov_b64 exec, {m16}")
        s.ln_tile_final()
        A("v_lshlrev_b32 v74, 2, v0\nv_and_b32 v74, 28, v74\nv_bfe_u32 v75, v0, 3, 1\nv_lshl_add_u32 v74, v75, 8, v74")
        A("v_cvt_pk_bf16_f32 v64, v64, v65\nv_min_u32 v64, -2, v64")
        A.vm(f"buffer_store_dword v64, v74, {rWS}, {sQown} offen sc1", optional=True)
        A(f"s_getreg_b32 {sT0}, hwreg(HW_REG_XCC_ID)\ns_and_b32 {sT0}, {sT0}, 15\ns_mul_i32 {sT1}, {sT0}, 6\ns_add_u32 {sT1}, {sT1}, 8")
        A(f"s_lshl_b64 s[100:101], 1, {sT1}\ns_cmp_lt_u32 {sT0}, 8\ns_cselect_b64 s[100:101], s[100:101], 0\ns_or_b32 s100, s100, 1")
        A(f"v_mov_b32 v76, s100\nv_mov_b32 v77, s101\ns_lshl_b32 {sT0}, {sG}, 5\nv_mov_b32 v78, {sT0}")
        A("s_mov_b64 exec, 1")
        A.vm(f"buffer_atomic_add_x2 v[76:77], v78, {rDBG}, 0 offen sc1", optional=True)
        A("s_mov_b64 exec, -1")
        A.label(skip)
        A.ds_done = A.ds_issued
        s.stamp("q0pub")
        for f in range(16, 41): ids[("k", f)] = s.kv_load("k", f)
        A("v_lshlrev_b32 v70, 5, v0")
        A(f"s_mov_b64 exec, {m8}")
        chk = A.vm(f"buffer_load_dwordx2 v[72:73], v70, {rDBG}, 0 offen sc1")
        A("s_mov_b64 exec, -1")
        for f in range(41, 53): ids[("k", f)] = s.kv_load("k", f)
        A.wait_vm(chk)
        ok = A.newlabel("L_arr_ok"); lp = A.newlabel("L_arr")
        A(f"s_mov_b64 exec, {m8}")
        A.label(lp)
        A("v_and_b32 v74, 0xff, v72\nv_cmp_ne_u32 vcc, 32, v74")
        A(f"s_cbranch_vccz {ok}")
        A(f"s_sleep 4")
        A.vm(f"buffer_load_dwordx2 v[72:73], v70, {rDBG}, 0 offen sc1", optional=True)
        A(f"s_add_u32 {sCnt}, {sCnt}, 1\ns_cmp_lt_u32 {sCnt}, {LIMIT}\ns_waitcnt vmcnt(0)\ns_cbranch_scc1 {lp}")
        A.label(ok)
        A("s_mov_b64 exec, -1")
        A(f"v_readlane_b32 s100, v72, {sG}\nv_readlane_b32 s101, v73, {sG}")
        A(f"s_getreg_b32 {sT0}, hwreg(HW_REG_XCC_ID)\ns_and_b32 {sT0}, {sT0}, 15\ns_mul_i32 {sT1}, {sT0}, 6\ns_add_u32 {sT1}, {sT1}, 8")
        A(f"s_lshr_b64 s[100:101], s[100:101], {sT1}\ns_and_b32 s100, s100, 63\ns_cmp_eq_u32 s100, 32\ns_cselect_b32 {sMode}, 1, 0")
        A(f"s_cmp_lt_u32 {sT0}, 8\ns_cselect_b32 {sMode}, {sMode}, 0")
        if s.forceG: A(f"s_mov_b32 {sMode}, 0")
        A("v_and_b32 v62, 0xf0, v6")
        qid = A.vm(f"buffer_load_dwordx4 v[96:99], v62, {rWS}, {sQg} offen sc1")
        for f in range(53, 64): ids[("k", f)] = s.kv_load("k", f)
        A(f"s_lshl_b32 {sT2}, {sI}, 5")
        A(f"s_lshl_b32 {sT0}, {sG}, 19\ns_lshl_b32 {sT1}, {sW}, 17\ns_add_u32 {sT0}, {sT0}, {sT1}\ns_add_u32 {sT0}, {sT0}, {sT2}")
        A(f"s_lshl_b32 {sT1}, {sW}, 12")
        for j in range(4):
            A(f"s_add_u32 m0, {sT1}, {L_WO + j*1024}")
            A.vm(f"buffer_load_dwordx4 v81, {rWO}, {sT0} offen {s.wpol} lds")
            A(f"s_add_u32 {sT0}, {sT0}, {32*1024}")
        A(f"s_mul_i32 {sT0}, {sW}, {128*2752}\ns_lshl_b32 s100, {sTau}, 5\ns_add_u32 {sT0}, {sT0}, s100")
        for j in range(4):
            A(f"s_add_u32 m0, {sT1}, {L_W1 + j*1024}")
            A.vm(f"buffer_load_dwordx4 v82, {rW1}, {sT0} offen {s.wpol} lds")
            A(f"s_add_u32 {sT0}, {sT0}, {32*2752}")
        A(f"s_lshl_b32 {sT0}, {sW}, 16\ns_add_u32 {sT0}, {sT0}, {sT2}\nv_add_u32 v81, {sT0}, v81\nv_add_u32 v82, 0x8000, v81")
        A(f"s_lshl_b32 {sT1}, {sW}, 11")
        for j in range(2):
            A(f"s_add_u32 m0, {sT1}, {L_W2 + j*1024}")
            A.vm(f"buffer_load_dwordx4 v{81+j}, {rW2}, 0 offen {s.wpol} lds")
        class P1: pass
        p1 = P1(); p1.ids = ids; p1.next = 0
        def issue_upto(n):
            while p1.next <= min(n, 63):
                ids[("v", p1.next)] = s.kv_load("v", p1.next); p1.next += 1
        p1.issue_upto = issue_upto
        p1.issue_more = lambda k: issue_upto(p1.next + k - 1)
        issue_upto(3)
        for k in range(16, 32): A(f"v_mov_b32 v{k}, 0")
        A.wait_vm(qid)
        qreg = 96
        ok = A.newlabel("L_q_ok"); lp = A.newlabel("L_q")
        A.label(lp)
        A(f"v_max_u32 v63, v{qreg}, v{qreg+1}\nv_max3_u32 v63, v63, v{qreg+2}, v{qreg+3}\nv_cmp_eq_u32 vcc, -1, v63")
        A(f"s_cbranch_vccz {ok}")
        A.vm(f"buffer_load_dwordx4 {q4(qreg)}, v62, {rWS}, {sQg} offen sc1", optional=True)
        A(f"s_add_u32 {sCnt}, {sCnt}, 1\ns_cmp_lt_u32 {sCnt}, {LIMIT}\ns_waitcnt vmcnt(0)\ns_cbranch_scc1 {lp}")
        A.label(ok)
        A(f"s_sub_u32 {sQown}, {sQown}, {QB0 - QB}\ns_sub_u32 {sQg}, {sQg}, {QB0 - QB}")
        s.stamp("q0got")
        s.qreg = qreg
        s.att_prefetchK()
        s.attention(p1)
        A.wait_vm0()
        A.label("L_chain")
        s.stamp("pvdone")
        A(f"v_readlane_b32 {sT0}, v61, 63")
        A("v_lshrrev_b32 v24, 5, v0\nv_bfe_u32 v25, v0, 4, 1\nv_bfe_u32 v26, v0, 2, 2\nv_and_b32 v27, 1, v0")
        A(f"s_lshl_b32 {sT1}, {sW}, 10\ns_add_u32 {sT1}, {sT1}, {L_SO}")
        A(f"v_lshlrev_b32 v24, 9, v24\nv_lshl_add_u32 v24, v25, 7, v24\nv_lshl_add_u32 v24, v26, 5, v24\nv_lshl_add_u32 v24, v27, 4, v24\nv_add_u32 v24, {sT1}, v24")
        A(f"v_mov_b32 v63, {sT0}")
        A(f"s_lshl_b32 {sT1}, {sW}, 3\ns_add_u32 {sT1}, {sT1}, {L_ST}\nv_mov_b32 v25, {sT1}")
        A(f"s_mov_b64 exec, {mOV}")
        A.ds("ds_write_b128 v24, v[48:51]")
        A.ds("ds_write_b128 v24, v[52:55] offset:256")
        A("s_mov_b64 exec, 1")
        A.ds("ds_write_b64 v25, v[62:63]")
        A("s_mov_b64 exec, -1")
        A("v_lshrrev_b32 v28, 5, v0\nv_bfe_u32 v29, v0, 4, 1\nv_and_b32 v30, 3, v0\nv_bfe_u32 v31, v0, 2, 2")
        A(f"v_lshlrev_b32 v28, 8, v28\nv_lshl_add_u32 v28, v29, 7, v28\nv_lshl_add_u32 v28, v30, 5, v28\nv_lshl_add_u32 v28, v31, 2, v28\nv_add_u32 v28, {L_SO}, v28")
        A("v_add_u32 v29, 1024, v28\nv_add_u32 v30, 2048, v28\nv_add_u32 v31, 3072, v28")
        A(f"v_mov_b32 v26, {L_ST}\nv_lshlrev_b32 v27, 2, v0")
        A.wait_ds0()
        A("s_barrier")
        s2 = "L_S2"
        A(f"s_cmp_lg_u32 {sW}, 0\ns_cbranch_scc1 {s2}")
        A.ds("ds_read_b128 v[64:67], v26")
        st2 = A.ds("ds_read_b128 v[68:71], v26 offset:16")
        for w in range(4):
            A.ds(f"ds_read2_b32 {q2(72+4*w)}, v{28+w} offset0:0 offset1:4")
            A.ds(f"ds_read2_b32 {q2(74+4*w)}, v{28+w} offset0:128 offset1:132")
        A.wait_ds(st2)
        A("v_max3_f32 v88, v64, v66, v68\nv_max_f32 v88, v88, v70")
        for w in range(4): A(f"v_sub_f32 v{64+2*w}, v{64+2*w}, v88")
        for w in range(4): A(f"v_exp_f32 v{64+2*w}, v{64+2*w}")
        A("v_mul_f32 v89, v64, v65")
        for w in range(1, 4): A(f"v_fmac_f32 v89, v{64+2*w}, v{65+2*w}")
        A.wait_ds0()
        for w in range(4): A(f"v_pk_add_f32 {q2(72+4*w)}, {q2(72+4*w)}, {q2(74+4*w)}")
        A("v_pk_mul_f32 v[90:91], v[72:73], v[64:65] op_sel_hi:[1,0]")
        for w in range(1, 4): A(f"v_pk_fma_f32 v[90:91], {q2(72+4*w)}, {q2(64+2*w)}, v[90:91] op_sel_hi:[1,0,1]")
        A("v_cvt_pk_bf16_f32 v90, v90, v91\nv_min_u32 v90, -2, v90")
        s.publish(f"buffer_store_dword v90, v27, {rWS}, {sOown} offen {{pol}}")
        A("v_min_u32 v88, -2, v88\nv_min_u32 v89, -2, v89\nv_mov_b32 v27, 0")
        A("s_mov_b64 exec, 1")
        s.publish(f"buffer_store_dwordx2 v[88:89], v27, {rWS}, {sSTown} offen {{pol}}")
        A("s_mov_b64 exec, -1")
        A.label(s2)
        A.ds_done = A.ds_issued
        s.stamp("opub")
        s.tr_reads(L_WO, 4, 16)
        A("v_xor_b32 v58, 16, v11")
        A(f"v_and_b32 v59, 15, v0\nv_lshlrev_b32 v59, 2, v59\nv_add_u32 v59, {sA2}, v59")
        A(f"v_lshlrev_b32 v60, 4, v0\nv_add_u32 v61, {sA2}, v60")
        lab = s.poll_head()
        A(f"buffer_load_dwordx4 v[32:35], v10, {rWS}, {sOg} offen sc1")
        A(f"buffer_load_dwordx4 v[36:39], v10, {rWS}, {sOg} offen offset:64 sc1")
        A(f"buffer_load_dwordx4 v[40:43], v11, {rWS}, {sSTg} offen sc1")
        A(f"buffer_load_dwordx4 v[44:47], v58, {rWS}, {sSTg} offen sc1")
        s.poll_budget()
        A.wait_vm0()
        s.poll_check(lab, range(32, 48), 56)
        s.stamp("ogot")
        A.wait_ds0()
        A("v_mfma_f32_16x16x32_bf16 v[48:51], v[32:35], v[16:19], 0")
        A("v_max3_f32 v56, v40, v42, v44\nv_max_f32 v56, v56, v46")
        A("v_mfma_f32_16x16x32_bf16 v[52:55], v[32:35], v[24:27], 0")
        for k in (40, 42, 44, 46): A(f"v_sub_f32 v{k}, v{k}, v56")
        A("v_mfma_f32_16x16x32_bf16 v[48:51], v[36:39], v[20:23], v[48:51]")
        A("v_exp_f32 v40, v40\nv_exp_f32 v42, v42")
        A("v_mfma_f32_16x16x32_bf16 v[52:55], v[36:39], v[28:31], v[52:55]")
        A("v_exp_f32 v44, v44\nv_exp_f32 v46, v46")
        A("v_mul_f32 v57, v40, v41\nv_fmac_f32 v57, v42, v43\nv_fmac_f32 v57, v44, v45\nv_fmac_f32 v57, v46, v47")
        A("v_rcp_f32 v57, v57")
        A("v_mul_f32 v40, v40, v57\nv_mul_f32 v42, v42, v57")
        for (o, qp, c) in ((62, "[0,0,2,2]", 0), (63, "[1,1,3,3]", 1)):
            A(f"v_mul_f32_dpp v{o}, v40, v{48+c} quad_perm:{qp} row_mask:0x3 bank_mask:0xf")
            A(f"v_mul_f32_dpp v{o}, v40, v{52+c} quad_perm:{qp} row_mask:0xc bank_mask:0xf")
        for (o, qp, c) in ((62, "[0,0,2,2]", 2), (63, "[1,1,3,3]", 3)):
            A(f"v_fmac_f32_dpp v{o}, v42, v{48+c} quad_perm:{qp} row_mask:0x3 bank_mask:0xf")
            A(f"v_fmac_f32_dpp v{o}, v42, v{52+c} quad_perm:{qp} row_mask:0xc bank_mask:0xf")
        A.ds("ds_add_f32 v59, v62")
        A.ds("ds_add_f32 v59, v63 offset:64")
        A.wait_ds0()
        A("s_barrier")
        s4 = "L_S4"
        A(f"s_cmp_lg_u32 {sW}, 0\ns_cbranch_scc1 {s4}")
        A(f"s_mov_b64 exec, {m8}")
        A.ds("ds_read_b128 v[64:67], v61")
        A.wait_ds0()
        for k in range(64, 68): A(f"v_min_u32 v{k}, -2, v{k}")
        A(f"buffer_store_dwordx4 v[64:67], v60, {rWS}, {sAPown} offen sc1")
        s.stamp("appub")
        def xreduce(sg, addb2):
            A(f"s_mov_b64 exec, {m16}")
            A("v_lshlrev_b32 v34, 3, v0")
            A("v_lshlrev_b32 v32, 16, v13\nv_and_b32 v33, 0xffff0000, v13")
            if addb2:
                A("v_lshlrev_b32 v36, 16, v15\nv_and_b32 v37, 0xffff0000, v15")
                A("v_pk_add_f32 v[32:33], v[32:33], v[36:37]")
            A("v_lshlrev_b32 v35, 2, v0\nv_and_b32 v35, 28, v35\nv_bfe_u32 v36, v0, 3, 1\nv_lshl_add_u32 v35, v36, 10, v35")
            lab = s.poll_head()
            for j in range(8): A(f"buffer_load_dwordx2 {q2(16+2*j)}, v34, {rWS}, {sg} offen offset:{j*128} sc1")
            s.poll_budget()
            A.wait_vm0()
            s.poll_check(lab, range(16, 32), 38)
            for j in range(4): A(f"v_pk_add_f32 {q2(16+4*j)}, {q2(16+4*j)}, {q2(18+4*j)}")
            A("v_pk_add_f32 v[16:17], v[16:17], v[20:21]\nv_pk_add_f32 v[24:25], v[24:25], v[28:29]")
            A("v_pk_add_f32 v[16:17], v[16:17], v[24:25]\nv_pk_add_f32 v[16:17], v[16:17], v[32:33]")
            A("v_cvt_pk_bf16_f32 v13, v16, v17")
        xreduce(sAPg, False)
        A("v_min_u32 v16, -2, v13")
        s.publish(f"buffer_store_dword v16, v35, {rWS}, {sX1own} offen {{pol}}")
        A("s_mov_b64 exec, -1")
        s.stamp("x1pub")
        A.label(s4)
        A.ds_done = A.ds_issued
        s5 = "L_S5"
        A(f"s_cmp_ge_u32 {sI}, 11\ns_cbranch_scc1 {s5}")
        def ln_stage(tile, sg, acc):
            s.ln_tile_pre(tile)
            s.ln_tile_addr(acc)
            A(f"s_mov_b64 exec, {mA}")
            lab = s.poll_head()
            for kk in range(4): A(f"buffer_load_dwordx4 {q4(32+4*kk)}, v9, {rWS}, {sg} offen offset:{kk*64} sc1")
            s.poll_budget()
            A.wait_vm0()
            s.poll_check(lab, range(32, 48), 63)
            A("s_mov_b64 exec, -1")
            s.ln_tile_mma()
        ln_stage(L_W1, sX1g, sA4)
        A(f"s_cmp_lg_u32 {sW}, 0\ns_cbranch_scc1 L_S7")
        A(f"s_mov_b64 exec, {m16}")
        A("v_lshlrev_b32 v76, 16, v14\nv_and_b32 v77, 0xffff0000, v14")
        A("v_lshlrev_b32 v74, 2, v0\nv_and_b32 v74, 28, v74\nv_bfe_u32 v75, v0, 3, 1\nv_lshl_add_u32 v74, v75, 9, v74")
        A(f"s_cmp_lt_u32 {sTau}, 86\ns_cselect_b32 {sT0}, -1, 0")
        s.ln_tile_final()
        A("v_pk_add_f32 v[64:65], v[64:65], v[76:77]")
        k1 = -2.0 * math.sqrt(2.0 / math.pi) * math.log2(math.e)
        A(f"v_mov_b32 v78, {f2u(k1 * 0.044715)}\nv_mov_b32 v80, {f2u(k1)}")
        A("v_pk_mul_f32 v[66:67], v[64:65], v[64:65]")
        A("v_pk_fma_f32 v[66:67], v[66:67], v[78:79], v[80:81] op_sel_hi:[1,0,0]")
        A("v_pk_mul_f32 v[66:67], v[66:67], v[64:65]")
        A("v_exp_f32 v66, v66\nv_exp_f32 v67, v67")
        A("v_add_f32 v66, 1.0, v66\nv_add_f32 v67, 1.0, v67")
        A("v_rcp_f32 v66, v66\nv_rcp_f32 v67, v67")
        A("v_pk_mul_f32 v[64:65], v[64:65], v[66:67]")
        A(f"v_cvt_pk_bf16_f32 v64, v64, v65\nv_min_u32 v64, -2, v64\nv_and_b32 v64, {sT0}, v64")
        s.publish(f"buffer_store_dword v64, v74, {rWS}, {sHown} offen {{pol}}")
        A("s_mov_b64 exec, -1")
        s.stamp("hpub")
        A.label(s5)
        A.ds_done = A.ds_issued
        A(f"s_cmp_lg_u32 {sW}, 0\ns_cbranch_scc1 L_S7")
        s.tr_reads(L_W2, 6, 16)
        for k in range(60, 64): A(f"v_mov_b32 v{k}, 0")
        A("v_and_b32 v70, 1, v0\nv_lshrrev_b32 v71, 4, v0\nv_lshlrev_b32 v71, 4, v71\nv_lshl_add_u32 v68, v70, 9, v71\nv_lshl_add_u32 v69, v70, 6, v71")
        lab = s.poll_head()
        A(f"s_mov_b64 exec, {mAlo}")
        A(f"buffer_load_dwordx4 v[60:63], v68, {rWS}, {sHg} offen offset:320 sc1")
        A(f"s_mov_b64 exec, {mA}")
        for kk in range(5): A(f"buffer_load_dwordx4 {q4(40+4*kk)}, v68, {rWS}, {sHg} offen offset:{kk*64} sc1")
        s.poll_budget()
        A.wait_vm0()
        s.poll_check(lab, range(40, 64), 72)
        A("s_mov_b64 exec, -1")
        A.wait_ds0()
        for kk in range(6):
            d = 64 if kk % 2 == 0 else 72
            A(f"v_mfma_f32_16x16x32_bf16 {q4(d)}, {q4(16+4*kk)}, {q4(40+4*kk)}, {'0' if kk < 2 else q4(d)}")
        A("v_pk_add_f32 v[64:65], v[64:65], v[72:73]\nv_pk_add_f32 v[66:67], v[66:67], v[74:75]")
        for k in range(64, 68): A(f"v_min_u32 v{k}, -2, v{k}")
        A(f"s_mov_b64 exec, {mA}")
        A(f"buffer_store_dwordx4 v[64:67], v69, {rWS}, {sYPown} offen sc1")
        s.stamp("yppub")
        fin = "L_fin"
        A(f"s_cmp_eq_u32 {sLayer}, 0\ns_cselect_b32 {sT0}, 0, {sG}\ns_cmp_lg_u32 {sT0}, 0\ns_cbranch_scc1 L_done")
        xreduce(sYPg, True)
        A(f"s_cmp_lg_u32 {sLayer}, 0\ns_cbranch_scc1 {fin}")
        A("v_min_u32 v16, -2, v13")
        s.publish(f"buffer_store_dword v16, v35, {rWS}, {sX2own} offen {{pol}}")
        A("s_mov_b64 exec, -1")
        s.stamp("x2pub")
        A.label("L_S7")
        A.ds_done = A.ds_issued
        A(f"s_cmp_lg_u32 {sLayer}, 0\ns_cbranch_scc1 L_done")
        ln_stage(L_WQ, sX2g, ACC7)
        s8 = "L_S8"
        A(f"s_cmp_lg_u32 {sW}, 0\ns_cbranch_scc1 {s8}")
        A(f"s_mov_b64 exec, {m16}")
        A("v_lshlrev_b32 v74, 2, v0\nv_and_b32 v74, 28, v74\nv_bfe_u32 v75, v0, 3, 1\nv_lshl_add_u32 v74, v75, 8, v74")
        s.ln_tile_final()
        A("v_cvt_pk_bf16_f32 v64, v64, v65\nv_min_u32 v64, -2, v64")
        s.publish(f"buffer_store_dword v64, v74, {rWS}, {sQown} offen {{pol}}")
        A("s_mov_b64 exec, -1")
        s.stamp("qpub")
        A.label(s8)
        A.ds_done = A.ds_issued
        s.att_prefetchK()
        for k in range(16, 32): A(f"v_mov_b32 v{k}, 0")
        A("v_and_b32 v62, 0xf0, v6")
        lab = s.poll_head()
        A(f"buffer_load_dwordx4 {q4(qreg)}, v62, {rWS}, {sQg} offen sc1")
        s.poll_budget()
        A.wait_vm0()
        s.poll_check(lab, range(qreg, qreg + 4), 63)
        s.stamp("qgot")
        A(f"s_add_u32 s16, s16, {LSTRIDE}\ns_addc_u32 s17, s17, 0\ns_sub_u32 s18, s18, {LSTRIDE}")
        A(f"s_mov_b32 {sLayer}, 1\ns_mov_b32 {sA2}, {ACC2[1]}\ns_mov_b32 {sA4}, {ACC4[1]}")
        s.attention(None)
        A("s_branch L_chain")
        A.label(fin)
        A(f"s_lshl_b32 {sT0}, {sI}, 5")
        A(f"buffer_store_dword v13, v35, {rOUT}, {sT0} offen")
        A.label("L_done")
        if s.ts:
            A("s_mov_b64 exec, -1")
            s.stamp("end")
            A(f"s_mul_i32 {sT0}, {sLayer}, {LSTRIDE}\ns_lshl_b32 {sT1}, s2, 2\ns_add_u32 {sT1}, {sT1}, {sW}\ns_lshl_b32 {sT1}, {sT1}, 8")
            A(f"s_add_u32 {sT1}, {sT1}, {TS_OFF}\ns_sub_u32 {sT1}, {sT1}, {sT0}\nv_lshlrev_b32 v16, 2, v0")
            A(f"buffer_store_dword v12, v16, {rWS}, {sT1} offen")
        A("L_end:\ns_endpgm")
        for t in s.tail: A.raw(t)
        A.raw('.section .rodata,"a"\n.p2align 6')
        A.raw(f".amdhsa_kernel {NAME}_kernel")
        A.raw("  .amdhsa_next_free_vgpr 512\n  .amdhsa_next_free_sgpr 102\n  .amdhsa_accum_offset 256\n  .amdhsa_group_segment_fixed_size 0")
        A.raw("  .amdhsa_kernarg_size 104\n  .amdhsa_user_sgpr_count 2\n  .amdhsa_user_sgpr_kernarg_segment_ptr 1\n  .amdhsa_system_sgpr_workgroup_id_x 1")
        A.raw("  .amdhsa_float_denorm_mode_32 3\n.end_amdhsa_kernel")
        return A.text()

if __name__ == "__main__":
    out = sys.argv[1] if len(sys.argv) > 1 else f"cdna_kernels/{NAME}.s"
    kw = {}
    for a in sys.argv[2:]:
        k, v = a.split("=")
        kw[k] = int(v) if v.lstrip("-").isdigit() else v
    g = Gen(**kw)
    open(out, "w").write(g.build())
    print("wrote", out, "nops", g.A.nops)
```

```python
import sys, math
from asmlib import Asm

NAME = "interleave_layers__gqa_block_cached__dense_activation_gelu__decode"
HEADER = open("cdna_kernels/%s.s.ref" % NAME).read().split("; Override launch")[0]

L_WQ, L_WO, L_W1, L_W2 = 0, 16384, 32768, 49152
L_ACC = 55296
L_SO = 57344
L_KV = 61440
NLDS = 25
ACC2 = [L_ACC + 0, L_ACC + 128]
ACC4 = [L_ACC + 256, L_ACC + 640]
ACC7 = L_ACC + 1024
L_ST = L_ACC + 1536
OB, ST, AP, X1, HB, YP, X2, QB = 0x0, 0x10000, 0x18000, 0x20000, 0x24000, 0x28000, 0x30000, 0x34000
LSTRIDE = 0x40000
QB0 = 0x80000
WS_BYTES = 0x84000
TS_OFF = 0x100000

sW, sG, sI, sHH, sB = "s3", "s4", "s5", "s6", "s7"
rK, rV, rWS, rX, rWQ, rWO, rW1, rW2, rB1, rB2, rOUT, rDBG = [f"s[{k}:{k+3}]" for k in range(8, 56, 4)]
mA, mAlo, m16, m8, sAlive, mOV = [f"s[{k}:{k+1}]" for k in range(56, 68, 2)]
sCnt, sMode, sLayer, sRot, sKVl, sSK, sSV, sT0, sT1, sT2 = [f"s{k}" for k in range(68, 78)]
sOown, sSTown, sOg, sSTg, sAPown, sAPg, sX1own, sX1g, sHown, sHg, sYPown, sYPg, sX2own, sX2g, sQown, sQg = [f"s{k}" for k in range(78, 94)]
sA2, sA4, sTau = "s94", "s95", "s96"
sTS = "s[98:99]"
LIMIT = 100000

C_SCALE = math.log2(math.e) / math.sqrt(128.0)
import struct
def f2u(x): return "0x%08x" % struct.unpack("<I", struct.pack("<f", x))[0]

def kloc(f):
    return ("l", f) if f < 12 else ("r", f"a[{4*(f-12)}:{4*(f-12)+3}]")
def vloc(f):
    if f < 13: return ("l", 12 + f)
    if f < 25: return ("r", f"a[{208+4*(f-13)}:{208+4*(f-13)+3}]")
    return ("r", f"v[{100+4*(f-25)}:{100+4*(f-25)+3}]")
def q4(b): return f"v[{b}:{b+3}]"
def q2(b): return f"v[{b}:{b+1}]"

class Gen:
    def __init__(s, kvpol="nt", wpol="", ts=False, lag=16, forceG=False, padend=0, padchain=0, padcyc=0):
        s.A = Asm(); s.kvpol = kvpol; s.wpol = wpol; s.ts = ts; s.lag = lag; s.forceG = forceG
        s.padend = padend; s.padchain = padchain; s.padcyc = padcyc
        s.tail = []
        s.nts = 0
    def stamp(s, name):
        if not s.ts: return
        A = s.A
        k = s.nts; s.nts += 1
        s.tsnames = getattr(s, "tsnames", []) + [name]
        A(f"s_memrealtime {sTS}")
        A(f"s_lshl_b32 s97, {sLayer}, 5\ns_add_u32 m0, s97, {k}")
        A("s_waitcnt lgkmcnt(0)")
        A.ds_done = A.ds_issued
        A(f"v_writelane_b32 v12, s98, m0")
    def spin_until(s, n, clock="s_memrealtime", base="s97"):
        A = s.A; l = A.newlabel("L_spin")
        A.label(l)
        A(f"{clock} s[98:99]\ns_waitcnt lgkmcnt(0)\ns_sub_u32 s98, s98, {base}\ns_cmp_lt_u32 s98, {n}\ns_cbranch_scc1 {l}")
    def publish(s, text_fmt):
        A = s.A
        slow = A.newlabel("L_slow"); back = A.newlabel("L_back")
        A(f"s_cmp_eq_u32 {sMode}, 0")
        A(f"s_cbranch_scc1 {slow}")
        A.vm(text_fmt.format(pol=""), optional=True)
        A.label(back)
        s.tail.append(f"{slow}:\n    " + text_fmt.format(pol="sc1") + f"\n    s_branch {back}")
    def poll_head(s):
        lab = s.A.newlabel("L_poll"); s.A.label(lab); return lab
    def poll_budget(s):
        A = s.A
        A(f"s_add_u32 {sCnt}, {sCnt}, 1")
        A(f"s_cmp_lt_u32 {sCnt}, {LIMIT}")
        A(f"s_cselect_b64 {sAlive}, -1, 0")
    def poll_check(s, lab, regs, tmp):
        A = s.A
        regs = list(regs)
        if len(regs) == 1:
            A(f"v_cmp_eq_u32 vcc, -1, v{regs[0]}")
        else:
            if len(regs) % 2 == 0:
                A(f"v_max_u32 v{tmp}, v{regs[0]}, v{regs[1]}"); rest = regs[2:]
            else:
                A(f"v_max3_u32 v{tmp}, v{regs[0]}, v{regs[1]}, v{regs[2]}"); rest = regs[3:]
            for k in range(0, len(rest), 2):
                A(f"v_max3_u32 v{tmp}, v{tmp}, v{rest[k]}, v{rest[k+1]}")
            A(f"v_cmp_eq_u32 vcc, -1, v{tmp}")
        A(f"s_and_b64 vcc, vcc, {sAlive}")
        A(f"s_cbranch_scc1 {lab}")
    def tr_reads(s, tile, nsteps, base):
        A = s.A
        for kk in range(nsteps):
            for hf in range(2):
                A.ds(f"ds_read_b64_tr_b16 {q2(base + 4*kk + 2*hf)}, v8 offset:{tile + kk*1024 + hf*128}")
    def kv_load(s, kind, f):
        A = s.A
        if kind == "k":
            u, rem = f // 4, (f % 4) * 1024; loc = kloc(f); srd, vo, so = rK, "v6", sSK
        else:
            u, rem = f // 4, ((f % 4) >> 1) * 512 + (f & 1) * 128; loc = vloc(f); srd, vo, so = rV, "v7", sSV
        if f % 4 == 0:
            A(f"s_add_u32 {so}, {sRot}, {u*4096}")
            A(f"s_and_b32 {so}, {so}, 0xffff")
        if loc[0] == "r":
            return A.vm(f"buffer_load_dwordx4 {loc[1]}, {vo}, {srd}, {so} offen offset:{rem} {s.kvpol}")
        A(f"s_add_u32 m0, {sKVl}, {loc[1]*1024 - rem}")
        return A.vm(f"buffer_load_dwordx4 {vo}, {srd}, {so} offen offset:{rem} {s.kvpol} lds")
    def ln_tile_pre(s, tile=None):
        A = s.A
        if tile is not None: s.tr_reads(tile, 4, 16)
        A("v_and_b32 v56, 15, v0")
        A("v_cmp_eq_u32 vcc, 2, v56")
        A("v_mov_b32 v57, 0x3f803f80")
        A("v_cndmask_b32 v32, 0, v57, vcc")
        for k in range(33, 48): A(f"v_mov_b32 v{k}, v32")
    def ln_tile_addr(s, acc):
        A = s.A
        A("v_and_b32 v58, 15, v0")
        A("v_lshlrev_b32 v58, 2, v58")
        A(f"v_add_u32 v58, {acc}, v58")
        A("v_lshlrev_b32 v59, 3, v0")
        A(f"v_add_u32 v59, {acc}, v59")
        A("v_and_b32 v60, 7, v0")
        A("v_lshlrev_b32 v60, 3, v60")
        A(f"v_add_u32 v60, {acc}, v60")
        A("v_bfe_u32 v62, v0, 3, 1")
        A("v_mul_u32_u24 v61, 68, v62")
        A(f"v_add_u32 v61, {acc}, v61")
        A("v_lshlrev_b32 v62, 2, v62")
        A(f"v_add_u32 v62, {acc}, v62")
    def ln_tile_mma(s):
        A = s.A
        A.wait_ds0()
        for kk in range(4):
            A(f"v_mfma_f32_16x16x32_bf16 v[48:51], {q4(32+4*kk)}, {q4(16+4*kk)}, {'0' if kk == 0 else 'v[48:51]'}")
            A(f"v_mfma_f32_16x16x32_bf16 v[52:55], {q4(32+4*kk)}, {q4(32+4*kk)}, {'0' if kk == 0 else 'v[52:55]'}")
        A(f"s_mov_b64 exec, {m16}")
        for c in range(3): A.ds(f"ds_add_f32 v58, v{48+c} offset:{64*c}")
        for c in range(3): A.ds(f"ds_add_f32 v58, v{52+c} offset:{192+64*c}")
        A("s_mov_b64 exec, -1")
        A.wait_ds0()
        A("s_barrier")
    def ln_tile_final(s):
        A = s.A
        A.ds("ds_read_b32 v68, v61 offset:192")
        A.ds("ds_read_b32 v69, v62 offset:320")
        A.ds("ds_read_b64 v[64:65], v59")
        A.ds("ds_read_b64 v[66:67], v60 offset:128")
        A.wait_ds(A.ds_issued - 3)
        A(f"v_mul_f32 v70, {f2u(1/512)}, v69")
        A(f"v_mul_f32 v68, {f2u(1/512)}, v68")
        A("v_fma_f32 v68, -v70, v70, v68")
        A("v_max_f32 v68, 0, v68")
        A(f"v_add_f32 v68, {f2u(1e-5)}, v68")
        A("v_rsq_f32 v72, v68")
        A.wait_ds0()
        A("v_pk_fma_f32 v[64:65], v[66:67], v[70:71], v[64:65] op_sel_hi:[1,0,1] neg_lo:[1,0,0] neg_hi:[1,0,0]")
        A("v_pk_mul_f32 v[64:65], v[64:65], v[72:73] op_sel_hi:[1,0]")
    def att_prefetchK(s):
        A = s.A
        s.stg = {}
        for f in range(8):
            s.stg[("k", f)] = (64 + 4*f, A.ds(f"ds_read_b128 {q4(64+4*f)}, v1 offset:{f*1024}"))
    def build_aq(s, t):
        A = s.A
        for k in range(4):
            A(f"v_mov_b32_dpp v{16+4*t+k}, v{96+k} quad_perm:[0,1,2,3] row_mask:0xf bank_mask:{1<<t:#x}")
    def attention(s, p1=None):
        A = s.A
        stg = s.stg
        free = []
        def ldsread(kind, f, slotreg):
            slot = kloc(f)[1] if kind == "k" else vloc(f)[1]
            if p1: A.wait_vm(p1.ids[(kind, f)])
            stg[(kind, f)] = (slotreg, A.ds(f"ds_read_b128 {q4(slotreg)}, v1 offset:{slot*1024}"))
        def operand(kind, f):
            loc = kloc(f) if kind == "k" else vloc(f)
            if loc[0] == "r":
                if p1: A.wait_vm(p1.ids[(kind, f)])
                return loc[1]
            reg, did = stg[(kind, f)]
            A.wait_ds(did)
            return q4(reg)
        order = [0, 1, 3, 4, 2] + list(range(5, 16))
        D = lambda n: 48 + 4 * (n % 3)
        A(f"v_mov_b32 v63, {f2u(C_SCALE)}")
        A("v_mov_b32 v61, 0")
        vq = list(range(13))
        def dppsum(n, c):
            u = order[n]
            if c == 0: A(f"v_mov_b32_dpp v{32+u}, v{D(n)} quad_perm:[0,0,0,0] row_mask:0xf bank_mask:0xf")
            else: A(f"v_add_f32_dpp v{32+u}, v{D(n)+c}, v{32+u} quad_perm:[{c},{c},{c},{c}] row_mask:0xf bank_mask:0xf")
        s.build_aq(0)
        for n, u in enumerate(order):
            for t in range(4):
                op = operand("k", 4*u + t)
                A(f"v_mfma_f32_16x16x32_bf16 {q4(D(n))}, {q4(16+4*t)}, {op}, {'0' if t == 0 else q4(D(n))}")
                if n == 0 and t < 3: s.build_aq(t + 1)
                if n >= 2: dppsum(n - 2, t)
            if n == 0:
                for k in range(4): ldsread("k", 8 + k, 64 + 4*k)
            if n == 1: free += [80, 84, 88, 92, 96]
            if n == 4: free += [64, 68, 72, 76]
            if n >= 2 and free and vq:
                ldsread("v", vq.pop(0), free.pop(0))
            if n >= 3 and n % 2 == 1:
                a, b = order[n-3], order[n-2]
                if n == 3: A(f"v_max_f32 v60, v{32+a}, v{32+b}")
                else: A(f"v_max3_f32 v60, v60, v{32+a}, v{32+b}")
            if p1: p1.issue_more(1)
        if p1: A("s_barrier")
        for n in (14, 15):
            for c in range(4): dppsum(n, c)
        A(f"v_max3_f32 v60, v60, v{32+order[14]}, v{32+order[15]}")
        A("v_max_f32_dpp v60, v60, v60 row_ror:4 row_mask:0xf bank_mask:0xf")
        A("v_max_f32_dpp v60, v60, v60 row_ror:8 row_mask:0xf bank_mask:0xf")
        A("v_max_f32_dpp v60, v60, v60 row_bcast:15 row_mask:0xa bank_mask:0xf")
        A("v_max_f32_dpp v60, v60, v60 row_bcast:31 row_mask:0xc bank_mask:0xf")
        A("v_mul_f32 v60, v63, v60")
        A(f"v_readlane_b32 {sT0}, v60, 63")
        A(f"v_mov_b32 v62, {sT0}")
        def expo(u, part):
            t = 24 + (u % 2)
            if part == 0: A(f"v_fma_f32 v{t}, v{32+u}, v63, -v62")
            elif part == 1: A(f"v_exp_f32 v{t}, v{t}")
            elif part == 2: A(f"v_cvt_pk_bf16_f32 v{32+u}, v{t}, v{t}")
            else: A(f"v_add_f32 v61, v61, v{t}")
        def band(u, sidx, c):
            n = (4*c - 2 - 8*sidx) % 16
            A(f"v_and_b32_dpp v{16+4*sidx+c}, v{32+u}, v{2+c} row_ror:{n} row_mask:0xf bank_mask:0xf")
        for part in range(4):
            expo(0, part); expo(1, part)
        for c in range(4): band(0, 0, c)
        red = ["v_add_f32_dpp v61, v61, v61 row_ror:4 row_mask:0xf bank_mask:0xf",
               "v_add_f32_dpp v61, v61, v61 row_ror:8 row_mask:0xf bank_mask:0xf",
               "v_add_f32_dpp v61, v61, v61 row_bcast:15 row_mask:0xa bank_mask:0xf",
               "v_add_f32_dpp v61, v61, v61 row_bcast:31 row_mask:0xc bank_mask:0xf"]
        for u in range(16):
            if p1: p1.issue_upto(4*u + 3 + s.lag)
            def mm(j):
                f = 4*u + j
                op = operand("v", f)
                o = 48 + 4*(j & 1)
                first = (u == 0 and j < 2)
                A(f"v_mfma_f32_16x16x32_bf16 {q4(o)}, {op}, {q4(16+4*(j>>1))}, {'0' if first else q4(o)}")
                if vloc(f)[0] == "l":
                    free.append(stg[("v", f)][0])
                    if vq: ldsread("v", vq.pop(0), free.pop(0))
            nx = u + 2 < 16
            mm(0)
            band(u, 1, 0); band(u, 1, 1)
            if nx: expo(u + 2, 0)
            mm(1)
            band(u, 1, 2); band(u, 1, 3)
            if nx: expo(u + 2, 1)
            elif u == 14: A(red[0])
            else: A(red[2])
            mm(2)
            if u + 1 < 16: band(u + 1, 0, 0); band(u + 1, 0, 1)
            if nx: expo(u + 2, 2)
            mm(3)
            if u + 1 < 16: band(u + 1, 0, 2); band(u + 1, 0, 3)
            if nx: expo(u + 2, 3)
            elif u == 14: A(red[1])
            else: A(red[3])
    def build(s):
        A = s.A
        A.raw(HEADER.rstrip())
        A.raw("; @launch grid=(256,1,1) block=(256,1,1) lds=163840")
        A.raw('.amdgcn_target "amdgcn-amd-amdhsa--gfx950"\n.text')
        A.raw(f".globl {NAME}_kernel\n.p2align 8\n.type {NAME}_kernel,@function\n{NAME}_kernel:")
        A("s_cmp_ge_u32 s2, 256\ns_cbranch_scc1 L_end")
        A("s_load_dwordx16 s[56:71], s[0:1], 0")
        A("s_load_dwordx8 s[72:79], s[0:1], 64")
        A("s_load_dwordx2 s[80:81], s[0:1], 96")
        if s.ts: A("v_mov_b32 v12, 0")
        A("v_lshrrev_b32 v1, 6, v0")
        A("v_and_b32 v0, 63, v0")
        A(f"v_readfirstlane_b32 {sW}, v1")
        A(f"s_and_b32 {sG}, s2, 7\ns_lshr_b32 {sI}, s2, 3\ns_lshr_b32 {sHH}, s2, 6\ns_bfe_u32 {sB}, s2, 0x10005")
        A("v_and_b32 v16, 3, v0")
        A("v_bfe_u32 v17, v0, 2, 2")
        A("v_lshrrev_b32 v18, 4, v0")
        A("v_lshlrev_b32 v6, 4, v16\nv_lshl_add_u32 v6, v17, 8, v6\nv_lshl_add_u32 v6, v18, 6, v6")
        A("v_and_b32 v19, 7, v0\nv_bfe_u32 v20, v0, 3, 1")
        A("v_lshlrev_b32 v7, 4, v19\nv_lshl_add_u32 v7, v20, 8, v7\nv_lshl_add_u32 v7, v18, 10, v7")
        A("s_waitcnt lgkmcnt(0)")
        A(f"s_lshl_b32 s82, {sB}, 5\ns_lshl_b32 s83, {sG}, 2\ns_add_u32 s82, s82, s83\ns_add_u32 s82, s82, {sHH}\ns_lshl_b32 s82, s82, 20")
        A(f"s_and_b32 s83, {sI}, 3\ns_lshl_b32 s83, s83, 18\ns_add_u32 s82, s82, s83\ns_lshl_b32 s83, {sW}, 16\ns_add_u32 s82, s82, s83")
        A("s_add_u32 s8, s58, s82\ns_addc_u32 s9, s59, 0\ns_mov_b32 s10, 0x10000\ns_mov_b32 s11, 0x20000")
        A("s_add_u32 s12, s60, s82\ns_addc_u32 s13, s61, 0\ns_mov_b32 s14, 0x10000\ns_mov_b32 s15, 0x20000")
        def srd(k, lo, n):
            A(f"s_mov_b32 s{k}, s{lo}\ns_mov_b32 s{k+1}, s{lo+1}\ns_mov_b32 s{k+2}, {n}\ns_mov_b32 s{k+3}, 0x20000")
        srd(16, 80, WS_BYTES if not s.ts else TS_OFF + 0x40000)
        srd(20, 56, 2048); srd(24, 62, 4 << 20); srd(28, 64, 4 << 20); srd(32, 68, 512*2752)
        A(f"s_mul_i32 s83, {sG}, {176*1024}\ns_add_u32 s36, s72, s83\ns_addc_u32 s37, s73, 0")
        A(f"s_sub_u32 s38, {1376*1024}, s83\ns_min_u32 s38, s38, {176*1024}\ns_mov_b32 s39, 0x20000")
        srd(40, 70, 2752); srd(44, 74, 1024); srd(48, 76, 2048); srd(52, 78, 256)
        A("s_mov_b32 s56, 0x00030003\ns_mov_b32 s57, 0x00030003\ns_mov_b32 s58, 0x00030003\ns_mov_b32 s59, 0")
        A("s_mov_b32 s60, 0xffff\ns_mov_b32 s61, 0\ns_mov_b32 s62, 0xff\ns_mov_b32 s63, 0")
        A("s_mov_b32 s66, 0x33333333\ns_mov_b32 s67, 0xcccccccc")
        A(f"s_mov_b32 {sCnt}, 0\ns_mov_b32 {sMode}, 0\ns_mov_b32 {sLayer}, 0")
        A(f"s_lshl_b32 {sRot}, s2, 2\ns_add_u32 {sRot}, {sRot}, {sW}\ns_and_b32 {sRot}, {sRot}, 15\ns_lshl_b32 {sRot}, {sRot}, 12")
        A(f"s_mul_i32 {sKVl}, {sW}, {NLDS*1024}\ns_add_u32 {sKVl}, {sKVl}, {L_KV}")
        A(f"s_mul_i32 {sTau}, {sG}, 11\ns_add_u32 {sTau}, {sTau}, {sI}")
        s.stamp("start")
        if s.padend or s.padchain: A("s_memrealtime s[98:99]\ns_waitcnt lgkmcnt(0)\ns_mov_b32 s97, s98")
        ids = {}
        for f in range(4): ids[("k", f)] = s.kv_load("k", f)
        A("v_mov_b32 v22, -1\nv_mov_b32 v23, -1")
        A(f"s_lshl_b32 {sT0}, s2, 11\ns_lshl_b32 {sT1}, {sW}, 9\ns_add_u32 {sT0}, {sT0}, {sT1}")
        A("v_lshlrev_b32 v21, 3, v0")
        A.vm(f"buffer_store_dwordx2 v[22:23], v21, {rWS}, {sT0} offen sc1")
        A(f"s_lshl_b32 {sT0}, {sG}, 5\ns_add_u32 {sT0}, {sT0}, {sI}\ns_lshl_b32 {sOown}, {sT0}, 8")
        A(f"s_lshl_b32 {sOg}, {sG}, 13")
        A(f"s_lshl_b32 {sT0}, {sG}, 2\ns_add_u32 {sT1}, {sT0}, {sHH}\ns_add_u32 {sT0}, {sT0}, {sW}")
        A(f"s_lshl_b32 {sSTg}, {sT0}, 7\ns_add_u32 {sSTg}, {sSTg}, {ST}")
        A(f"s_and_b32 {sT2}, {sI}, 7\ns_lshl_b32 {sSTown}, {sT2}, 3\ns_lshl_b32 {sT0}, {sT1}, 7\ns_add_u32 {sSTown}, {sSTown}, {sT0}\ns_add_u32 {sSTown}, {sSTown}, {ST}")
        A(f"s_lshl_b32 {sT0}, {sT1}, 9\ns_lshl_b32 {sT2}, {sT2}, 5\ns_add_u32 {sQown}, {sT0}, {sT2}\ns_lshl_b32 {sT2}, {sB}, 8\ns_add_u32 {sQg}, {sT0}, {sT2}")
        A(f"s_add_u32 {sQown}, {sQown}, {QB0}\ns_add_u32 {sQg}, {sQg}, {QB0}")
        A(f"s_lshl_b32 {sAPg}, {sI}, 10\ns_add_u32 {sAPg}, {sAPg}, {AP}\ns_lshl_b32 {sT0}, {sG}, 7\ns_add_u32 {sAPown}, {sAPg}, {sT0}")
        A(f"s_add_u32 {sYPg}, {sAPg}, {YP-AP}\ns_add_u32 {sYPown}, {sAPown}, {YP-AP}")
        A(f"s_lshl_b32 {sT2}, {sI}, 5")
        A(f"s_lshl_b32 {sX1g}, {sG}, 11\ns_add_u32 {sX1g}, {sX1g}, {X1}\ns_add_u32 {sX1own}, {sX1g}, {sT2}")
        A(f"s_add_u32 {sX2g}, {sX1g}, {X2-X1}\ns_add_u32 {sX2own}, {sX1own}, {X2-X1}")
        A(f"s_lshl_b32 {sHg}, {sG}, 10\ns_add_u32 {sHg}, {sHg}, {HB}\ns_add_u32 {sHown}, {sHg}, {sT2}")
        A(f"s_mov_b32 {sA2}, {ACC2[0]}\ns_mov_b32 {sA4}, {ACC4[0]}")
        A("v_lshlrev_b32 v24, 2, v19\nv_lshl_add_u32 v25, v20, 8, v24\nv_lshl_add_u32 v26, v20, 10, v24")
        A(f"s_mov_b64 exec, {m16}")
        A.vm(f"buffer_store_dword v22, v25, {rWS}, {sQown} offen sc1")
        A.vm(f"buffer_load_dword v13, v26, {rX}, {sT2} offen")
        A.vm(f"buffer_load_dword v15, v24, {rB2}, {sT2} offen")
        A(f"s_lshl_b32 {sT0}, {sTau}, 5")
        A.vm(f"buffer_load_dword v14, v24, {rB1}, {sT0} offen")
        A("s_mov_b64 exec, -1")
        A(f"v_lshlrev_b32 v1, 4, v0\nv_add_u32 v1, {sKVl}, v1")
        A(f"s_lshl_b32 {sT0}, {sW}, 12")
        A(f"v_lshlrev_b32 v8, 3, v16\nv_lshl_add_u32 v8, v17, 5, v8\nv_lshl_add_u32 v8, v18, 8, v8\nv_add_u32 v8, {sT0}, v8")
        A("v_and_b32 v27, 1, v0")
        A(f"s_lshl_b32 {sT0}, {sW}, 8")
        A(f"v_lshlrev_b32 v9, 4, v18\nv_lshl_add_u32 v9, v27, 10, v9\nv_add_u32 v9, {sT0}, v9")
        A("v_bfe_u32 v28, v0, 1, 2")
        A(f"s_lshl_b32 {sT0}, {sW}, 11")
        A(f"v_lshlrev_b32 v10, 4, v18\nv_lshl_add_u32 v10, v20, 7, v10\nv_lshl_add_u32 v10, v28, 8, v10\nv_lshl_add_u32 v10, v27, 10, v10\nv_add_u32 v10, {sT0}, v10")
        A("v_and_b32 v28, 1, v18\nv_lshlrev_b32 v11, 5, v27\nv_lshl_add_u32 v11, v28, 4, v11")
        A("v_mov_b32 v29, 0xffff\nv_mov_b32 v30, 0xffff0000\nv_cmp_eq_u32 vcc, 1, v27\nv_cndmask_b32 v29, v29, v30, vcc")
        for c in range(4):
            A(f"v_cmp_eq_u32 vcc, {c}, v17\nv_cndmask_b32 v{2+c}, 0, v29, vcc")
        A(f"v_mov_b32 v30, 0\nv_mov_b32 v31, 0\nv_add_u32 v21, {L_SO}, v21")
        A.ds("ds_write_b64 v21, v[30:31]")
        A("v_lshrrev_b32 v83, 1, v0\nv_lshlrev_b32 v84, 4, v27")
        A("v_lshl_add_u32 v80, v83, 13, v84\nv_lshl_add_u32 v81, v83, 10, v84\nv_mul_u32_u24 v82, 2752, v83\nv_add_u32 v82, v82, v84")
        s.ln_tile_pre()
        A(f"s_mov_b64 exec, {mA}")
        for kk in range(4): A.vm(f"buffer_load_dwordx4 {q4(32+4*kk)}, v9, {rX}, 0 offen offset:{kk*64}")
        A("s_mov_b64 exec, -1")
        A(f"s_lshl_b32 {sT0}, {sW}, 20\ns_lshl_b32 {sT1}, {sG}, 10\ns_add_u32 {sT0}, {sT0}, {sT1}\ns_add_u32 {sT0}, {sT0}, {sT2}")
        A(f"s_lshl_b32 {sT1}, {sW}, 12")
        for j in range(4):
            A(f"s_add_u32 m0, {sT1}, {L_WQ + j*1024}")
            last = A.vm(f"buffer_load_dwordx4 v80, {rWQ}, {sT0} offen {s.wpol} lds")
            A(f"s_add_u32 {sT0}, {sT0}, {32*8192}")
        for f in range(4, 16): ids[("k", f)] = s.kv_load("k", f)
        s.ln_tile_addr(L_SO)
        A.wait_ds0()
        A("s_barrier")
        A.wait_vm(last)
        s.tr_reads(L_WQ, 4, 16)
        s.ln_tile_mma()
        skip = A.newlabel("L_skip")
        A(f"s_cmp_lg_u32 {sW}, 0\ns_cbranch_scc1 {skip}")
        A(f"s_mov_b64 exec, {m16}")
        s.ln_tile_final()
        A("v_lshlrev_b32 v74, 2, v0\nv_and_b32 v74, 28, v74\nv_bfe_u32 v75, v0, 3, 1\nv_lshl_add_u32 v74, v75, 8, v74")
        A("v_cvt_pk_bf16_f32 v64, v64, v65\nv_min_u32 v64, -2, v64")
        A.vm(f"buffer_store_dword v64, v74, {rWS}, {sQown} offen sc1", optional=True)
        A(f"s_getreg_b32 {sT0}, hwreg(HW_REG_XCC_ID)\ns_and_b32 {sT0}, {sT0}, 15\ns_mul_i32 {sT1}, {sT0}, 6\ns_add_u32 {sT1}, {sT1}, 8")
        A(f"s_lshl_b64 s[100:101], 1, {sT1}\ns_cmp_lt_u32 {sT0}, 8\ns_cselect_b64 s[100:101], s[100:101], 0\ns_or_b32 s100, s100, 1")
        A(f"v_mov_b32 v76, s100\nv_mov_b32 v77, s101\ns_lshl_b32 {sT0}, {sG}, 5\nv_mov_b32 v78, {sT0}")
        A("s_mov_b64 exec, 1")
        A.vm(f"buffer_atomic_add_x2 v[76:77], v78, {rDBG}, 0 offen sc1", optional=True)
        A("s_mov_b64 exec, -1")
        A.label(skip)
        A.ds_done = A.ds_issued
        s.stamp("q0pub")
        for f in range(16, 41): ids[("k", f)] = s.kv_load("k", f)
        A("v_lshlrev_b32 v70, 5, v0")
        A(f"s_mov_b64 exec, {m8}")
        chk = A.vm(f"buffer_load_dwordx2 v[72:73], v70, {rDBG}, 0 offen sc1")
        A("s_mov_b64 exec, -1")
        for f in range(41, 53): ids[("k", f)] = s.kv_load("k", f)
        A.wait_vm(chk)
        ok = A.newlabel("L_arr_ok"); lp = A.newlabel("L_arr")
        A(f"s_mov_b64 exec, {m8}")
        A.label(lp)
        A("v_and_b32 v74, 0xff, v72\nv_cmp_ne_u32 vcc, 32, v74")
        A(f"s_cbranch_vccz {ok}")
        A(f"s_sleep 4")
        A.vm(f"buffer_load_dwordx2 v[72:73], v70, {rDBG}, 0 offen sc1", optional=True)
        A(f"s_add_u32 {sCnt}, {sCnt}, 1\ns_cmp_lt_u32 {sCnt}, {LIMIT}\ns_waitcnt vmcnt(0)\ns_cbranch_scc1 {lp}")
        A.label(ok)
        A("s_mov_b64 exec, -1")
        A(f"v_readlane_b32 s100, v72, {sG}\nv_readlane_b32 s101, v73, {sG}")
        A(f"s_getreg_b32 {sT0}, hwreg(HW_REG_XCC_ID)\ns_and_b32 {sT0}, {sT0}, 15\ns_mul_i32 {sT1}, {sT0}, 6\ns_add_u32 {sT1}, {sT1}, 8")
        A(f"s_lshr_b64 s[100:101], s[100:101], {sT1}\ns_and_b32 s100, s100, 63\ns_cmp_eq_u32 s100, 32\ns_cselect_b32 {sMode}, 1, 0")
        A(f"s_cmp_lt_u32 {sT0}, 8\ns_cselect_b32 {sMode}, {sMode}, 0")
        if s.forceG: A(f"s_mov_b32 {sMode}, 0")
        A("v_and_b32 v62, 0xf0, v6")
        qid = A.vm(f"buffer_load_dwordx4 v[96:99], v62, {rWS}, {sQg} offen sc1")
        for f in range(53, 64): ids[("k", f)] = s.kv_load("k", f)
        A(f"s_lshl_b32 {sT2}, {sI}, 5")
        A(f"s_lshl_b32 {sT0}, {sG}, 19\ns_lshl_b32 {sT1}, {sW}, 17\ns_add_u32 {sT0}, {sT0}, {sT1}\ns_add_u32 {sT0}, {sT0}, {sT2}")
        A(f"s_lshl_b32 {sT1}, {sW}, 12")
        for j in range(4):
            A(f"s_add_u32 m0, {sT1}, {L_WO + j*1024}")
            A.vm(f"buffer_load_dwordx4 v81, {rWO}, {sT0} offen {s.wpol} lds")
            A(f"s_add_u32 {sT0}, {sT0}, {32*1024}")
        A(f"s_mul_i32 {sT0}, {sW}, {128*2752}\ns_lshl_b32 s100, {sTau}, 5\ns_add_u32 {sT0}, {sT0}, s100")
        for j in range(4):
            A(f"s_add_u32 m0, {sT1}, {L_W1 + j*1024}")
            A.vm(f"buffer_load_dwordx4 v82, {rW1}, {sT0} offen {s.wpol} lds")
            A(f"s_add_u32 {sT0}, {sT0}, {32*2752}")
        A(f"s_lshl_b32 {sT0}, {sW}, 16\ns_add_u32 {sT0}, {sT0}, {sT2}\nv_add_u32 v81, {sT0}, v81\nv_add_u32 v82, 0x8000, v81")
        A(f"s_lshl_b32 {sT1}, {sW}, 11")
        for j in range(2):
            A(f"s_add_u32 m0, {sT1}, {L_W2 + j*1024}")
            A.vm(f"buffer_load_dwordx4 v{81+j}, {rW2}, 0 offen {s.wpol} lds")
        class P1: pass
        p1 = P1(); p1.ids = ids; p1.next = 0
        def issue_upto(n):
            while p1.next <= min(n, 63):
                ids[("v", p1.next)] = s.kv_load("v", p1.next); p1.next += 1
        p1.issue_upto = issue_upto
        p1.issue_more = lambda k: issue_upto(p1.next + k - 1)
        issue_upto(3)
        for k in range(16, 32): A(f"v_mov_b32 v{k}, 0")
        A.wait_vm(qid)
        qreg = 96
        ok = A.newlabel("L_q_ok"); lp = A.newlabel("L_q")
        A.label(lp)
        A(f"v_max_u32 v63, v{qreg}, v{qreg+1}\nv_max3_u32 v63, v63, v{qreg+2}, v{qreg+3}\nv_cmp_eq_u32 vcc, -1, v63")
        A(f"s_cbranch_vccz {ok}")
        A.vm(f"buffer_load_dwordx4 {q4(qreg)}, v62, {rWS}, {sQg} offen sc1", optional=True)
        A(f"s_add_u32 {sCnt}, {sCnt}, 1\ns_cmp_lt_u32 {sCnt}, {LIMIT}\ns_waitcnt vmcnt(0)\ns_cbranch_scc1 {lp}")
        A.label(ok)
        A(f"s_sub_u32 {sQown}, {sQown}, {QB0 - QB}\ns_sub_u32 {sQg}, {sQg}, {QB0 - QB}")
        s.stamp("q0got")
        s.qreg = qreg
        s.att_prefetchK()
        s.attention(p1)
        A.wait_vm0()
        if s.padchain: s.spin_until(s.padchain)
        A.label("L_chain")
        s.stamp("pvdone")
        A(f"v_readlane_b32 {sT0}, v61, 63")
        A("v_lshrrev_b32 v24, 5, v0\nv_bfe_u32 v25, v0, 4, 1\nv_bfe_u32 v26, v0, 2, 2\nv_and_b32 v27, 1, v0")
        A(f"s_lshl_b32 {sT1}, {sW}, 10\ns_add_u32 {sT1}, {sT1}, {L_SO}")
        A(f"v_lshlrev_b32 v24, 9, v24\nv_lshl_add_u32 v24, v25, 7, v24\nv_lshl_add_u32 v24, v26, 5, v24\nv_lshl_add_u32 v24, v27, 4, v24\nv_add_u32 v24, {sT1}, v24")
        A(f"v_mov_b32 v63, {sT0}")
        A(f"s_lshl_b32 {sT1}, {sW}, 3\ns_add_u32 {sT1}, {sT1}, {L_ST}\nv_mov_b32 v25, {sT1}")
        A(f"s_mov_b64 exec, {mOV}")
        A.ds("ds_write_b128 v24, v[48:51]")
        A.ds("ds_write_b128 v24, v[52:55] offset:256")
        A("s_mov_b64 exec, 1")
        A.ds("ds_write_b64 v25, v[62:63]")
        A("s_mov_b64 exec, -1")
        A("v_lshrrev_b32 v28, 5, v0\nv_bfe_u32 v29, v0, 4, 1\nv_and_b32 v30, 3, v0\nv_bfe_u32 v31, v0, 2, 2")
        A(f"v_lshlrev_b32 v28, 8, v28\nv_lshl_add_u32 v28, v29, 7, v28\nv_lshl_add_u32 v28, v30, 5, v28\nv_lshl_add_u32 v28, v31, 2, v28\nv_add_u32 v28, {L_SO}, v28")
        A("v_add_u32 v29, 1024, v28\nv_add_u32 v30, 2048, v28\nv_add_u32 v31, 3072, v28")
        A(f"v_mov_b32 v26, {L_ST}\nv_lshlrev_b32 v27, 2, v0")
        A.wait_ds0()
        A("s_barrier")
        s2 = "L_S2"
        A(f"s_cmp_lg_u32 {sW}, 0\ns_cbranch_scc1 {s2}")
        A.ds("ds_read_b128 v[64:67], v26")
        st2 = A.ds("ds_read_b128 v[68:71], v26 offset:16")
        for w in range(4):
            A.ds(f"ds_read2_b32 {q2(72+4*w)}, v{28+w} offset0:0 offset1:4")
            A.ds(f"ds_read2_b32 {q2(74+4*w)}, v{28+w} offset0:128 offset1:132")
        A.wait_ds(st2)
        A("v_max3_f32 v88, v64, v66, v68\nv_max_f32 v88, v88, v70")
        for w in range(4): A(f"v_sub_f32 v{64+2*w}, v{64+2*w}, v88")
        for w in range(4): A(f"v_exp_f32 v{64+2*w}, v{64+2*w}")
        A("v_mul_f32 v89, v64, v65")
        for w in range(1, 4): A(f"v_fmac_f32 v89, v{64+2*w}, v{65+2*w}")
        A.wait_ds0()
        for w in range(4): A(f"v_pk_add_f32 {q2(72+4*w)}, {q2(72+4*w)}, {q2(74+4*w)}")
        A("v_pk_mul_f32 v[90:91], v[72:73], v[64:65] op_sel_hi:[1,0]")
        for w in range(1, 4): A(f"v_pk_fma_f32 v[90:91], {q2(72+4*w)}, {q2(64+2*w)}, v[90:91] op_sel_hi:[1,0,1]")
        A("v_cvt_pk_bf16_f32 v90, v90, v91\nv_min_u32 v90, -2, v90")
        s.publish(f"buffer_store_dword v90, v27, {rWS}, {sOown} offen {{pol}}")
        A("v_min_u32 v88, -2, v88\nv_min_u32 v89, -2, v89\nv_mov_b32 v27, 0")
        A("s_mov_b64 exec, 1")
        s.publish(f"buffer_store_dwordx2 v[88:89], v27, {rWS}, {sSTown} offen {{pol}}")
        A("s_mov_b64 exec, -1")
        A.label(s2)
        A.ds_done = A.ds_issued
        s.stamp("opub")
        s.tr_reads(L_WO, 4, 16)
        A("v_xor_b32 v58, 16, v11")
        A(f"v_and_b32 v59, 15, v0\nv_lshlrev_b32 v59, 2, v59\nv_add_u32 v59, {sA2}, v59")
        A(f"v_lshlrev_b32 v60, 4, v0\nv_add_u32 v61, {sA2}, v60")
        lab = s.poll_head()
        A(f"buffer_load_dwordx4 v[32:35], v10, {rWS}, {sOg} offen sc1")
        A(f"buffer_load_dwordx4 v[36:39], v10, {rWS}, {sOg} offen offset:64 sc1")
        A(f"buffer_load_dwordx4 v[40:43], v11, {rWS}, {sSTg} offen sc1")
        A(f"buffer_load_dwordx4 v[44:47], v58, {rWS}, {sSTg} offen sc1")
        s.poll_budget()
        A.wait_vm0()
        s.poll_check(lab, range(32, 48), 56)
        s.stamp("ogot")
        A.wait_ds0()
        A("v_mfma_f32_16x16x32_bf16 v[48:51], v[32:35], v[16:19], 0")
        A("v_max3_f32 v56, v40, v42, v44\nv_max_f32 v56, v56, v46")
        A("v_mfma_f32_16x16x32_bf16 v[52:55], v[32:35], v[24:27], 0")
        for k in (40, 42, 44, 46): A(f"v_sub_f32 v{k}, v{k}, v56")
        A("v_mfma_f32_16x16x32_bf16 v[48:51], v[36:39], v[20:23], v[48:51]")
        A("v_exp_f32 v40, v40\nv_exp_f32 v42, v42")
        A("v_mfma_f32_16x16x32_bf16 v[52:55], v[36:39], v[28:31], v[52:55]")
        A("v_exp_f32 v44, v44\nv_exp_f32 v46, v46")
        A("v_mul_f32 v57, v40, v41\nv_fmac_f32 v57, v42, v43\nv_fmac_f32 v57, v44, v45\nv_fmac_f32 v57, v46, v47")
        A("v_rcp_f32 v57, v57")
        A("v_mul_f32 v40, v40, v57\nv_mul_f32 v42, v42, v57")
        for (o, qp, c) in ((62, "[0,0,2,2]", 0), (63, "[1,1,3,3]", 1)):
            A(f"v_mul_f32_dpp v{o}, v40, v{48+c} quad_perm:{qp} row_mask:0x3 bank_mask:0xf")
            A(f"v_mul_f32_dpp v{o}, v40, v{52+c} quad_perm:{qp} row_mask:0xc bank_mask:0xf")
        for (o, qp, c) in ((62, "[0,0,2,2]", 2), (63, "[1,1,3,3]", 3)):
            A(f"v_fmac_f32_dpp v{o}, v42, v{48+c} quad_perm:{qp} row_mask:0x3 bank_mask:0xf")
            A(f"v_fmac_f32_dpp v{o}, v42, v{52+c} quad_perm:{qp} row_mask:0xc bank_mask:0xf")
        A.ds("ds_add_f32 v59, v62")
        A.ds("ds_add_f32 v59, v63 offset:64")
        A.wait_ds0()
        A("s_barrier")
        s4 = "L_S4"
        A(f"s_cmp_lg_u32 {sW}, 0\ns_cbranch_scc1 {s4}")
        A(f"s_mov_b64 exec, {m8}")
        A.ds("ds_read_b128 v[64:67], v61")
        A.wait_ds0()
        for k in range(64, 68): A(f"v_min_u32 v{k}, -2, v{k}")
        A(f"buffer_store_dwordx4 v[64:67], v60, {rWS}, {sAPown} offen sc1")
        s.stamp("appub")
        def xreduce(sg, addb2):
            A(f"s_mov_b64 exec, {m16}")
            A("v_lshlrev_b32 v34, 3, v0")
            A("v_lshlrev_b32 v32, 16, v13\nv_and_b32 v33, 0xffff0000, v13")
            if addb2:
                A("v_lshlrev_b32 v36, 16, v15\nv_and_b32 v37, 0xffff0000, v15")
                A("v_pk_add_f32 v[32:33], v[32:33], v[36:37]")
            A("v_lshlrev_b32 v35, 2, v0\nv_and_b32 v35, 28, v35\nv_bfe_u32 v36, v0, 3, 1\nv_lshl_add_u32 v35, v36, 10, v35")
            lab = s.poll_head()
            for j in range(8): A(f"buffer_load_dwordx2 {q2(16+2*j)}, v34, {rWS}, {sg} offen offset:{j*128} sc1")
            s.poll_budget()
            A.wait_vm0()
            s.poll_check(lab, range(16, 32), 38)
            for j in range(4): A(f"v_pk_add_f32 {q2(16+4*j)}, {q2(16+4*j)}, {q2(18+4*j)}")
            A("v_pk_add_f32 v[16:17], v[16:17], v[20:21]\nv_pk_add_f32 v[24:25], v[24:25], v[28:29]")
            A("v_pk_add_f32 v[16:17], v[16:17], v[24:25]\nv_pk_add_f32 v[16:17], v[16:17], v[32:33]")
            A("v_cvt_pk_bf16_f32 v13, v16, v17")
        xreduce(sAPg, False)
        A("v_min_u32 v16, -2, v13")
        s.publish(f"buffer_store_dword v16, v35, {rWS}, {sX1own} offen {{pol}}")
        A("s_mov_b64 exec, -1")
        s.stamp("x1pub")
        A.label(s4)
        A.ds_done = A.ds_issued
        s5 = "L_S5"
        A(f"s_cmp_ge_u32 {sI}, 11\ns_cbranch_scc1 {s5}")
        def ln_stage(tile, sg, acc):
            s.ln_tile_pre(tile)
            s.ln_tile_addr(acc)
            A(f"s_mov_b64 exec, {mA}")
            lab = s.poll_head()
            for kk in range(4): A(f"buffer_load_dwordx4 {q4(32+4*kk)}, v9, {rWS}, {sg} offen offset:{kk*64} sc1")
            s.poll_budget()
            A.wait_vm0()
            s.poll_check(lab, range(32, 48), 63)
            A("s_mov_b64 exec, -1")
            s.ln_tile_mma()
        ln_stage(L_W1, sX1g, sA4)
        A(f"s_cmp_lg_u32 {sW}, 0\ns_cbranch_scc1 L_S7")
        A(f"s_mov_b64 exec, {m16}")
        A("v_lshlrev_b32 v76, 16, v14\nv_and_b32 v77, 0xffff0000, v14")
        A("v_lshlrev_b32 v74, 2, v0\nv_and_b32 v74, 28, v74\nv_bfe_u32 v75, v0, 3, 1\nv_lshl_add_u32 v74, v75, 9, v74")
        A(f"s_cmp_lt_u32 {sTau}, 86\ns_cselect_b32 {sT0}, -1, 0")
        s.ln_tile_final()
        A("v_pk_add_f32 v[64:65], v[64:65], v[76:77]")
        k1 = -2.0 * math.sqrt(2.0 / math.pi) * math.log2(math.e)
        A(f"v_mov_b32 v78, {f2u(k1 * 0.044715)}\nv_mov_b32 v80, {f2u(k1)}")
        A("v_pk_mul_f32 v[66:67], v[64:65], v[64:65]")
        A("v_pk_fma_f32 v[66:67], v[66:67], v[78:79], v[80:81] op_sel_hi:[1,0,0]")
        A("v_pk_mul_f32 v[66:67], v[66:67], v[64:65]")
        A("v_exp_f32 v66, v66\nv_exp_f32 v67, v67")
        A("v_add_f32 v66, 1.0, v66\nv_add_f32 v67, 1.0, v67")
        A("v_rcp_f32 v66, v66\nv_rcp_f32 v67, v67")
        A("v_pk_mul_f32 v[64:65], v[64:65], v[66:67]")
        A(f"v_cvt_pk_bf16_f32 v64, v64, v65\nv_min_u32 v64, -2, v64\nv_and_b32 v64, {sT0}, v64")
        s.publish(f"buffer_store_dword v64, v74, {rWS}, {sHown} offen {{pol}}")
        A("s_mov_b64 exec, -1")
        s.stamp("hpub")
        A.label(s5)
        A.ds_done = A.ds_issued
        A(f"s_cmp_lg_u32 {sW}, 0\ns_cbranch_scc1 L_S7")
        s.tr_reads(L_W2, 6, 16)
        for k in range(60, 64): A(f"v_mov_b32 v{k}, 0")
        A("v_and_b32 v70, 1, v0\nv_lshrrev_b32 v71, 4, v0\nv_lshlrev_b32 v71, 4, v71\nv_lshl_add_u32 v68, v70, 9, v71\nv_lshl_add_u32 v69, v70, 6, v71")
        lab = s.poll_head()
        A(f"s_mov_b64 exec, {mAlo}")
        A(f"buffer_load_dwordx4 v[60:63], v68, {rWS}, {sHg} offen offset:320 sc1")
        A(f"s_mov_b64 exec, {mA}")
        for kk in range(5): A(f"buffer_load_dwordx4 {q4(40+4*kk)}, v68, {rWS}, {sHg} offen offset:{kk*64} sc1")
        s.poll_budget()
        A.wait_vm0()
        s.poll_check(lab, range(40, 64), 72)
        A("s_mov_b64 exec, -1")
        A.wait_ds0()
        for kk in range(6):
            d = 64 if kk % 2 == 0 else 72
            A(f"v_mfma_f32_16x16x32_bf16 {q4(d)}, {q4(16+4*kk)}, {q4(40+4*kk)}, {'0' if kk < 2 else q4(d)}")
        A("v_pk_add_f32 v[64:65], v[64:65], v[72:73]\nv_pk_add_f32 v[66:67], v[66:67], v[74:75]")
        for k in range(64, 68): A(f"v_min_u32 v{k}, -2, v{k}")
        A(f"s_mov_b64 exec, {mA}")
        A(f"buffer_store_dwordx4 v[64:67], v69, {rWS}, {sYPown} offen sc1")
        s.stamp("yppub")
        fin = "L_fin"
        A(f"s_cmp_eq_u32 {sLayer}, 0\ns_cselect_b32 {sT0}, 0, {sG}\ns_cmp_lg_u32 {sT0}, 0\ns_cbranch_scc1 L_done")
        xreduce(sYPg, True)
        A(f"s_cmp_lg_u32 {sLayer}, 0\ns_cbranch_scc1 {fin}")
        A("v_min_u32 v16, -2, v13")
        s.publish(f"buffer_store_dword v16, v35, {rWS}, {sX2own} offen {{pol}}")
        A("s_mov_b64 exec, -1")
        s.stamp("x2pub")
        A.label("L_S7")
        A.ds_done = A.ds_issued
        A(f"s_cmp_lg_u32 {sLayer}, 0\ns_cbranch_scc1 L_done")
        ln_stage(L_WQ, sX2g, ACC7)
        s8 = "L_S8"
        A(f"s_cmp_lg_u32 {sW}, 0\ns_cbranch_scc1 {s8}")
        A(f"s_mov_b64 exec, {m16}")
        A("v_lshlrev_b32 v74, 2, v0\nv_and_b32 v74, 28, v74\nv_bfe_u32 v75, v0, 3, 1\nv_lshl_add_u32 v74, v75, 8, v74")
        s.ln_tile_final()
        A("v_cvt_pk_bf16_f32 v64, v64, v65\nv_min_u32 v64, -2, v64")
        s.publish(f"buffer_store_dword v64, v74, {rWS}, {sQown} offen {{pol}}")
        A("s_mov_b64 exec, -1")
        s.stamp("qpub")
        A.label(s8)
        A.ds_done = A.ds_issued
        s.att_prefetchK()
        for k in range(16, 32): A(f"v_mov_b32 v{k}, 0")
        A("v_and_b32 v62, 0xf0, v6")
        lab = s.poll_head()
        A(f"buffer_load_dwordx4 {q4(qreg)}, v62, {rWS}, {sQg} offen sc1")
        s.poll_budget()
        A.wait_vm0()
        s.poll_check(lab, range(qreg, qreg + 4), 63)
        s.stamp("qgot")
        A(f"s_add_u32 s16, s16, {LSTRIDE}\ns_addc_u32 s17, s17, 0\ns_sub_u32 s18, s18, {LSTRIDE}")
        A(f"s_mov_b32 {sLayer}, 1\ns_mov_b32 {sA2}, {ACC2[1]}\ns_mov_b32 {sA4}, {ACC4[1]}")
        s.attention(None)
        A("s_branch L_chain")
        A.label(fin)
        A(f"s_lshl_b32 {sT0}, {sI}, 5")
        A(f"buffer_store_dword v13, v35, {rOUT}, {sT0} offen")
        A.label("L_done")
        if s.padend: s.spin_until(s.padend)
        if s.padcyc:
            A("s_memtime s[98:99]\ns_waitcnt lgkmcnt(0)\ns_mov_b32 s97, s98")
            s.spin_until(s.padcyc, "s_memtime")
        if s.ts:
            A("s_mov_b64 exec, -1")
            s.stamp("end")
            A(f"s_mul_i32 {sT0}, {sLayer}, {LSTRIDE}\ns_lshl_b32 {sT1}, s2, 2\ns_add_u32 {sT1}, {sT1}, {sW}\ns_lshl_b32 {sT1}, {sT1}, 8")
            A(f"s_add_u32 {sT1}, {sT1}, {TS_OFF}\ns_sub_u32 {sT1}, {sT1}, {sT0}\nv_lshlrev_b32 v16, 2, v0")
            A(f"buffer_store_dword v12, v16, {rWS}, {sT1} offen")
        A("L_end:\ns_endpgm")
        for t in s.tail: A.raw(t)
        A.raw('.section .rodata,"a"\n.p2align 6')
        A.raw(f".amdhsa_kernel {NAME}_kernel")
        A.raw("  .amdhsa_next_free_vgpr 512\n  .amdhsa_next_free_sgpr 102\n  .amdhsa_accum_offset 256\n  .amdhsa_group_segment_fixed_size 0")
        A.raw("  .amdhsa_kernarg_size 104\n  .amdhsa_user_sgpr_count 2\n  .amdhsa_user_sgpr_kernarg_segment_ptr 1\n  .amdhsa_system_sgpr_workgroup_id_x 1")
        A.raw("  .amdhsa_float_denorm_mode_32 3\n.end_amdhsa_kernel")
        return A.text()

if __name__ == "__main__":
    out = sys.argv[1] if len(sys.argv) > 1 else f"cdna_kernels/{NAME}.s"
    kw = {}
    for a in sys.argv[2:]:
        k, v = a.split("=")
        kw[k] = int(v) if v.lstrip("-").isdigit() else v
    g = Gen(**kw)
    open(out, "w").write(g.build())
    if kw.get("ts"): open(out + ".names", "w").write(" ".join(g.tsnames))
    print("wrote", out, "nops", g.A.nops)
```

```python
import sys, math, struct
from asmlib import Asm, parse

NAME = "interleave_layers__gqa_block_cached__dense_activation_gelu__decode"
HEADER = open("cdna_kernels/%s.s.ref" % NAME).read().split("; Override launch")[0]

L_WQ, L_WO, L_W1, L_W2 = 0, 16384, 32768, 49152
L_ACC = 55296
L_SO = 57344
L_KV = 61440
NLDS = 25
RED2 = L_ACC
RED4 = L_ACC + 512
L_ST = L_ACC + 1536
L_RACE = L_ACC + 1600
OB, AP, YP, ST, HB, X1, X2, QB = 0x0, 0x10000, 0x20000, 0x30000, 0x32000, 0x34000, 0x38000, 0x3c000
LSTRIDE = 0x40000
QB0 = 0x80000
WS_BYTES = 0x84000
TS_OFF = 0x100000

sW, sG, sI, sHH, sB = "s3", "s4", "s5", "s6", "s7"
rK, rV, rWS, rX, rWQ, rWO, rW1, rW2, rB1, rB2, rOUT, rDBG = [f"s[{k}:{k+3}]" for k in range(8, 56, 4)]
mA, mAlo, m16, m8, sAlive, mOV = [f"s[{k}:{k+1}]" for k in range(56, 68, 2)]
sCnt, sMode, sLayer, sRot, sKVl, sSK, sSV, sT0, sT1, sT2 = [f"s{k}" for k in range(68, 78)]
sOown, sSTown, sOg, sSTg, sAPown, sAPg, sX1own, sX1g, sHown, sHg, sYPown, sYPg, sX2own, sX2g, sQown, sQg = [f"s{k}" for k in range(78, 94)]
sCopy, sT3, sTau = "s94", "s95", "s96"
mR8 = "s[0:1]"
sTS = "s[98:99]"
LIMIT = 100000
QREG = 56

C_SCALE = math.log2(math.e) / math.sqrt(128.0)
def f2u(x): return "0x%08x" % struct.unpack("<I", struct.pack("<f", x))[0]

def kloc(f):
    return ("l", f) if f < 12 else ("r", f"a[{4*(f-12)}:{4*(f-12)+3}]")
def vloc(f):
    if f < 13: return ("l", 12 + f)
    if f < 25: return ("r", f"a[{208+4*(f-13)}:{208+4*(f-13)+3}]")
    return ("r", f"v[{100+4*(f-25)}:{100+4*(f-25)+3}]")
def q4(b): return f"v[{b}:{b+3}]"
def q2(b): return f"v[{b}:{b+1}]"
FULL = "row_mask:0xf bank_mask:0xf"

class Gen:
    def __init__(s, kvpol="nt", wpol="", ts=False, lag=16, forceG=False, padend=0, padchain=0, padcyc=0,
                 dL=2, dG=3, gapL=1, gapG=2, race=1, copy=0, cpf=6, bar=1, dQ=1, cpf0=1):
        s.A = Asm(); s.kvpol = kvpol; s.wpol = wpol; s.ts = ts; s.lag = lag; s.forceG = forceG
        s.padend = padend; s.padchain = padchain; s.padcyc = padcyc
        s.dL = dL; s.dG = dG; s.gapL = gapL; s.gapG = gapG; s.race = race; s.copy = copy; s.cpf = cpf; s.bar = bar; s.dQ = dQ; s.cpf0 = cpf0
        s.tail = []
        s.hook = None
        s.nts = 0; s.inchain = False; s.ts0 = 0
    def stamp(s, name):
        if not s.ts: return
        A = s.A
        k = s.nts; s.nts += 1
        s.tsnames = getattr(s, "tsnames", []) + [name]
        if s.inchain:
            j = k - s.ts0
            assert j < 14
            A(f"s_memrealtime s[{20+2*j}:{21+2*j}]")
            return
        A(f"s_memrealtime {sTS}")
        A(f"s_lshl_b32 s97, {sLayer}, 5\ns_add_u32 m0, s97, {k}")
        A("s_waitcnt lgkmcnt(0)")
        A.ds_done = A.ds_issued
        A(f"v_writelane_b32 v12, s98, m0")
    def ts_flush(s, zero_only=False):
        if not s.ts: return
        A = s.A
        if not zero_only:
            A("s_waitcnt lgkmcnt(0)")
            A.ds_done = A.ds_issued
            A(f"s_lshl_b32 s97, {sLayer}, 5")
            for j in range(14):
                A(f"s_add_u32 m0, s97, {s.ts0 + j}\nv_writelane_b32 v12, s{20+2*j}, m0")
        for j in range(14): A(f"s_mov_b32 s{20+2*j}, 0")
    def spin_until(s, n, clock="s_memrealtime", base="s97"):
        A = s.A; l = A.newlabel("L_spin")
        A.label(l)
        A(f"{clock} s[98:99]\ns_waitcnt lgkmcnt(0)\ns_sub_u32 s98, s98, {base}\ns_cmp_lt_u32 s98, {n}\ns_cbranch_scc1 {l}")
    def mode_test(s):
        s.A(f"s_cmp_eq_u32 {sMode}, 0")
    def publish(s, stores, tested=False):
        A = s.A
        if isinstance(stores, str): stores = [stores]
        slow = A.newlabel("L_slow"); back = A.newlabel("L_back")
        if not tested: s.mode_test()
        A(f"s_cbranch_scc1 {slow}")
        for t in stores: A(t.format(pol=""))
        A.label(back)
        s.tail.append(f"{slow}:\n" + "".join("    " + l + "\n" for t in stores for l in t.format(pol="sc1").split("\n")) + f"    s_branch {back}")
    def poll(s, issue, nld, regs, tmp, depth, gap):
        A = s.A
        for p in range(depth - 1):
            issue()
            if gap: A(f"s_sleep {gap}")
        lab = A.newlabel("L_poll"); A.label(lab)
        issue()
        A(f"s_add_u32 {sCnt}, {sCnt}, 1")
        A(f"s_cmp_lt_u32 {sCnt}, {LIMIT}")
        A(f"s_cselect_b64 {sAlive}, -1, 0")
        A(f"s_waitcnt vmcnt({(depth-1)*nld})")
        regs = list(regs)
        if len(regs) % 2 == 0:
            A(f"v_max_u32 v{tmp}, v{regs[0]}, v{regs[1]}"); rest = regs[2:]
        else:
            A(f"v_max3_u32 v{tmp}, v{regs[0]}, v{regs[1]}, v{regs[2]}"); rest = regs[3:]
        for k in range(0, len(rest), 2):
            A(f"v_max3_u32 v{tmp}, v{tmp}, v{rest[k]}, v{rest[k+1]}")
        A(f"v_cmp_eq_u32 vcc, -1, v{tmp}")
        A(f"s_and_b64 vcc, vcc, {sAlive}")
        A(f"s_cbranch_scc1 {lab}")
    def drain(s):
        s.A("s_waitcnt vmcnt(0)")
    def tr_reads(s, tile, nsteps, base, addr="v8", step=256):
        for kk in range(nsteps):
            for hf in range(2):
                s.A.ds(f"ds_read_b64_tr_b16 {q2(base + 4*kk + 2*hf)}, {addr} offset:{tile + kk*step + hf*128}")
    def kv_load(s, kind, f):
        A = s.A
        if kind == "k":
            u, rem = f // 4, (f % 4) * 1024; loc = kloc(f); srd, vo, so = rK, "v6", sSK
        else:
            u, rem = f // 4, ((f % 4) >> 1) * 512 + (f & 1) * 128; loc = vloc(f); srd, vo, so = rV, "v7", sSV
        m0 = None
        if loc[0] == "l":
            m0 = loc[1]*1024 - rem
            if s.m0cur != m0: A(f"s_add_u32 m0, {sKVl}, {m0}")
        if f % 4 == 0:
            A(f"s_add_u32 {so}, {sRot}, {u*4096}")
            A(f"s_and_b32 {so}, {so}, 0xffff")
        if loc[0] == "r":
            return A.vm(f"buffer_load_dwordx4 {loc[1]}, {vo}, {srd}, {so} offen offset:{rem} {s.kvpol}")
        s.m0cur = m0 if not s.ts else None
        return A.vm(f"buffer_load_dwordx4 {vo}, {srd}, {so} offen offset:{rem} {s.kvpol} lds")
    def ln_pre(s, tile, red, sg=None):
        A = s.A
        if tile is not None: s.tr_reads(tile, 4, 16)
        A("v_bfe_u32 v84, v0, 2, 2")
        A("v_cmp_eq_u32 vcc, 2, v84")
        A("v_mov_b32 v85, 0x3f803f80")
        A(f"s_mul_i32 {sT0}, {sW}, 192\ns_add_u32 {sT0}, {sT0}, {red}")
        A("v_cndmask_b32 v32, 0, v85, vcc")
        for k in range(33, 36): A(f"v_mov_b32 v{k}, v32")
        if sg is not None:
            A(f"s_mov_b64 exec, {mR8}")
            A(f"buffer_load_dwordx4 v[32:35], v9, {rWS}, {sg} offen sc1")
            A("s_mov_b64 exec, -1")
        A(f"v_lshlrev_b32 v84, 2, v0\nv_add_u32 v84, {sT0}, v84")
        A(f"s_lshl_b32 {sT0}, {sW}, 4\ns_add_u32 {sT0}, {sT0}, {red + 768}")
        A("v_bfe_u32 v85, v0, 2, 1\nv_lshrrev_b32 v86, 5, v0\nv_lshlrev_b32 v85, 3, v85\nv_lshl_add_u32 v85, v86, 2, v85")
        A(f"v_add_u32 v85, {sT0}, v85")
        A(f"v_lshlrev_b32 v86, 3, v0\nv_and_b32 v87, 56, v86\nv_add_u32 v86, {red}, v86\nv_add_u32 v87, {red + 128}, v87")
        A(f"v_and_b32 v88, 8, v0\nv_add_u32 v88, {red + 768}, v88")
    def ln_mma(s):
        A = s.A
        A.wait_ds0()
        A("v_mfma_f32_16x16x32_bf16 v[52:55], v[32:35], v[32:35], 0")
        for c in range(4):
            A(f"v_mfma_f32_16x16x32_bf16 {q4(36+4*c)}, v[32:35], {q4(16+4*c)}, 0")
        A("s_mov_b32 s100, 0x00100001\ns_mov_b32 s101, 0x11") if False else None
        A(f"v_mov_b32_dpp v56, v52 quad_perm:[0,0,0,0] {FULL}")
        for c in range(1, 4): A(f"v_add_f32_dpp v56, v{52+c}, v56 quad_perm:[{c},{c},{c},{c}] {FULL}")
        A("s_mov_b32 exec_lo, 0x00100001\ns_mov_b32 exec_hi, 0x11")
        A.ds("ds_write_b32 v85, v56")
        A("s_mov_b32 exec_lo, -1\ns_mov_b32 exec_hi, 0xffff")
        A("v_add_f32 v36, v36, v41\nv_add_f32 v46, v46, v51\nv_add_f32 v36, v36, v46")
        A.ds("ds_write_b32 v84, v36")
        A("s_mov_b64 exec, -1")
        A.wait_ds0()
        A("s_barrier")
    def ln_final(s):
        A = s.A
        A.ds("ds_read2_b64 v[72:75], v88 offset0:0 offset1:2")
        st = A.ds("ds_read2_b64 v[76:79], v88 offset0:4 offset1:6")
        A.ds("ds_read2_b64 v[64:67], v86 offset0:0 offset1:24")
        A.ds("ds_read2_b64 v[68:71], v86 offset0:48 offset1:72")
        A.ds("ds_read2_b64 v[80:83], v87 offset0:0 offset1:24")
        A.ds("ds_read2_b64 v[84:87], v87 offset0:48 offset1:72")
        A.wait_ds(st)
        A("v_pk_add_f32 v[72:73], v[72:73], v[74:75]\nv_pk_add_f32 v[76:77], v[76:77], v[78:79]")
        A("v_pk_add_f32 v[72:73], v[72:73], v[76:77]")
        A(f"v_mul_f32 v74, {f2u(1/512)}, v73")
        A(f"v_mul_f32 v72, {f2u(1/512)}, v72")
        A("v_fma_f32 v72, -v74, v74, v72")
        A("v_max_f32 v72, 0, v72")
        A(f"v_add_f32 v72, {f2u(1e-5)}, v72")
        A("v_rsq_f32 v76, v72")
        A.wait_ds0()
        A("v_pk_add_f32 v[64:65], v[64:65], v[66:67]\nv_pk_add_f32 v[68:69], v[68:69], v[70:71]")
        A("v_pk_add_f32 v[80:81], v[80:81], v[82:83]\nv_pk_add_f32 v[84:85], v[84:85], v[86:87]")
        A("v_pk_add_f32 v[64:65], v[64:65], v[68:69]\nv_pk_add_f32 v[80:81], v[80:81], v[84:85]")
        A("v_pk_fma_f32 v[64:65], v[80:81], v[74:75], v[64:65] op_sel_hi:[1,0,1] neg_lo:[1,0,0] neg_hi:[1,0,0]")
        A("v_pk_mul_f32 v[64:65], v[64:65], v[76:77] op_sel_hi:[1,0]")
    def ln_poll(s, sg):
        A = s.A
        if s.bar: A("s_barrier")
        A(f"s_mov_b64 exec, {mR8}")
        def issue(): A(f"buffer_load_dwordx4 v[32:35], v9, {rWS}, {sg} offen sc1")
        s.poll(issue, 1, range(32, 36), 63, s.dL, s.gapL)
        A("s_mov_b64 exec, -1")
    def pair_off(s, dst, tmp, shift):
        s.A(f"v_lshlrev_b32 v{dst}, 2, v0\nv_and_b32 v{dst}, 28, v{dst}\nv_bfe_u32 v{tmp}, v0, 3, 1\nv_lshl_add_u32 v{dst}, v{tmp}, {shift}, v{dst}")
    def att_prefetchK(s):
        A = s.A
        s.stg = {}
        for f in range(8):
            s.stg[("k", f)] = (64 + 4*f, A.ds(f"ds_read_b128 {q4(64+4*f)}, v1 offset:{f*1024}"))
        for k in range(16, 32): A(f"v_mov_b32 v{k}, 0")
        A(f"v_mov_b32 v63, {f2u(C_SCALE)}")
    def attention(s, p1=None):
        A = s.A
        stg = s.stg
        free = [96]
        def ldsread(kind, f, slotreg):
            slot = kloc(f)[1] if kind == "k" else vloc(f)[1]
            if p1: A.wait_vm(p1.ids[(kind, f)])
            stg[(kind, f)] = (slotreg, A.ds(f"ds_read_b128 {q4(slotreg)}, v1 offset:{slot*1024}"))
        def operand(kind, f, ahead=0):
            loc = kloc(f) if kind == "k" else vloc(f)
            if loc[0] == "r":
                if p1: A.wait_vm(p1.ids[(kind, f)])
                return loc[1]
            reg, did = stg[(kind, f)]
            if did >= A.ds_done:
                last = max([d for (k2, f2), (r2, d) in stg.items() if k2 == kind and f <= f2 <= f + ahead] )
                A.wait_ds(last)
            return q4(reg)
        def build_aq(t):
            for k in range(4):
                A(f"v_mov_b32_dpp v{16+4*t+k}, v{QREG+k} quad_perm:[0,1,2,3] row_mask:0xf bank_mask:{1<<t:#x}")
        order = [0, 1, 3, 4, 5, 2] + list(range(6, 16))
        D = lambda n: 48 + 4 * (n % 3)
        vq = list(range(13))
        def dppsum(n, c):
            u = order[n]
            if c == 0: A(f"v_mul_f32_dpp v{32+u}, v{D(n)}, v63 quad_perm:[0,0,0,0] {FULL}")
            else: A(f"v_fmac_f32_dpp v{32+u}, v{D(n)+c}, v63 quad_perm:[{c},{c},{c},{c}] {FULL}")
        build_aq(0); build_aq(1)
        extra = []
        for n, u in enumerate(order):
            for t in range(4):
                op = operand("k", 4*u + t, 7 if u == 0 else 3)
                A(f"v_mfma_f32_16x16x32_bf16 {q4(D(n))}, {q4(16+4*t)}, {op}, {'0' if t == 0 else q4(D(n))}")
                if n == 0 and t < 2: build_aq(t + 2)
                if n >= 2: dppsum(n - 2, t)
                if extra: extra.pop(0)()
            if n == 0:
                for k in range(4): extra.append(lambda k=k: ldsread("k", 8 + k, 64 + 4*k))
            if n == 1: free += [80, 84, 88, 92]
            if n == 5: free += [64, 68, 72, 76]
            if n >= 1 and free and vq:
                extra.append(lambda f=vq.pop(0), r=free.pop(0): ldsread("v", f, r))
            if n >= 3 and n % 2 == 1:
                a, b = order[n-3], order[n-2]
                if n == 3: extra.append(lambda a=a, b=b: A(f"v_max_f32 v60, v{32+a}, v{32+b}"))
                else: extra.append(lambda a=a, b=b: A(f"v_max3_f32 v60, v60, v{32+a}, v{32+b}"))
            if p1: p1.issue_more(1)
        if s.hook: s.hook(1)
        if p1: A("s_barrier")
        for c in range(4): dppsum(14, c)
        while extra: extra.pop(0)()
        A(f"v_max_f32 v60, v60, v{32+order[14]}")
        for c in range(4): dppsum(15, c)
        A(f"v_max_f32 v60, v60, v{32+order[15]}")
        A("v_lshrrev_b32 v56, 5, v0\nv_and_b32 v57, 1, v0")
        A(f"v_max_f32_dpp v60, v60, v60 row_ror:4 {FULL}")
        A("v_lshlrev_b32 v56, 9, v56\nv_lshl_add_u32 v56, v57, 8, v56")
        A(f"v_max_f32_dpp v60, v60, v60 row_ror:8 {FULL}")
        A("v_and_b32 v57, 28, v0\nv_lshl_add_u32 v56, v57, 2, v56")
        A("v_max_f32_dpp v60, v60, v60 row_bcast:15 row_mask:0xa bank_mask:0xf")
        A(f"s_lshl_b32 {sT1}, {sW}, 10\ns_add_u32 {sT1}, {sT1}, {L_SO}")
        A("v_max_f32_dpp v60, v60, v60 row_bcast:31 row_mask:0xc bank_mask:0xf")
        A(f"v_add_u32 v56, {sT1}, v56")
        A(f"v_readlane_b32 {sT0}, v60, 63")
        A("v_and_b32 v57, 48, v0\nv_and_b32 v58, 3, v0")
        A(f"v_mov_b32 v62, {sT0}")
        def expo(u, part):
            t = 28 + (u & 1)
            if part == 0: A(f"v_sub_f32 v{t}, v{32+u}, v62")
            elif part == 1: A(f"v_exp_f32 v{t}, v{t}")
            elif part == 2: A(f"v_cvt_pk_bf16_f32 v{32+u}, v{t}, v{t}")
            elif u == 0: A(f"v_mov_b32 v63, v{t}")
            else: A(f"v_add_f32 v63, v63, v{t}")
        B = lambda k: 16 + 4 * (k % 3)
        def band(k, c):
            u, sidx = k >> 1, k & 1
            n = (4*c - 2 - 8*sidx) % 16
            A(f"v_and_b32_dpp v{B(k)+c}, v{32+u}, v{2+c} row_ror:{n} {FULL}")
        expo(0, 0); expo(1, 0); expo(0, 1); expo(1, 1); expo(0, 2); expo(0, 3); expo(1, 2)
        for c in range(4): band(0, c)
        expo(1, 3)
        if s.hook: s.hook(2)
        for c in range(4): band(1, c)
        fill = []
        fill.append("v_lshl_add_u32 v57, v58, 2, v57")
        fill.append("v_bfe_u32 v58, v0, 2, 2")
        fill.append("v_add_u32 v57, v57, v58")
        fill.append(f"v_lshlrev_b32 v57, 2, v57")
        fill.append(f"v_add_u32 v57, {L_SO}, v57")
        fill.append(f"s_lshl_b32 {sT1}, {sW}, 3\ns_add_u32 {sT1}, {sT1}, {L_ST}")
        fill.append(f"v_mov_b32 v58, {sT1}")
        red = [f"v_add_f32_dpp v63, v63, v63 row_ror:4 {FULL}",
               f"v_add_f32_dpp v63, v63, v63 row_ror:8 {FULL}",
               "v_add_f32_dpp v63, v63, v63 row_bcast:15 row_mask:0xa bank_mask:0xf",
               "v_add_f32_dpp v63, v63, v63 row_bcast:31 row_mask:0xc bank_mask:0xf"]
        for u in range(16):
            if p1:
                p1.issue_upto(4*u + 3 + s.lag)
                if u == s.cpf: p1.code_prefetch()
            for j in range(4):
                f = 4*u + j; k = 2*u + (j >> 1)
                op = operand("v", f, 3)
                o = 48 + 4*(j & 1)
                first = (u == 0 and j < 2)
                A(f"v_mfma_f32_16x16x32_bf16 {q4(o)}, {op}, {q4(B(k))}, {'0' if first else q4(o)}")
                if k + 2 < 32:
                    band(k + 2, 2*(j & 1)); band(k + 2, 2*(j & 1) + 1)
                if u + 2 < 16: expo(u + 2, j)
                elif red and (j % 2 == 0): A(red.pop(0))
                if u >= 14 or (u >= 4 and j == 0):
                    if fill: A(fill.pop(0))
                if vloc(f)[0] == "l":
                    free.append(stg[("v", f)][0])
                    if vq: ldsread("v", vq.pop(0), free.pop(0))
        assert not red and not fill, (red, fill)
    def build(s):
        A = s.A
        s.m0cur = None
        A.raw(HEADER.rstrip())
        A.raw("; @launch grid=(256,1,1) block=(256,1,1) lds=163840")
        A.raw('.amdgcn_target "amdgcn-amd-amdhsa--gfx950"\n.text')
        A.raw(f".globl {NAME}_kernel\n.p2align 8\n.type {NAME}_kernel,@function\n{NAME}_kernel:")
        A("s_load_dwordx16 s[56:71], s[0:1], 0")
        A("s_load_dwordx8 s[72:79], s[0:1], 64")
        A("s_load_dwordx2 s[80:81], s[0:1], 96")
        A("s_cmp_ge_u32 s2, 256\ns_cbranch_scc1 L_end")
        if s.ts: A("v_mov_b32 v12, 0")
        if s.cpf0:
            A("s_getpc_b64 s[20:21]")
            A.label("L_pc0")
            A.raw(f"    s_mov_b32 s22, L_code_end-{NAME}_kernel")
            A("s_and_b32 s20, s20, 0xffffff00")
            A("s_mov_b32 s23, 0x20000\nv_lshlrev_b32 v2, 4, v0\ns_movk_i32 s24, 0x1000\ns_movk_i32 s25, 0x2000\ns_movk_i32 s26, 0x3000\ns_movk_i32 s27, 0x4000")
            for j, so in enumerate(("0", "s24", "s25", "s26", "s27")):
                A.vm(f"buffer_load_dwordx4 {q4(100+4*j)}, v2, {rX}, {so} offen")
        A("v_lshrrev_b32 v1, 6, v0")
        A("v_and_b32 v0, 63, v0")
        A(f"v_readfirstlane_b32 {sW}, v1")
        A(f"s_and_b32 {sG}, s2, 7\ns_lshr_b32 {sI}, s2, 3\ns_lshr_b32 {sHH}, s2, 6\ns_bfe_u32 {sB}, s2, 0x10005")
        A("v_and_b32 v16, 3, v0")
        A("v_bfe_u32 v17, v0, 2, 2")
        A("v_lshrrev_b32 v18, 4, v0")
        A("v_lshlrev_b32 v6, 4, v16\nv_lshl_add_u32 v6, v17, 8, v6\nv_lshl_add_u32 v6, v18, 6, v6")
        A("v_and_b32 v19, 7, v0\nv_bfe_u32 v20, v0, 3, 1")
        A("v_lshlrev_b32 v7, 4, v19\nv_lshl_add_u32 v7, v20, 8, v7\nv_lshl_add_u32 v7, v18, 10, v7")
        A(f"s_lshl_b32 s82, {sB}, 5\ns_lshl_b32 s83, {sG}, 2\ns_add_u32 s82, s82, s83\ns_add_u32 s82, s82, {sHH}\ns_lshl_b32 s82, s82, 20")
        A(f"s_and_b32 s83, {sI}, 3\ns_lshl_b32 s83, s83, 18\ns_add_u32 s82, s82, s83\ns_lshl_b32 s83, {sW}, 16\ns_add_u32 s82, s82, s83")
        A(f"s_lshl_b32 s84, s2, 2\ns_add_u32 s84, s84, {sW}\ns_and_b32 s84, s84, 15\ns_lshl_b32 s84, s84, 12")
        A(f"s_mul_i32 s85, {sW}, {NLDS*1024}\ns_add_u32 s85, s85, {L_KV}")
        A("s_mov_b32 s10, 0x10000\ns_mov_b32 s11, 0x20000\ns_mov_b32 m0, s85")
        A("s_waitcnt lgkmcnt(0)")
        A("s_add_u32 s8, s58, s82\ns_addc_u32 s9, s59, 0")
        ids = {}
        for f in range(4):
            ids[("k", f)] = A.vm(f"buffer_load_dwordx4 v6, {rK}, s84 offen offset:{f*1024} {s.kvpol} lds")
        A("s_add_u32 s12, s60, s82\ns_addc_u32 s13, s61, 0\ns_mov_b32 s14, 0x10000\ns_mov_b32 s15, 0x20000")
        def srd(k, lo, n):
            A(f"s_mov_b32 s{k}, s{lo}\ns_mov_b32 s{k+1}, s{lo+1}\ns_mov_b32 s{k+2}, {n}\ns_mov_b32 s{k+3}, 0x20000")
        srd(16, 80, WS_BYTES if not s.ts else TS_OFF + 0x40000)
        srd(20, 56, 2048); srd(24, 62, 4 << 20); srd(28, 64, 4 << 20); srd(32, 68, 512*2752)
        A(f"s_mul_i32 s83, {sG}, {176*1024}\ns_add_u32 s36, s72, s83\ns_addc_u32 s37, s73, 0")
        A(f"s_sub_u32 s38, {1376*1024}, s83\ns_min_u32 s38, s38, {176*1024}\ns_mov_b32 s39, 0x20000")
        srd(40, 70, 2752); srd(44, 74, 1024); srd(48, 76, 2048); srd(52, 78, 256)
        A(f"s_mov_b32 {sRot}, s84\ns_mov_b32 {sKVl}, s85")
        A("s_mov_b32 s56, 0x00030003\ns_mov_b32 s57, 0x00030003\ns_mov_b32 s58, 0x00030003\ns_mov_b32 s59, 0")
        A("s_mov_b32 s60, 0xffff\ns_mov_b32 s61, 0\ns_mov_b32 s62, 0xff\ns_mov_b32 s63, 0")
        A("s_mov_b32 s66, 0x33333333\ns_mov_b32 s67, 0xcccccccc")
        A(f"s_mov_b32 {sCnt}, 0\ns_mov_b32 {sMode}, 0\ns_mov_b32 {sLayer}, 0")
        A(f"s_mul_i32 {sTau}, {sG}, 11\ns_add_u32 {sTau}, {sTau}, {sI}")
        s.stamp("start")
        if s.padend or s.padchain: A("s_memrealtime s[98:99]\ns_waitcnt lgkmcnt(0)\ns_mov_b32 s97, s98")
        A("v_mov_b32 v22, -1\nv_mov_b32 v23, -1")
        A(f"s_lshl_b32 {sT0}, s2, 11\ns_lshl_b32 {sT1}, {sW}, 9\ns_add_u32 {sT0}, {sT0}, {sT1}")
        A("v_lshlrev_b32 v21, 3, v0")
        A.vm(f"buffer_store_dwordx2 v[22:23], v21, {rWS}, {sT0} offen sc1")
        A("v_and_b32 v27, 1, v0")
        A("v_lshrrev_b32 v83, 1, v0\nv_lshlrev_b32 v89, 4, v27")
        A("v_lshl_add_u32 v80, v83, 13, v89\nv_lshl_add_u32 v81, v83, 10, v89\nv_mul_u32_u24 v82, 2752, v83\nv_add_u32 v82, v82, v89")
        A(f"s_lshl_b32 {sT2}, {sI}, 5")
        A(f"s_lshl_b32 {sT0}, {sW}, 20\ns_lshl_b32 {sT1}, {sG}, 10\ns_add_u32 {sT0}, {sT0}, {sT1}\ns_add_u32 {sT0}, {sT0}, {sT2}")
        A(f"s_lshl_b32 {sT1}, {sW}, 12")
        for j in range(4):
            A(f"s_add_u32 m0, {sT1}, {L_WQ + j*1024}")
            A.vm(f"buffer_load_dwordx4 v80, {rWQ}, {sT0} offen {s.wpol} lds")
            A(f"s_add_u32 {sT0}, {sT0}, {32*8192}")
        A(f"s_lshl_b32 {sT0}, {sW}, 8")
        A(f"v_and_b32 v9, 0x1f0, v6\nv_and_b32 v28, 0x100, v9\nv_mad_u32_u24 v9, v28, 3, v9\nv_add_u32 v9, {sT0}, v9")
        A("s_mov_b32 s0, 0x00ff00ff\ns_mov_b32 s1, 0x00ff00ff")
        s.ln_pre(None, L_SO)
        A(f"s_mov_b64 exec, {mR8}")
        A.vm(f"buffer_load_dwordx4 v[32:35], v9, {rX}, 0 offen")
        A("s_mov_b64 exec, -1")
        A(f"s_lshl_b32 {sT0}, {sG}, 5\ns_add_u32 {sT0}, {sT0}, {sI}\ns_lshl_b32 {sOown}, {sT0}, 8")
        A(f"s_lshl_b32 {sOg}, {sG}, 13\ns_lshl_b32 {sT0}, {sW}, 11\ns_add_u32 {sOg}, {sOg}, {sT0}")
        A(f"s_lshl_b32 {sT0}, {sG}, 2\ns_add_u32 {sT1}, {sT0}, {sHH}\ns_add_u32 {sT0}, {sT0}, {sW}")
        A(f"s_lshl_b32 {sSTg}, {sT0}, 7\ns_add_u32 {sSTg}, {sSTg}, {ST}")
        A(f"s_and_b32 {sT3}, {sI}, 7\ns_lshl_b32 {sSTown}, {sT3}, 3\ns_lshl_b32 {sT0}, {sT1}, 7\ns_add_u32 {sSTown}, {sSTown}, {sT0}\ns_add_u32 {sSTown}, {sSTown}, {ST}")
        A(f"s_lshl_b32 {sAPg}, {sT3}, 10\ns_lshl_b32 {sT0}, {sHH}, 14\ns_add_u32 {sAPg}, {sAPg}, {sT0}\ns_add_u32 {sAPg}, {sAPg}, {AP}")
        A(f"s_lshl_b32 {sT0}, {sG}, 7\ns_add_u32 {sAPown}, {sAPg}, {sT0}")
        A(f"s_add_u32 {sYPg}, {sAPg}, {YP-AP}\ns_add_u32 {sYPown}, {sAPown}, {YP-AP}")
        A(f"s_lshl_b32 {sT0}, {sT1}, 9\ns_lshl_b32 {sT3}, {sT3}, 5\ns_add_u32 {sQown}, {sT0}, {sT3}\ns_lshl_b32 {sT3}, {sB}, 8\ns_add_u32 {sQg}, {sT0}, {sT3}")
        A(f"s_add_u32 {sQown}, {sQown}, {QB0}\ns_add_u32 {sQg}, {sQg}, {QB0}")
        A(f"s_lshl_b32 {sX1g}, {sG}, 11\ns_add_u32 {sX1g}, {sX1g}, {X1}\ns_add_u32 {sX1own}, {sX1g}, {sT2}")
        A(f"s_add_u32 {sX2g}, {sX1g}, {X2-X1}\ns_add_u32 {sX2own}, {sX1own}, {X2-X1}")
        A(f"s_lshl_b32 {sHg}, {sG}, 10\ns_add_u32 {sHg}, {sHg}, {HB}\ns_lshl_b32 {sHown}, {sI}, 6\ns_add_u32 {sHown}, {sHown}, {sHg}")
        if s.race: A(f"s_lshl_b32 {sCopy}, {sW}, 13")
        else: A(f"s_getreg_b32 {sCopy}, hwreg(HW_REG_XCC_ID)\ns_bfe_u32 {sCopy}, {sCopy}, 0x10002\ns_xor_b32 {sCopy}, {sCopy}, {s.copy}\ns_lshl_b32 {sCopy}, {sCopy}, 13")
        A("v_lshlrev_b32 v24, 2, v19\nv_lshl_add_u32 v25, v20, 8, v24\nv_lshl_add_u32 v26, v20, 10, v24")
        A(f"s_mov_b64 exec, {m16}")
        A.vm(f"buffer_store_dword v22, v25, {rWS}, {sQown} offen sc1")
        A.vm(f"buffer_load_dword v13, v26, {rX}, {sT2} offen")
        A.vm(f"buffer_load_dword v15, v24, {rB2}, {sT2} offen")
        A(f"s_lshl_b32 {sT0}, {sTau}, 5")
        last = A.vm(f"buffer_load_dword v14, v24, {rB1}, {sT0} offen")
        A("s_mov_b64 exec, -1")
        s.m0cur = None
        for f in range(4, 16): ids[("k", f)] = s.kv_load("k", f)
        A(f"v_lshlrev_b32 v1, 4, v0\nv_add_u32 v1, {sKVl}, v1")
        A(f"s_lshl_b32 {sT0}, {sW}, 12")
        A(f"v_lshlrev_b32 v8, 3, v16\nv_lshl_add_u32 v8, v17, 5, v8\nv_lshl_add_u32 v10, v18, 8, v8\nv_lshl_add_u32 v8, v18, 10, v8\nv_add_u32 v8, {sT0}, v8")
        A("v_add_u32 v28, v16, v18\nv_and_b32 v28, 3, v28\nv_and_b32 v11, 4, v0\nv_lshlrev_b32 v11, 3, v11\nv_lshl_add_u32 v11, v28, 3, v11")
        A("v_mov_b32 v29, 0xffff\nv_mov_b32 v30, 0xffff0000\nv_cmp_eq_u32 vcc, 1, v27\nv_cndmask_b32 v29, v29, v30, vcc")
        for c in range(4):
            A(f"v_cmp_eq_u32 vcc, {c}, v17\nv_cndmask_b32 v{2+c}, 0, v29, vcc")
        A.wait_vm(last)
        s.tr_reads(L_WQ, 4, 16)
        s.ln_mma()
        skip = A.newlabel("L_skip")
        A(f"s_cmp_lg_u32 {sW}, 0\ns_cbranch_scc1 {skip}")
        A("v_mov_b32 v90, v80\nv_mov_b32 v91, v81\nv_mov_b32 v92, v82")
        A(f"s_mov_b64 exec, {m16}")
        s.ln_final()
        s.pair_off(68, 69, 8)
        A("v_cvt_pk_bf16_f32 v64, v64, v65\nv_min_u32 v64, -2, v64")
        A.vm(f"buffer_store_dword v64, v68, {rWS}, {sQown} offen sc1", optional=True)
        A(f"s_getreg_b32 {sT0}, hwreg(HW_REG_XCC_ID)\ns_and_b32 {sT0}, {sT0}, 15\ns_mul_i32 {sT1}, {sT0}, 6\ns_add_u32 {sT1}, {sT1}, 8")
        A(f"s_lshl_b64 s[100:101], 1, {sT1}\ns_cmp_lt_u32 {sT0}, 8\ns_cselect_b64 s[100:101], s[100:101], 0\ns_or_b32 s100, s100, 1")
        A(f"v_mov_b32 v76, s100\nv_mov_b32 v77, s101\ns_lshl_b32 {sT0}, {sG}, 5\nv_mov_b32 v78, {sT0}")
        A("s_mov_b64 exec, 1")
        A.vm(f"buffer_atomic_add_x2 v[76:77], v78, {rDBG}, 0 offen sc1", optional=True)
        A("s_mov_b64 exec, -1")
        A("v_mov_b32 v81, v91\nv_mov_b32 v82, v92")
        A.label(skip)
        A.ds_done = A.ds_issued
        s.stamp("q0pub")
        for f in range(16, 24): ids[("k", f)] = s.kv_load("k", f)
        A(f"s_lshl_b32 {sT2}, {sI}, 5")
        A(f"s_lshl_b32 {sT0}, {sG}, 19\ns_lshl_b32 {sT1}, {sW}, 17\ns_add_u32 {sT0}, {sT0}, {sT1}\ns_add_u32 {sT0}, {sT0}, {sT2}")
        A(f"s_lshl_b32 {sT1}, {sW}, 12")
        for j in range(4):
            A(f"s_add_u32 m0, {sT1}, {L_WO + j*1024}")
            A.vm(f"buffer_load_dwordx4 v81, {rWO}, {sT0} offen {s.wpol} lds")
            A(f"s_add_u32 {sT0}, {sT0}, {32*1024}")
        A(f"s_mul_i32 {sT0}, {sW}, {128*2752}\ns_lshl_b32 s100, {sTau}, 5\ns_add_u32 {sT0}, {sT0}, s100")
        A(f"s_cmp_lt_u32 {sI}, 11\ns_cselect_b32 s34, s34, 0")
        for j in range(4):
            A(f"s_add_u32 m0, {sT1}, {L_W1 + j*1024}")
            A.vm(f"buffer_load_dwordx4 v82, {rW1}, {sT0} offen {s.wpol} lds")
            A(f"s_add_u32 {sT0}, {sT0}, {32*2752}")
        A(f"s_lshl_b32 {sT0}, {sW}, 16\ns_add_u32 {sT0}, {sT0}, {sT2}\nv_add_u32 v81, {sT0}, v81\nv_add_u32 v82, 0x8000, v81")
        A(f"s_lshl_b32 {sT1}, {sW}, 11")
        for j in range(2):
            A(f"s_add_u32 m0, {sT1}, {L_W2 + j*1024}")
            A.vm(f"buffer_load_dwordx4 v{81+j}, {rW2}, 0 offen {s.wpol} lds")
        s.m0cur = None
        for f in range(24, 36): ids[("k", f)] = s.kv_load("k", f)
        A("v_lshlrev_b32 v70, 5, v0")
        A(f"s_mov_b64 exec, {m8}")
        chk = A.vm(f"buffer_load_dwordx2 v[72:73], v70, {rDBG}, 0 offen sc1")
        A("s_mov_b64 exec, -1")
        for f in range(36, 50): ids[("k", f)] = s.kv_load("k", f)
        A.wait_vm(chk)
        ok = A.newlabel("L_arr_ok"); lp = A.newlabel("L_arr")
        A(f"s_mov_b64 exec, {m8}")
        A.label(lp)
        A("v_and_b32 v74, 0xff, v72\nv_cmp_ne_u32 vcc, 32, v74")
        A(f"s_cbranch_vccz {ok}")
        A(f"s_sleep 4")
        A.vm(f"buffer_load_dwordx2 v[72:73], v70, {rDBG}, 0 offen sc1", optional=True)
        A(f"s_add_u32 {sCnt}, {sCnt}, 1\ns_cmp_lt_u32 {sCnt}, {LIMIT}\ns_waitcnt vmcnt(0)\ns_cbranch_scc1 {lp}")
        A.label(ok)
        A("s_mov_b64 exec, -1")
        A(f"v_readlane_b32 s100, v72, {sG}\nv_readlane_b32 s101, v73, {sG}")
        A(f"s_getreg_b32 {sT0}, hwreg(HW_REG_XCC_ID)\ns_and_b32 {sT0}, {sT0}, 15\ns_mul_i32 {sT1}, {sT0}, 6\ns_add_u32 {sT1}, {sT1}, 8")
        A(f"s_lshr_b64 s[100:101], s[100:101], {sT1}\ns_and_b32 s100, s100, 63\ns_cmp_eq_u32 s100, 32\ns_cselect_b32 {sMode}, 1, 0")
        A(f"s_cmp_lt_u32 {sT0}, 8\ns_cselect_b32 {sMode}, {sMode}, 0")
        if s.forceG: A(f"s_mov_b32 {sMode}, 0")
        A("v_and_b32 v62, 0xf0, v6")
        qid = A.vm(f"buffer_load_dwordx4 {q4(QREG)}, v62, {rWS}, {sQg} offen sc1")
        for f in range(50, 64): ids[("k", f)] = s.kv_load("k", f)
        class P1: pass
        p1 = P1(); p1.ids = ids; p1.next = 0
        def issue_upto(n):
            while p1.next <= min(n, 63):
                ids[("v", p1.next)] = s.kv_load("v", p1.next); p1.next += 1
        def code_prefetch():
            A("s_getpc_b64 s[20:21]")
            A.label("L_pc")
            A.raw("    s_add_u32 s20, s20, L_chain-L_pc\n    s_addc_u32 s21, s21, 0\n    s_mov_b32 s22, L_code_end-L_chain\n    s_and_b32 s20, s20, 0xffffffc0")
            A(f"s_lshl_b32 {sT0}, {sW}, 10\ns_add_u32 m0, {sT0}, {L_SO}\nv_lshlrev_b32 v59, 4, v0")
            for j in range(s.ncpf):
                A.vm(f"buffer_load_dwordx4 v59, {rX}, {sT0} offen lds")
                A(f"s_add_u32 {sT0}, {sT0}, 4096")
            s.m0cur = None
        s.ncpf = 3
        p1.issue_upto = issue_upto; p1.code_prefetch = code_prefetch
        p1.issue_more = lambda k: issue_upto(p1.next + k - 1)
        issue_upto(3)
        A.wait_vm(qid)
        ok = A.newlabel("L_q_ok"); lp = A.newlabel("L_q")
        A.label(lp)
        A(f"v_max_u32 v63, v{QREG}, v{QREG+1}\nv_max3_u32 v63, v63, v{QREG+2}, v{QREG+3}\nv_cmp_eq_u32 vcc, -1, v63")
        A(f"s_cbranch_vccz {ok}")
        A.vm(f"buffer_load_dwordx4 {q4(QREG)}, v62, {rWS}, {sQg} offen sc1", optional=True)
        A(f"s_add_u32 {sCnt}, {sCnt}, 1\ns_cmp_lt_u32 {sCnt}, {LIMIT}\ns_waitcnt vmcnt(0)\ns_cbranch_scc1 {lp}")
        A.label(ok)
        A(f"s_sub_u32 {sQown}, {sQown}, {QB0 - QB}\ns_sub_u32 {sQg}, {sQg}, {QB0 - QB}")
        s.stamp("q0got")
        s.att_prefetchK()
        s.attention(p1)
        if s.race:
            A(f"v_mov_b32 v28, -1\nv_mov_b32 v29, {L_RACE}")
            A.ds("ds_write_b32 v29, v28")
        A.wait_vm0()
        if s.padchain: s.spin_until(s.padchain)
        s.inchain = True; s.ts0 = s.nts
        s.ts_flush(True)
        A.label("L_chain")
        A.hist = [parse("v_mfma_f32_16x16x32_bf16 v[48:51], v[0:3], v[0:3], v[48:51]"), parse("v_add_f32 v63, v63, v63"),
                  parse("v_mfma_f32_16x16x32_bf16 v[52:55], v[0:3], v[0:3], v[52:55]"), parse("s_branch L_chain")]
        s.stamp("pvdone")
        A("s_mov_b32 exec_lo, 0\ns_brev_b32 exec_hi, 1")
        A.ds("ds_write_b64 v58, v[62:63]")
        A(f"v_mov_b32 v26, {L_ST}\ns_mov_b64 exec, {mOV}")
        A.ds("ds_write_b128 v56, v[48:51]")
        A.ds("ds_write_b128 v56, v[52:55] offset:128")
        A("s_mov_b64 exec, -1")
        A(f"v_mov_b32 v26, {L_ST}\nv_lshlrev_b32 v27, 2, v0\nv_mov_b32 v29, 0")
        A(f"s_cmp_lg_u32 {sW}, 0")
        A.wait_ds0()
        A("s_barrier")
        A("s_cbranch_scc1 L_S2")
        A.ds("ds_read_b128 v[64:67], v26")
        st2 = A.ds("ds_read_b128 v[68:71], v26 offset:16")
        for blk in range(8):
            A.ds(f"ds_read2st64_b32 {q2(72+2*blk)}, v57 offset0:{2*blk} offset1:{2*blk+1}")
        A.wait_ds(st2)
        A("v_max3_f32 v88, v64, v66, v68\nv_max_f32 v88, v88, v70")
        for w in range(4): A(f"v_sub_f32 v{64+2*w}, v{64+2*w}, v88")
        for w in range(4): A(f"v_exp_f32 v{64+2*w}, v{64+2*w}")
        s.mode_test()
        A.wait_ds0()
        for w in range(4): A(f"v_pk_add_f32 {q2(72+4*w)}, {q2(72+4*w)}, {q2(74+4*w)}")
        A("v_pk_mul_f32 v[90:91], v[72:73], v[64:65] op_sel_hi:[1,0]")
        A("v_mul_f32 v89, v64, v65")
        for w in range(1, 4):
            A(f"v_pk_fma_f32 v[90:91], {q2(72+4*w)}, {q2(64+2*w)}, v[90:91] op_sel_hi:[1,0,1]")
            A(f"v_fmac_f32 v89, v{64+2*w}, v{65+2*w}")
        A("v_cvt_pk_bf16_f32 v90, v90, v91\nv_min_u32 v88, -2, v88\nv_min_u32 v90, -2, v90\nv_min_u32 v89, -2, v89")
        s.publish([f"buffer_store_dword v90, v27, {rWS}, {sOown} offen {{pol}}",
                   f"s_mov_b64 exec, 1\nbuffer_store_dwordx2 v[88:89], v29, {rWS}, {sSTown} offen {{pol}}\ns_mov_b64 exec, -1"], tested=True)
        A.label("L_S2")
        A.ds_done = A.ds_issued
        s.stamp("opub")
        s.tr_reads(L_WO, 4, 16)
        A("v_mov_b32 v72, 0\nv_mov_b32 v73, 0")
        A(f"s_lshl_b32 {sT0}, {sW}, 7\ns_add_u32 {sT0}, {sT0}, {RED2}")
        A(f"v_and_b32 v80, 15, v0\nv_lshrrev_b32 v81, 5, v0\nv_lshlrev_b32 v80, 2, v80\nv_lshl_add_u32 v80, v81, 6, v80\nv_add_u32 v80, {sT0}, v80")
        A(f"v_lshlrev_b32 v81, 4, v0\nv_add_u32 v82, {RED2}, v81")
        def issue():
            A(f"s_mov_b64 exec, {mR8}")
            A(f"buffer_load_dwordx2 v[72:73], v11, {rWS}, {sSTg} offen sc1")
            A("s_mov_b64 exec, -1")
            A(f"buffer_load_dwordx4 v[32:35], v6, {rWS}, {sOg} offen sc1")
            A(f"buffer_load_dwordx4 v[36:39], v6, {rWS}, {sOg} offen offset:1024 sc1")
        s.poll(issue, 3, list(range(32, 40)) + [72, 73], 74, s.dL, s.gapL)
        s.stamp("ogot")
        A.wait_ds0()
        side = [f"v_max_f32_dpp v74, v72, v72 quad_perm:[1,0,3,2] {FULL}",
                f"v_max_f32_dpp v74, v74, v74 quad_perm:[2,3,0,1] {FULL}",
                "v_sub_f32 v75, v72, v74", "v_exp_f32 v75, v75", "v_mul_f32 v76, v75, v73",
                f"v_add_f32_dpp v76, v76, v76 quad_perm:[1,0,3,2] {FULL}",
                f"v_add_f32_dpp v76, v76, v76 quad_perm:[2,3,0,1] {FULL}",
                "v_rcp_f32 v76, v76"]
        for b in range(2):
            for c in range(4):
                A(f"v_mfma_f32_16x16x32_bf16 {q4(40+16*b+4*c)}, {q4(32+4*b)}, {q4(16+4*c)}, 0")
                A(side.pop(0))
        A("v_mul_f32 v75, v75, v76")
        A("v_add_f32 v40, v40, v45\nv_add_f32 v50, v50, v55\nv_add_f32 v40, v40, v50")
        A(f"v_mul_f32_dpp v78, v75, v40 row_newbcast:0 {FULL}")
        A("v_add_f32 v56, v56, v61\nv_add_f32 v66, v66, v71\nv_add_f32 v56, v56, v66")
        A(f"v_mul_f32_dpp v79, v75, v56 row_newbcast:4 {FULL}")
        A("v_permlane32_swap_b32 v78, v79\nv_add_f32 v78, v78, v79\nv_mov_b32 v79, v78")
        A("v_permlane16_swap_b32 v78, v79\nv_add_f32 v78, v78, v79")
        A.ds("ds_write_b32 v80, v78")
        A(f"s_cmp_lg_u32 {sW}, 0")
        s.drain()
        A.wait_ds0()
        A("s_barrier")
        A("s_cbranch_scc1 L_S3")
        A(f"s_mov_b64 exec, {m8}")
        for w in range(4): A.ds(f"ds_read_b128 {q4(64+4*w)}, v82 offset:{128*w}")
        A(f"s_add_u32 {sT0}, {sAPown}, 8192")
        A.wait_ds(A.ds_issued - 3)
        A("v_pk_add_f32 v[64:65], v[64:65], v[68:69]\nv_pk_add_f32 v[66:67], v[66:67], v[70:71]")
        A.wait_ds0()
        A("v_pk_add_f32 v[72:73], v[72:73], v[76:77]\nv_pk_add_f32 v[74:75], v[74:75], v[78:79]")
        A("v_pk_add_f32 v[64:65], v[64:65], v[72:73]\nv_pk_add_f32 v[66:67], v[66:67], v[74:75]")
        for k in range(64, 68): A(f"v_min_u32 v{k}, -2, v{k}")
        A(f"buffer_store_dwordx4 v[64:67], v81, {rWS}, {sAPown} offen sc1")
        A(f"buffer_store_dwordx4 v[64:67], v81, {rWS}, {sT0} offen sc1")
        A("s_mov_b64 exec, -1")
        s.stamp("appub")
        A.label("L_S3")
        A.ds_done = A.ds_issued
        s.ln_pre(L_W1, RED4, sX1g)
        if s.race: A(f"s_lshl_b32 {sT0}, {sLayer}, 1\ns_add_u32 {sT0}, {sT0}, {sW}\ns_cmp_lt_u32 {sT0}, 2\ns_cselect_b32 {sT0}, 0, {sW}\ns_cmp_lg_u32 {sT0}, 0")
        else: A(f"s_cmp_lg_u32 {sW}, 0")
        A("s_cbranch_scc1 L_S4")
        def xreduce(sg, addb2):
            A(f"s_mov_b64 exec, {m16}")
            A("v_lshlrev_b32 v82, 3, v0")
            A("v_lshlrev_b32 v80, 16, v13\nv_and_b32 v81, 0xffff0000, v13")
            if addb2:
                A("v_lshlrev_b32 v90, 16, v15\nv_and_b32 v91, 0xffff0000, v15")
                A("v_pk_add_f32 v[80:81], v[80:81], v[90:91]")
            s.pair_off(83, 89, 10)
            A(f"s_add_u32 {sT0}, {sg}, {sCopy}")
            def issue():
                for j in range(8): A(f"buffer_load_dwordx2 {q2(64+2*j)}, v82, {rWS}, {sT0} offen offset:{j*128} sc1")
            s.poll(issue, 8, range(64, 80), 89, s.dG, s.gapG)
            A("v_pk_add_f32 v[90:91], v[64:65], v[66:67]\nv_pk_add_f32 v[92:93], v[68:69], v[70:71]")
            A("v_pk_add_f32 v[94:95], v[72:73], v[74:75]\nv_pk_add_f32 v[96:97], v[76:77], v[78:79]")
            A("v_pk_add_f32 v[90:91], v[90:91], v[92:93]\nv_pk_add_f32 v[94:95], v[94:95], v[96:97]")
            A("v_pk_add_f32 v[90:91], v[90:91], v[80:81]")
            s.mode_test()
            A("v_pk_add_f32 v[90:91], v[90:91], v[94:95]")
            A("v_cvt_pk_bf16_f32 v13, v90, v91")
        xreduce(sAPg, False)
        A("v_min_u32 v90, -2, v13")
        s.publish(f"buffer_store_dword v90, v83, {rWS}, {sX1own} offen {{pol}}", tested=True)
        A("s_mov_b64 exec, -1")
        s.stamp("x1pub")
        if s.race:
            A(f"s_memtime s[100:101]\ns_cmp_eq_u32 {sW}, 0\ns_cbranch_scc1 L_S4")
            A(f"v_mov_b32 v91, {L_RACE}\ns_waitcnt lgkmcnt(0)\nv_mov_b32 v90, s100")
            A("ds_write_b32 v91, v90")
        A.label("L_S4")
        A(f"s_cmp_ge_u32 {sI}, 11\ns_cbranch_scc1 L_S5")
        s.ln_poll(sX1g)
        s.stamp("xgot")
        s.ln_mma()
        A(f"s_cmp_lg_u32 {sW}, 0\ns_cbranch_scc1 L_S7")
        A(f"s_mov_b64 exec, {m16}")
        s.drain()
        s.ln_final_pre = None
        A(f"s_cmp_lt_u32 {sTau}, 86\ns_cselect_b32 {sT3}, -1, 0")
        k1 = -2.0 * math.sqrt(2.0 / math.pi) * math.log2(math.e)
        A("v_lshlrev_b32 v92, 16, v14\nv_and_b32 v93, 0xffff0000, v14")
        A(f"v_mov_b32 v94, {f2u(k1 * 0.044715)}\nv_mov_b32 v96, {f2u(k1)}")
        A("v_and_b32 v98, 3, v0\nv_lshlrev_b32 v98, 2, v98\nv_and_b32 v99, 4, v0\nv_lshl_add_u32 v98, v99, 3, v98\nv_and_b32 v99, 8, v0\nv_lshl_add_u32 v98, v99, 1, v98")
        s.ln_final()
        A("v_pk_add_f32 v[64:65], v[64:65], v[92:93]")
        A("v_pk_mul_f32 v[66:67], v[64:65], v[64:65]")
        A("v_pk_fma_f32 v[66:67], v[66:67], v[94:95], v[96:97] op_sel_hi:[1,0,0]")
        A("v_pk_mul_f32 v[66:67], v[66:67], v[64:65]")
        A("v_exp_f32 v66, v66\nv_exp_f32 v67, v67")
        A("v_add_f32 v66, 1.0, v66\nv_add_f32 v67, 1.0, v67")
        A("v_rcp_f32 v66, v66\nv_rcp_f32 v67, v67")
        s.mode_test()
        A("v_pk_mul_f32 v[64:65], v[64:65], v[66:67]")
        A(f"v_cvt_pk_bf16_f32 v64, v64, v65\nv_min_u32 v64, -2, v64\nv_and_b32 v64, {sT3}, v64")
        s.publish(f"buffer_store_dword v64, v98, {rWS}, {sHown} offen {{pol}}", tested=True)
        A("s_mov_b64 exec, -1")
        s.stamp("hpub")
        A.label("L_S5")
        A.ds_done = A.ds_issued
        A(f"s_cmp_lg_u32 {sW}, 0\ns_cbranch_scc1 L_S7")
        s.tr_reads(L_W2, 6, 16, "v10", 1024)
        for k in range(60, 64): A(f"v_mov_b32 v{k}, 0")
        A("v_and_b32 v86, 1, v0\nv_lshrrev_b32 v87, 4, v0\nv_lshlrev_b32 v87, 4, v87\nv_lshl_add_u32 v85, v86, 6, v87\nv_lshlrev_b32 v87, 1, v87\nv_lshl_add_u32 v84, v86, 4, v87")
        if s.race:
            A(f"v_mov_b32 v86, {L_RACE}")
            A.ds("ds_read_b32 v87, v86")
        def issue():
            A(f"s_mov_b64 exec, {mAlo}")
            A(f"buffer_load_dwordx4 v[60:63], v84, {rWS}, {sHg} offen offset:640 sc1")
            A(f"s_mov_b64 exec, {mA}")
            for kk in range(5): A(f"buffer_load_dwordx4 {q4(40+4*kk)}, v84, {rWS}, {sHg} offen offset:{kk*128} sc1")
        s.poll(issue, 6, range(40, 64), 88, s.dL, s.gapL)
        A("s_mov_b64 exec, -1")
        A.wait_ds0()
        for kk in range(6):
            d = 90 if kk % 2 == 0 else 94
            A(f"v_mfma_f32_16x16x32_bf16 {q4(d)}, {q4(16+4*kk)}, {q4(40+4*kk)}, {'0' if kk < 2 else q4(d)}")
            if s.race and kk == 0: A(f"v_readfirstlane_b32 {sT1}, v87")
        A(f"s_add_u32 {sT0}, {sYPown}, 8192")
        A(f"s_mov_b64 exec, {mA}")
        s.drain()
        A("v_pk_add_f32 v[90:91], v[90:91], v[94:95]\nv_pk_add_f32 v[92:93], v[92:93], v[96:97]")
        for k in range(90, 94): A(f"v_min_u32 v{k}, -2, v{k}")
        A(f"buffer_store_dwordx4 v[90:93], v85, {rWS}, {sYPown} offen sc1")
        A(f"buffer_store_dwordx4 v[90:93], v85, {rWS}, {sT0} offen sc1")
        A("s_mov_b64 exec, -1")
        s.stamp("yppub")
        A(f"s_cmp_eq_u32 {sLayer}, 0\ns_cselect_b32 {sT0}, 0, {sG}\ns_cmp_lg_u32 {sT0}, 0\ns_cbranch_scc1 L_done")
        if s.race:
            A(f"s_cmp_eq_u32 {sT1}, -1\ns_cselect_b32 {sT1}, s100, {sT1}")
            A(f"s_sub_u32 {sT1}, {sT1}, s100\ns_cmp_lt_i32 {sT1}, 0\ns_cselect_b32 {sT1}, 8192, 0")
            A(f"s_cmp_eq_u32 {sLayer}, 0\ns_cselect_b32 {sCopy}, {sT1}, {sCopy}")
        s.ln_pre(L_WQ, RED4, sX2g)
        xreduce(sYPg, True)
        A(f"s_cmp_lg_u32 {sLayer}, 0\ns_cbranch_scc1 L_fin")
        A("v_min_u32 v90, -2, v13")
        s.publish(f"buffer_store_dword v90, v83, {rWS}, {sX2own} offen {{pol}}")
        A("s_mov_b64 exec, -1")
        s.stamp("x2pub")
        A("s_branch L_S7b")
        A.label("L_S7")
        A(f"s_cmp_lg_u32 {sLayer}, 0\ns_cbranch_scc1 L_done")
        s.drain()
        s.ln_pre(L_WQ, RED4, sX2g)
        A.label("L_S7b")
        s.ln_poll(sX2g)
        s.stamp("xgot")
        s.ln_mma()
        A(f"s_cmp_lg_u32 {sW}, 0\ns_cbranch_scc1 L_S8")
        A(f"s_mov_b64 exec, {m16}")
        s.drain()
        s.pair_off(98, 99, 8)
        s.ln_final()
        s.mode_test()
        A("v_cvt_pk_bf16_f32 v64, v64, v65\nv_min_u32 v64, -2, v64")
        s.publish(f"buffer_store_dword v64, v98, {rWS}, {sQown} offen {{pol}}", tested=True)
        A("s_mov_b64 exec, -1")
        s.stamp("qpub")
        A.label("L_S8")
        A.ds_done = A.ds_issued
        s.ts_flush()
        s.att_prefetchK()
        A("v_and_b32 v62, 0xf0, v6")
        A(f"s_mov_b32 {sLayer}, 1")
        def issue(): A(f"buffer_load_dwordx4 {q4(QREG)}, v62, {rWS}, {sQg} offen sc1")
        s.poll(issue, 1, range(QREG, QREG + 4), 61, 1, 0)
        s.stamp("qgot")
        A(f"s_add_u32 s16, s16, {LSTRIDE}\ns_addc_u32 s17, s17, 0\ns_sub_u32 s18, s18, {LSTRIDE}")
        s.attention(None)
        A("s_branch L_chain")
        A.label("L_fin")
        A(f"s_lshl_b32 {sT0}, {sI}, 5")
        A(f"buffer_store_dword v13, v83, {rOUT}, {sT0} offen")
        A.label("L_done")
        if s.padend: s.spin_until(s.padend)
        if s.padcyc:
            A("s_memtime s[98:99]\ns_waitcnt lgkmcnt(0)\ns_mov_b32 s97, s98")
            s.spin_until(s.padcyc, "s_memtime")
        if s.ts:
            A("s_mov_b64 exec, -1")
            s.stamp("end")
            s.ts_flush()
            A(f"s_mul_i32 {sT0}, {sLayer}, {LSTRIDE}\ns_lshl_b32 {sT1}, s2, 2\ns_add_u32 {sT1}, {sT1}, {sW}\ns_lshl_b32 {sT1}, {sT1}, 8")
            A(f"s_add_u32 {sT1}, {sT1}, {TS_OFF}\ns_sub_u32 {sT1}, {sT1}, {sT0}\nv_lshlrev_b32 v16, 2, v0")
            A(f"buffer_store_dword v12, v16, {rWS}, {sT1} offen")
        A("L_end:\ns_endpgm")
        for t in s.tail: A.raw(t)
        A.raw("L_code_end:")
        A.raw('.section .rodata,"a"\n.p2align 6')
        A.raw(f".amdhsa_kernel {NAME}_kernel")
        A.raw("  .amdhsa_next_free_vgpr 512\n  .amdhsa_next_free_sgpr 102\n  .amdhsa_accum_offset 256\n  .amdhsa_group_segment_fixed_size 0")
        A.raw("  .amdhsa_kernarg_size 104\n  .amdhsa_user_sgpr_count 2\n  .amdhsa_user_sgpr_kernarg_segment_ptr 1\n  .amdhsa_system_sgpr_workgroup_id_x 1")
        A.raw("  .amdhsa_float_denorm_mode_32 3\n.end_amdhsa_kernel")
        return A.text()

if __name__ == "__main__":
    out = sys.argv[1] if len(sys.argv) > 1 else f"cdna_kernels/{NAME}.s"
    kw = {}
    for a in sys.argv[2:]:
        k, v = a.split("=")
        kw[k] = int(v) if v.lstrip("-").isdigit() else v
    g = Gen(**kw)
    open(out, "w").write(g.build())
    if kw.get("ts"): open(out + ".names", "w").write(" ".join(g.tsnames))
    print("wrote", out, "nops", g.A.nops)
```

```python
import sys, math, struct
from asmlib import Asm, parse

NAME = "interleave_layers__gqa_block_cached__dense_activation_gelu__decode"
HEADER = open("cdna_kernels/%s.s.ref" % NAME).read().split("; Override launch")[0]

L_WQ, L_WO, L_W1, L_W2 = 0, 16384, 32768, 49152
L_ACC = 55296
L_SO = 57344
L_KV = 61440
NLDS = 25
RED2 = L_ACC
RED4 = L_ACC + 512
L_ST = L_ACC + 1536
L_RACE = L_ACC + 1600
OB, AP, YP, ST, HB, X1, X2, QB = 0x0, 0x10000, 0x20000, 0x30000, 0x32000, 0x34000, 0x38000, 0x3c000
LSTRIDE = 0x40000
QB0 = 0x80000
WS_BYTES = 0x84000
TS_OFF = 0x100000

sW, sG, sI, sHH, sB = "s3", "s4", "s5", "s6", "s7"
rK, rV, rWS, rX, rWQ, rWO, rW1, rW2, rB1, rB2, rOUT, rDBG = [f"s[{k}:{k+3}]" for k in range(8, 56, 4)]
mA, mAlo, m16, m8, sAlive, mOV = [f"s[{k}:{k+1}]" for k in range(56, 68, 2)]
sCnt, sMode, sLayer, sRot, sKVl, sSK, sSV, sT0, sT1, sT2 = [f"s{k}" for k in range(68, 78)]
sOown, sSTown, sOg, sSTg, sAPown, sAPg, sX1own, sX1g, sHown, sHg, sYPown, sYPg, sX2own, sX2g, sQown, sQg = [f"s{k}" for k in range(78, 94)]
sCopy, sT3, sTau = "s94", "s95", "s96"
mR8 = "s[0:1]"
sTS = "s[98:99]"
LIMIT = 100000
QREG = 56

C_SCALE = math.log2(math.e) / math.sqrt(128.0)
def f2u(x): return "0x%08x" % struct.unpack("<I", struct.pack("<f", x))[0]

def kloc(f):
    return ("l", f) if f < 12 else ("r", f"a[{4*(f-12)}:{4*(f-12)+3}]")
def vloc(f):
    if f < 13: return ("l", 12 + f)
    if f < 25: return ("r", f"a[{208+4*(f-13)}:{208+4*(f-13)+3}]")
    return ("r", f"v[{100+4*(f-25)}:{100+4*(f-25)+3}]")
def q4(b): return f"v[{b}:{b+3}]"
def q2(b): return f"v[{b}:{b+1}]"
FULL = "row_mask:0xf bank_mask:0xf"

class Gen:
    def __init__(s, kvpol="nt", wpol="", ts=False, lag=16, forceG=False, padend=0, padchain=0, padcyc=0,
                 dL=2, dG=3, gapL=1, gapG=2, race=1, copy=0, cpf=6, bar=1, dQ=1, cpf0=1, padbase=1, padq=0, pad2=0):
        s.A = Asm(); s.kvpol = kvpol; s.wpol = wpol; s.ts = ts; s.lag = lag; s.forceG = forceG
        s.padend = padend; s.padchain = padchain; s.padcyc = padcyc
        s.dL = dL; s.dG = dG; s.gapL = gapL; s.gapG = gapG; s.race = race; s.copy = copy; s.cpf = cpf; s.bar = bar; s.dQ = dQ; s.cpf0 = cpf0; s.padbase = padbase; s.padq = padq; s.pad2 = pad2
        s.tail = []
        s.hook = None
        s.nts = 0; s.inchain = False; s.ts0 = 0
    def stamp(s, name):
        if not s.ts: return
        A = s.A
        k = s.nts; s.nts += 1
        s.tsnames = getattr(s, "tsnames", []) + [name]
        if s.inchain:
            j = k - s.ts0
            assert j < 14
            A(f"s_memrealtime s[{20+2*j}:{21+2*j}]")
            return
        A(f"s_memrealtime {sTS}")
        A(f"s_lshl_b32 s97, {sLayer}, 5\ns_add_u32 m0, s97, {k}")
        A("s_waitcnt lgkmcnt(0)")
        A.ds_done = A.ds_issued
        A(f"v_writelane_b32 v12, s98, m0")
    def ts_flush(s, zero_only=False):
        if not s.ts: return
        A = s.A
        if not zero_only:
            A("s_waitcnt lgkmcnt(0)")
            A.ds_done = A.ds_issued
            A(f"s_lshl_b32 s97, {sLayer}, 5")
            for j in range(14):
                A(f"s_add_u32 m0, s97, {s.ts0 + j}\nv_writelane_b32 v12, s{20+2*j}, m0")
        for j in range(14): A(f"s_mov_b32 s{20+2*j}, 0")
    def spin_until(s, n, clock="s_memrealtime", base="s97"):
        A = s.A; l = A.newlabel("L_spin")
        A.label(l)
        A(f"{clock} s[98:99]\ns_waitcnt lgkmcnt(0)\ns_sub_u32 s98, s98, {base}\ns_cmp_lt_u32 s98, {n}\ns_cbranch_scc1 {l}")
    def mode_test(s):
        s.A(f"s_cmp_eq_u32 {sMode}, 0")
    def publish(s, stores, tested=False):
        A = s.A
        if isinstance(stores, str): stores = [stores]
        slow = A.newlabel("L_slow"); back = A.newlabel("L_back")
        if not tested: s.mode_test()
        A(f"s_cbranch_scc1 {slow}")
        for t in stores: A(t.format(pol=""))
        A.label(back)
        s.tail.append(f"{slow}:\n" + "".join("    " + l + "\n" for t in stores for l in t.format(pol="sc1").split("\n")) + f"    s_branch {back}")
    def poll(s, issue, nld, regs, tmp, depth, gap):
        A = s.A
        for p in range(depth - 1):
            issue()
            if gap: A(f"s_sleep {gap}")
        lab = A.newlabel("L_poll"); A.label(lab)
        issue()
        A(f"s_add_u32 {sCnt}, {sCnt}, 1")
        A(f"s_cmp_lt_u32 {sCnt}, {LIMIT}")
        A(f"s_cselect_b64 {sAlive}, -1, 0")
        A(f"s_waitcnt vmcnt({(depth-1)*nld})")
        regs = list(regs)
        if len(regs) % 2 == 0:
            A(f"v_max_u32 v{tmp}, v{regs[0]}, v{regs[1]}"); rest = regs[2:]
        else:
            A(f"v_max3_u32 v{tmp}, v{regs[0]}, v{regs[1]}, v{regs[2]}"); rest = regs[3:]
        for k in range(0, len(rest), 2):
            A(f"v_max3_u32 v{tmp}, v{tmp}, v{rest[k]}, v{rest[k+1]}")
        A(f"v_cmp_eq_u32 vcc, -1, v{tmp}")
        A(f"s_and_b64 vcc, vcc, {sAlive}")
        A(f"s_cbranch_scc1 {lab}")
    def drain(s):
        s.A("s_waitcnt vmcnt(0)")
    def tr_reads(s, tile, nsteps, base, addr="v8", step=256):
        for kk in range(nsteps):
            for hf in range(2):
                s.A.ds(f"ds_read_b64_tr_b16 {q2(base + 4*kk + 2*hf)}, {addr} offset:{tile + kk*step + hf*128}")
    def kv_load(s, kind, f):
        A = s.A
        if kind == "k":
            u, rem = f // 4, (f % 4) * 1024; loc = kloc(f); srd, vo, so = rK, "v6", sSK
        else:
            u, rem = f // 4, ((f % 4) >> 1) * 512 + (f & 1) * 128; loc = vloc(f); srd, vo, so = rV, "v7", sSV
        m0 = None
        if loc[0] == "l":
            m0 = loc[1]*1024 - rem
            if s.m0cur != m0: A(f"s_add_u32 m0, {sKVl}, {m0}")
        if f % 4 == 0:
            A(f"s_add_u32 {so}, {sRot}, {u*4096}")
            A(f"s_and_b32 {so}, {so}, 0xffff")
        if loc[0] == "r":
            return A.vm(f"buffer_load_dwordx4 {loc[1]}, {vo}, {srd}, {so} offen offset:{rem} {s.kvpol}")
        s.m0cur = m0 if not s.ts else None
        return A.vm(f"buffer_load_dwordx4 {vo}, {srd}, {so} offen offset:{rem} {s.kvpol} lds")
    def ln_pre(s, tile, red, sg=None):
        A = s.A
        if tile is not None: s.tr_reads(tile, 4, 16)
        A("v_bfe_u32 v84, v0, 2, 2")
        A("v_cmp_eq_u32 vcc, 2, v84")
        A("v_mov_b32 v85, 0x3f803f80")
        A(f"s_mul_i32 {sT0}, {sW}, 192\ns_add_u32 {sT0}, {sT0}, {red}")
        A("v_cndmask_b32 v32, 0, v85, vcc")
        for k in range(33, 36): A(f"v_mov_b32 v{k}, v32")
        if sg is not None:
            A(f"s_mov_b64 exec, {mR8}")
            A(f"buffer_load_dwordx4 v[32:35], v9, {rWS}, {sg} offen sc1")
            A("s_mov_b64 exec, -1")
        A(f"v_lshlrev_b32 v84, 2, v0\nv_add_u32 v84, {sT0}, v84")
        A(f"s_lshl_b32 {sT0}, {sW}, 4\ns_add_u32 {sT0}, {sT0}, {red + 768}")
        A("v_bfe_u32 v85, v0, 2, 1\nv_lshrrev_b32 v86, 5, v0\nv_lshlrev_b32 v85, 3, v85\nv_lshl_add_u32 v85, v86, 2, v85")
        A(f"v_add_u32 v85, {sT0}, v85")
        A(f"v_lshlrev_b32 v86, 3, v0\nv_and_b32 v87, 56, v86\nv_add_u32 v86, {red}, v86\nv_add_u32 v87, {red + 128}, v87")
        A(f"v_and_b32 v88, 8, v0\nv_add_u32 v88, {red + 768}, v88")
    def ln_mma(s):
        A = s.A
        A.wait_ds0()
        A("v_mfma_f32_16x16x32_bf16 v[52:55], v[32:35], v[32:35], 0")
        for c in range(4):
            A(f"v_mfma_f32_16x16x32_bf16 {q4(36+4*c)}, v[32:35], {q4(16+4*c)}, 0")
        A("s_mov_b32 s100, 0x00100001\ns_mov_b32 s101, 0x11") if False else None
        A(f"v_mov_b32_dpp v56, v52 quad_perm:[0,0,0,0] {FULL}")
        for c in range(1, 4): A(f"v_add_f32_dpp v56, v{52+c}, v56 quad_perm:[{c},{c},{c},{c}] {FULL}")
        A("s_mov_b32 exec_lo, 0x00100001\ns_mov_b32 exec_hi, 0x11")
        A.ds("ds_write_b32 v85, v56")
        A("s_mov_b32 exec_lo, -1\ns_mov_b32 exec_hi, 0xffff")
        A("v_add_f32 v36, v36, v41\nv_add_f32 v46, v46, v51\nv_add_f32 v36, v36, v46")
        A.ds("ds_write_b32 v84, v36")
        A("s_mov_b64 exec, -1")
        A.wait_ds0()
        A("s_barrier")
    def ln_final(s):
        A = s.A
        A.ds("ds_read2_b64 v[72:75], v88 offset0:0 offset1:2")
        st = A.ds("ds_read2_b64 v[76:79], v88 offset0:4 offset1:6")
        A.ds("ds_read2_b64 v[64:67], v86 offset0:0 offset1:24")
        A.ds("ds_read2_b64 v[68:71], v86 offset0:48 offset1:72")
        A.ds("ds_read2_b64 v[80:83], v87 offset0:0 offset1:24")
        A.ds("ds_read2_b64 v[84:87], v87 offset0:48 offset1:72")
        A.wait_ds(st)
        A("v_pk_add_f32 v[72:73], v[72:73], v[74:75]\nv_pk_add_f32 v[76:77], v[76:77], v[78:79]")
        A("v_pk_add_f32 v[72:73], v[72:73], v[76:77]")
        A(f"v_mul_f32 v74, {f2u(1/512)}, v73")
        A(f"v_mul_f32 v72, {f2u(1/512)}, v72")
        A("v_fma_f32 v72, -v74, v74, v72")
        A("v_max_f32 v72, 0, v72")
        A(f"v_add_f32 v72, {f2u(1e-5)}, v72")
        A("v_rsq_f32 v76, v72")
        A.wait_ds0()
        A("v_pk_add_f32 v[64:65], v[64:65], v[66:67]\nv_pk_add_f32 v[68:69], v[68:69], v[70:71]")
        A("v_pk_add_f32 v[80:81], v[80:81], v[82:83]\nv_pk_add_f32 v[84:85], v[84:85], v[86:87]")
        A("v_pk_add_f32 v[64:65], v[64:65], v[68:69]\nv_pk_add_f32 v[80:81], v[80:81], v[84:85]")
        A("v_pk_fma_f32 v[64:65], v[80:81], v[74:75], v[64:65] op_sel_hi:[1,0,1] neg_lo:[1,0,0] neg_hi:[1,0,0]")
        A("v_pk_mul_f32 v[64:65], v[64:65], v[76:77] op_sel_hi:[1,0]")
    def ln_poll(s, sg):
        A = s.A
        if s.bar: A("s_barrier")
        A(f"s_mov_b64 exec, {mR8}")
        def issue(): A(f"buffer_load_dwordx4 v[32:35], v9, {rWS}, {sg} offen sc1")
        s.poll(issue, 1, range(32, 36), 63, s.dL, s.gapL)
        A("s_mov_b64 exec, -1")
    def pair_off(s, dst, tmp, shift):
        s.A(f"v_lshlrev_b32 v{dst}, 2, v0\nv_and_b32 v{dst}, 28, v{dst}\nv_bfe_u32 v{tmp}, v0, 3, 1\nv_lshl_add_u32 v{dst}, v{tmp}, {shift}, v{dst}")
    def att_prefetchK(s):
        A = s.A
        s.stg = {}
        for f in range(8):
            s.stg[("k", f)] = (64 + 4*f, A.ds(f"ds_read_b128 {q4(64+4*f)}, v1 offset:{f*1024}"))
        for k in range(16, 32): A(f"v_mov_b32 v{k}, 0")
        A(f"v_mov_b32 v63, {f2u(C_SCALE)}")
    def attention(s, p1=None):
        A = s.A
        stg = s.stg
        free = [96]
        def ldsread(kind, f, slotreg):
            slot = kloc(f)[1] if kind == "k" else vloc(f)[1]
            if p1: A.wait_vm(p1.ids[(kind, f)])
            stg[(kind, f)] = (slotreg, A.ds(f"ds_read_b128 {q4(slotreg)}, v1 offset:{slot*1024}"))
        def operand(kind, f, ahead=0):
            loc = kloc(f) if kind == "k" else vloc(f)
            if loc[0] == "r":
                if p1: A.wait_vm(p1.ids[(kind, f)])
                return loc[1]
            reg, did = stg[(kind, f)]
            if did >= A.ds_done:
                last = max([d for (k2, f2), (r2, d) in stg.items() if k2 == kind and f <= f2 <= f + ahead] )
                A.wait_ds(last)
            return q4(reg)
        def build_aq(t):
            for k in range(4):
                A(f"v_mov_b32_dpp v{16+4*t+k}, v{QREG+k} quad_perm:[0,1,2,3] row_mask:0xf bank_mask:{1<<t:#x}")
        order = [0, 1, 3, 4, 5, 2] + list(range(6, 16))
        D = lambda n: 48 + 4 * (n % 3)
        vq = list(range(13))
        def dppsum(n, c):
            u = order[n]
            if c == 0: A(f"v_mul_f32_dpp v{32+u}, v{D(n)}, v63 quad_perm:[0,0,0,0] {FULL}")
            else: A(f"v_fmac_f32_dpp v{32+u}, v{D(n)+c}, v63 quad_perm:[{c},{c},{c},{c}] {FULL}")
        build_aq(0); build_aq(1)
        extra = []
        for n, u in enumerate(order):
            for t in range(4):
                op = operand("k", 4*u + t, 7 if u == 0 else 3)
                A(f"v_mfma_f32_16x16x32_bf16 {q4(D(n))}, {q4(16+4*t)}, {op}, {'0' if t == 0 else q4(D(n))}")
                if n == 0 and t < 2: build_aq(t + 2)
                if n >= 2: dppsum(n - 2, t)
                if extra: extra.pop(0)()
            if n == 0:
                for k in range(4): extra.append(lambda k=k: ldsread("k", 8 + k, 64 + 4*k))
            if n == 1: free += [80, 84, 88, 92]
            if n == 5: free += [64, 68, 72, 76]
            if n >= 1 and free and vq:
                extra.append(lambda f=vq.pop(0), r=free.pop(0): ldsread("v", f, r))
            if n >= 3 and n % 2 == 1:
                a, b = order[n-3], order[n-2]
                if n == 3: extra.append(lambda a=a, b=b: A(f"v_max_f32 v60, v{32+a}, v{32+b}"))
                else: extra.append(lambda a=a, b=b: A(f"v_max3_f32 v60, v60, v{32+a}, v{32+b}"))
            if p1: p1.issue_more(1)
        if s.hook: s.hook(1)
        if p1: A("s_barrier")
        for c in range(4): dppsum(14, c)
        while extra: extra.pop(0)()
        A(f"v_max_f32 v60, v60, v{32+order[14]}")
        for c in range(4): dppsum(15, c)
        A(f"v_max_f32 v60, v60, v{32+order[15]}")
        A("v_lshrrev_b32 v56, 5, v0\nv_and_b32 v57, 1, v0")
        A(f"v_max_f32_dpp v60, v60, v60 row_ror:4 {FULL}")
        A("v_lshlrev_b32 v56, 9, v56\nv_lshl_add_u32 v56, v57, 8, v56")
        A(f"v_max_f32_dpp v60, v60, v60 row_ror:8 {FULL}")
        A("v_and_b32 v57, 28, v0\nv_lshl_add_u32 v56, v57, 2, v56")
        A("v_max_f32_dpp v60, v60, v60 row_bcast:15 row_mask:0xa bank_mask:0xf")
        A(f"s_lshl_b32 {sT1}, {sW}, 10\ns_add_u32 {sT1}, {sT1}, {L_SO}")
        A("v_max_f32_dpp v60, v60, v60 row_bcast:31 row_mask:0xc bank_mask:0xf")
        A(f"v_add_u32 v56, {sT1}, v56")
        A(f"v_readlane_b32 {sT0}, v60, 63")
        A("v_and_b32 v57, 48, v0\nv_and_b32 v58, 3, v0")
        A(f"v_mov_b32 v62, {sT0}")
        def expo(u, part):
            t = 28 + (u & 1)
            if part == 0: A(f"v_sub_f32 v{t}, v{32+u}, v62")
            elif part == 1: A(f"v_exp_f32 v{t}, v{t}")
            elif part == 2: A(f"v_cvt_pk_bf16_f32 v{32+u}, v{t}, v{t}")
            elif u == 0: A(f"v_mov_b32 v63, v{t}")
            else: A(f"v_add_f32 v63, v63, v{t}")
        B = lambda k: 16 + 4 * (k % 3)
        def band(k, c):
            u, sidx = k >> 1, k & 1
            n = (4*c - 2 - 8*sidx) % 16
            A(f"v_and_b32_dpp v{B(k)+c}, v{32+u}, v{2+c} row_ror:{n} {FULL}")
        expo(0, 0); expo(1, 0); expo(0, 1); expo(1, 1); expo(0, 2); expo(0, 3); expo(1, 2)
        for c in range(4): band(0, c)
        expo(1, 3)
        if s.hook: s.hook(2)
        for c in range(4): band(1, c)
        fill = []
        fill.append("v_lshl_add_u32 v57, v58, 2, v57")
        fill.append("v_bfe_u32 v58, v0, 2, 2")
        fill.append("v_add_u32 v57, v57, v58")
        fill.append(f"v_lshlrev_b32 v57, 2, v57")
        fill.append(f"v_add_u32 v57, {L_SO}, v57")
        fill.append(f"s_lshl_b32 {sT1}, {sW}, 3\ns_add_u32 {sT1}, {sT1}, {L_ST}")
        fill.append(f"v_mov_b32 v58, {sT1}")
        red = [f"v_add_f32_dpp v63, v63, v63 row_ror:4 {FULL}",
               f"v_add_f32_dpp v63, v63, v63 row_ror:8 {FULL}",
               "v_add_f32_dpp v63, v63, v63 row_bcast:15 row_mask:0xa bank_mask:0xf",
               "v_add_f32_dpp v63, v63, v63 row_bcast:31 row_mask:0xc bank_mask:0xf"]
        for u in range(16):
            if p1:
                p1.issue_upto(4*u + 3 + s.lag)
                if u == s.cpf: p1.code_prefetch()
            for j in range(4):
                f = 4*u + j; k = 2*u + (j >> 1)
                op = operand("v", f, 3)
                o = 48 + 4*(j & 1)
                first = (u == 0 and j < 2)
                A(f"v_mfma_f32_16x16x32_bf16 {q4(o)}, {op}, {q4(B(k))}, {'0' if first else q4(o)}")
                if k + 2 < 32:
                    band(k + 2, 2*(j & 1)); band(k + 2, 2*(j & 1) + 1)
                if u + 2 < 16: expo(u + 2, j)
                elif red and (j % 2 == 0): A(red.pop(0))
                if u >= 14 or (u >= 4 and j == 0):
                    if fill: A(fill.pop(0))
                if vloc(f)[0] == "l":
                    free.append(stg[("v", f)][0])
                    if vq: ldsread("v", vq.pop(0), free.pop(0))
        assert not red and not fill, (red, fill)
    def build(s):
        A = s.A
        s.m0cur = None
        A.raw(HEADER.rstrip())
        A.raw("; @launch grid=(256,1,1) block=(256,1,1) lds=163840")
        A.raw('.amdgcn_target "amdgcn-amd-amdhsa--gfx950"\n.text')
        A.raw(f".globl {NAME}_kernel\n.p2align 8\n.type {NAME}_kernel,@function\n{NAME}_kernel:")
        if s.padbase == 0: A("s_memrealtime s[98:99]")
        A("s_load_dwordx16 s[56:71], s[0:1], 0")
        A("s_load_dwordx8 s[72:79], s[0:1], 64")
        A("s_load_dwordx2 s[80:81], s[0:1], 96")
        A("s_cmp_ge_u32 s2, 256\ns_cbranch_scc1 L_end")
        if s.ts: A("v_mov_b32 v12, 0")
        if s.cpf0:
            A("s_getpc_b64 s[20:21]")
            A.label("L_pc0")
            A.raw(f"    s_mov_b32 s22, L_code_end-{NAME}_kernel")
            A("s_and_b32 s20, s20, 0xffffff00")
            A("s_mov_b32 s23, 0x20000\nv_lshlrev_b32 v2, 4, v0\ns_movk_i32 s24, 0x1000\ns_movk_i32 s25, 0x2000\ns_movk_i32 s26, 0x3000\ns_movk_i32 s27, 0x4000")
            for j, so in enumerate(("0", "s24", "s25", "s26", "s27")):
                A.vm(f"buffer_load_dwordx4 {q4(100+4*j)}, v2, {rX}, {so} offen")
        A("v_lshrrev_b32 v1, 6, v0")
        A("v_and_b32 v0, 63, v0")
        A(f"v_readfirstlane_b32 {sW}, v1")
        A(f"s_and_b32 {sG}, s2, 7\ns_lshr_b32 {sI}, s2, 3\ns_lshr_b32 {sHH}, s2, 6\ns_bfe_u32 {sB}, s2, 0x10005")
        A("v_and_b32 v16, 3, v0")
        A("v_bfe_u32 v17, v0, 2, 2")
        A("v_lshrrev_b32 v18, 4, v0")
        A("v_lshlrev_b32 v6, 4, v16\nv_lshl_add_u32 v6, v17, 8, v6\nv_lshl_add_u32 v6, v18, 6, v6")
        A("v_and_b32 v19, 7, v0\nv_bfe_u32 v20, v0, 3, 1")
        A("v_lshlrev_b32 v7, 4, v19\nv_lshl_add_u32 v7, v20, 8, v7\nv_lshl_add_u32 v7, v18, 10, v7")
        A(f"s_lshl_b32 s82, {sB}, 5\ns_lshl_b32 s83, {sG}, 2\ns_add_u32 s82, s82, s83\ns_add_u32 s82, s82, {sHH}\ns_lshl_b32 s82, s82, 20")
        A(f"s_and_b32 s83, {sI}, 3\ns_lshl_b32 s83, s83, 18\ns_add_u32 s82, s82, s83\ns_lshl_b32 s83, {sW}, 16\ns_add_u32 s82, s82, s83")
        A(f"s_lshl_b32 s84, s2, 2\ns_add_u32 s84, s84, {sW}\ns_and_b32 s84, s84, 15\ns_lshl_b32 s84, s84, 12")
        A(f"s_mul_i32 s85, {sW}, {NLDS*1024}\ns_add_u32 s85, s85, {L_KV}")
        A("s_mov_b32 s10, 0x10000\ns_mov_b32 s11, 0x20000\ns_mov_b32 m0, s85")
        A("s_waitcnt lgkmcnt(0)")
        if s.padbase == 0: A("s_mov_b32 s97, s98")
        if s.padbase == 2: A("s_memrealtime s[98:99]\ns_waitcnt lgkmcnt(0)\ns_mov_b32 s97, s98")
        A("s_add_u32 s8, s58, s82\ns_addc_u32 s9, s59, 0")
        ids = {}
        for f in range(4):
            ids[("k", f)] = A.vm(f"buffer_load_dwordx4 v6, {rK}, s84 offen offset:{f*1024} {s.kvpol} lds")
        A("s_add_u32 s12, s60, s82\ns_addc_u32 s13, s61, 0\ns_mov_b32 s14, 0x10000\ns_mov_b32 s15, 0x20000")
        def srd(k, lo, n):
            A(f"s_mov_b32 s{k}, s{lo}\ns_mov_b32 s{k+1}, s{lo+1}\ns_mov_b32 s{k+2}, {n}\ns_mov_b32 s{k+3}, 0x20000")
        srd(16, 80, WS_BYTES if not s.ts else TS_OFF + 0x40000)
        srd(20, 56, 2048); srd(24, 62, 4 << 20); srd(28, 64, 4 << 20); srd(32, 68, 512*2752)
        A(f"s_mul_i32 s83, {sG}, {176*1024}\ns_add_u32 s36, s72, s83\ns_addc_u32 s37, s73, 0")
        A(f"s_sub_u32 s38, {1376*1024}, s83\ns_min_u32 s38, s38, {176*1024}\ns_mov_b32 s39, 0x20000")
        srd(40, 70, 2752); srd(44, 74, 1024); srd(48, 76, 2048); srd(52, 78, 256)
        A(f"s_mov_b32 {sRot}, s84\ns_mov_b32 {sKVl}, s85")
        A("s_mov_b32 s56, 0x00030003\ns_mov_b32 s57, 0x00030003\ns_mov_b32 s58, 0x00030003\ns_mov_b32 s59, 0")
        A("s_mov_b32 s60, 0xffff\ns_mov_b32 s61, 0\ns_mov_b32 s62, 0xff\ns_mov_b32 s63, 0")
        A("s_mov_b32 s66, 0x33333333\ns_mov_b32 s67, 0xcccccccc")
        A(f"s_mov_b32 {sCnt}, 0\ns_mov_b32 {sMode}, 0\ns_mov_b32 {sLayer}, 0")
        A(f"s_mul_i32 {sTau}, {sG}, 11\ns_add_u32 {sTau}, {sTau}, {sI}")
        s.stamp("start")
        if (s.padend or s.padchain) and s.padbase == 1: A("s_memrealtime s[98:99]\ns_waitcnt lgkmcnt(0)\ns_mov_b32 s97, s98")
        A("v_mov_b32 v22, -1\nv_mov_b32 v23, -1")
        A(f"s_lshl_b32 {sT0}, s2, 11\ns_lshl_b32 {sT1}, {sW}, 9\ns_add_u32 {sT0}, {sT0}, {sT1}")
        A("v_lshlrev_b32 v21, 3, v0")
        A.vm(f"buffer_store_dwordx2 v[22:23], v21, {rWS}, {sT0} offen sc1")
        A("v_and_b32 v27, 1, v0")
        A("v_lshrrev_b32 v83, 1, v0\nv_lshlrev_b32 v89, 4, v27")
        A("v_lshl_add_u32 v80, v83, 13, v89\nv_lshl_add_u32 v81, v83, 10, v89\nv_mul_u32_u24 v82, 2752, v83\nv_add_u32 v82, v82, v89")
        A(f"s_lshl_b32 {sT2}, {sI}, 5")
        A(f"s_lshl_b32 {sT0}, {sW}, 20\ns_lshl_b32 {sT1}, {sG}, 10\ns_add_u32 {sT0}, {sT0}, {sT1}\ns_add_u32 {sT0}, {sT0}, {sT2}")
        A(f"s_lshl_b32 {sT1}, {sW}, 12")
        for j in range(4):
            A(f"s_add_u32 m0, {sT1}, {L_WQ + j*1024}")
            A.vm(f"buffer_load_dwordx4 v80, {rWQ}, {sT0} offen {s.wpol} lds")
            A(f"s_add_u32 {sT0}, {sT0}, {32*8192}")
        A(f"s_lshl_b32 {sT0}, {sW}, 8")
        A(f"v_and_b32 v9, 0x1f0, v6\nv_and_b32 v28, 0x100, v9\nv_mad_u32_u24 v9, v28, 3, v9\nv_add_u32 v9, {sT0}, v9")
        A("s_mov_b32 s0, 0x00ff00ff\ns_mov_b32 s1, 0x00ff00ff")
        s.ln_pre(None, L_SO)
        A(f"s_mov_b64 exec, {mR8}")
        A.vm(f"buffer_load_dwordx4 v[32:35], v9, {rX}, 0 offen")
        A("s_mov_b64 exec, -1")
        A(f"s_lshl_b32 {sT0}, {sG}, 5\ns_add_u32 {sT0}, {sT0}, {sI}\ns_lshl_b32 {sOown}, {sT0}, 8")
        A(f"s_lshl_b32 {sOg}, {sG}, 13\ns_lshl_b32 {sT0}, {sW}, 11\ns_add_u32 {sOg}, {sOg}, {sT0}")
        A(f"s_lshl_b32 {sT0}, {sG}, 2\ns_add_u32 {sT1}, {sT0}, {sHH}\ns_add_u32 {sT0}, {sT0}, {sW}")
        A(f"s_lshl_b32 {sSTg}, {sT0}, 7\ns_add_u32 {sSTg}, {sSTg}, {ST}")
        A(f"s_and_b32 {sT3}, {sI}, 7\ns_lshl_b32 {sSTown}, {sT3}, 3\ns_lshl_b32 {sT0}, {sT1}, 7\ns_add_u32 {sSTown}, {sSTown}, {sT0}\ns_add_u32 {sSTown}, {sSTown}, {ST}")
        A(f"s_lshl_b32 {sAPg}, {sT3}, 10\ns_lshl_b32 {sT0}, {sHH}, 14\ns_add_u32 {sAPg}, {sAPg}, {sT0}\ns_add_u32 {sAPg}, {sAPg}, {AP}")
        A(f"s_lshl_b32 {sT0}, {sG}, 7\ns_add_u32 {sAPown}, {sAPg}, {sT0}")
        A(f"s_add_u32 {sYPg}, {sAPg}, {YP-AP}\ns_add_u32 {sYPown}, {sAPown}, {YP-AP}")
        A(f"s_lshl_b32 {sT0}, {sT1}, 9\ns_lshl_b32 {sT3}, {sT3}, 5\ns_add_u32 {sQown}, {sT0}, {sT3}\ns_lshl_b32 {sT3}, {sB}, 8\ns_add_u32 {sQg}, {sT0}, {sT3}")
        A(f"s_add_u32 {sQown}, {sQown}, {QB0}\ns_add_u32 {sQg}, {sQg}, {QB0}")
        A(f"s_lshl_b32 {sX1g}, {sG}, 11\ns_add_u32 {sX1g}, {sX1g}, {X1}\ns_add_u32 {sX1own}, {sX1g}, {sT2}")
        A(f"s_add_u32 {sX2g}, {sX1g}, {X2-X1}\ns_add_u32 {sX2own}, {sX1own}, {X2-X1}")
        A(f"s_lshl_b32 {sHg}, {sG}, 10\ns_add_u32 {sHg}, {sHg}, {HB}\ns_lshl_b32 {sHown}, {sI}, 6\ns_add_u32 {sHown}, {sHown}, {sHg}")
        if s.race: A(f"s_lshl_b32 {sCopy}, {sW}, 13")
        else: A(f"s_getreg_b32 {sCopy}, hwreg(HW_REG_XCC_ID)\ns_bfe_u32 {sCopy}, {sCopy}, 0x10002\ns_xor_b32 {sCopy}, {sCopy}, {s.copy}\ns_lshl_b32 {sCopy}, {sCopy}, 13")
        A("v_lshlrev_b32 v24, 2, v19\nv_lshl_add_u32 v25, v20, 8, v24\nv_lshl_add_u32 v26, v20, 10, v24")
        A(f"s_mov_b64 exec, {m16}")
        A.vm(f"buffer_store_dword v22, v25, {rWS}, {sQown} offen sc1")
        A.vm(f"buffer_load_dword v13, v26, {rX}, {sT2} offen")
        A.vm(f"buffer_load_dword v15, v24, {rB2}, {sT2} offen")
        A(f"s_lshl_b32 {sT0}, {sTau}, 5")
        last = A.vm(f"buffer_load_dword v14, v24, {rB1}, {sT0} offen")
        A("s_mov_b64 exec, -1")
        s.m0cur = None
        for f in range(4, 16): ids[("k", f)] = s.kv_load("k", f)
        A(f"v_lshlrev_b32 v1, 4, v0\nv_add_u32 v1, {sKVl}, v1")
        A(f"s_lshl_b32 {sT0}, {sW}, 12")
        A(f"v_lshlrev_b32 v8, 3, v16\nv_lshl_add_u32 v8, v17, 5, v8\nv_lshl_add_u32 v10, v18, 8, v8\nv_lshl_add_u32 v8, v18, 10, v8\nv_add_u32 v8, {sT0}, v8")
        A("v_add_u32 v28, v16, v18\nv_and_b32 v28, 3, v28\nv_and_b32 v11, 4, v0\nv_lshlrev_b32 v11, 3, v11\nv_lshl_add_u32 v11, v28, 3, v11")
        A("v_mov_b32 v29, 0xffff\nv_mov_b32 v30, 0xffff0000\nv_cmp_eq_u32 vcc, 1, v27\nv_cndmask_b32 v29, v29, v30, vcc")
        for c in range(4):
            A(f"v_cmp_eq_u32 vcc, {c}, v17\nv_cndmask_b32 v{2+c}, 0, v29, vcc")
        A.wait_vm(last)
        s.tr_reads(L_WQ, 4, 16)
        s.ln_mma()
        skip = A.newlabel("L_skip")
        A(f"s_cmp_lg_u32 {sW}, 0\ns_cbranch_scc1 {skip}")
        A("v_mov_b32 v90, v80\nv_mov_b32 v91, v81\nv_mov_b32 v92, v82")
        A(f"s_mov_b64 exec, {m16}")
        s.ln_final()
        s.pair_off(68, 69, 8)
        A("v_cvt_pk_bf16_f32 v64, v64, v65\nv_min_u32 v64, -2, v64")
        A.vm(f"buffer_store_dword v64, v68, {rWS}, {sQown} offen sc1", optional=True)
        A(f"s_getreg_b32 {sT0}, hwreg(HW_REG_XCC_ID)\ns_and_b32 {sT0}, {sT0}, 15\ns_mul_i32 {sT1}, {sT0}, 6\ns_add_u32 {sT1}, {sT1}, 8")
        A(f"s_lshl_b64 s[100:101], 1, {sT1}\ns_cmp_lt_u32 {sT0}, 8\ns_cselect_b64 s[100:101], s[100:101], 0\ns_or_b32 s100, s100, 1")
        A(f"v_mov_b32 v76, s100\nv_mov_b32 v77, s101\ns_lshl_b32 {sT0}, {sG}, 5\nv_mov_b32 v78, {sT0}")
        A("s_mov_b64 exec, 1")
        A.vm(f"buffer_atomic_add_x2 v[76:77], v78, {rDBG}, 0 offen sc1", optional=True)
        A("s_mov_b64 exec, -1")
        A("v_mov_b32 v81, v91\nv_mov_b32 v82, v92")
        A.label(skip)
        A.ds_done = A.ds_issued
        s.stamp("q0pub")
        for f in range(16, 24): ids[("k", f)] = s.kv_load("k", f)
        A(f"s_lshl_b32 {sT2}, {sI}, 5")
        A(f"s_lshl_b32 {sT0}, {sG}, 19\ns_lshl_b32 {sT1}, {sW}, 17\ns_add_u32 {sT0}, {sT0}, {sT1}\ns_add_u32 {sT0}, {sT0}, {sT2}")
        A(f"s_lshl_b32 {sT1}, {sW}, 12")
        for j in range(4):
            A(f"s_add_u32 m0, {sT1}, {L_WO + j*1024}")
            A.vm(f"buffer_load_dwordx4 v81, {rWO}, {sT0} offen {s.wpol} lds")
            A(f"s_add_u32 {sT0}, {sT0}, {32*1024}")
        A(f"s_mul_i32 {sT0}, {sW}, {128*2752}\ns_lshl_b32 s100, {sTau}, 5\ns_add_u32 {sT0}, {sT0}, s100")
        A(f"s_cmp_lt_u32 {sI}, 11\ns_cselect_b32 s34, s34, 0")
        for j in range(4):
            A(f"s_add_u32 m0, {sT1}, {L_W1 + j*1024}")
            A.vm(f"buffer_load_dwordx4 v82, {rW1}, {sT0} offen {s.wpol} lds")
            A(f"s_add_u32 {sT0}, {sT0}, {32*2752}")
        A(f"s_lshl_b32 {sT0}, {sW}, 16\ns_add_u32 {sT0}, {sT0}, {sT2}\nv_add_u32 v81, {sT0}, v81\nv_add_u32 v82, 0x8000, v81")
        A(f"s_lshl_b32 {sT1}, {sW}, 11")
        for j in range(2):
            A(f"s_add_u32 m0, {sT1}, {L_W2 + j*1024}")
            A.vm(f"buffer_load_dwordx4 v{81+j}, {rW2}, 0 offen {s.wpol} lds")
        s.m0cur = None
        for f in range(24, 36): ids[("k", f)] = s.kv_load("k", f)
        A("v_lshlrev_b32 v70, 5, v0")
        A(f"s_mov_b64 exec, {m8}")
        chk = A.vm(f"buffer_load_dwordx2 v[72:73], v70, {rDBG}, 0 offen sc1")
        A("s_mov_b64 exec, -1")
        for f in range(36, 50): ids[("k", f)] = s.kv_load("k", f)
        A.wait_vm(chk)
        ok = A.newlabel("L_arr_ok"); lp = A.newlabel("L_arr")
        A(f"s_mov_b64 exec, {m8}")
        A.label(lp)
        A("v_and_b32 v74, 0xff, v72\nv_cmp_ne_u32 vcc, 32, v74")
        A(f"s_cbranch_vccz {ok}")
        A(f"s_sleep 4")
        A.vm(f"buffer_load_dwordx2 v[72:73], v70, {rDBG}, 0 offen sc1", optional=True)
        A(f"s_add_u32 {sCnt}, {sCnt}, 1\ns_cmp_lt_u32 {sCnt}, {LIMIT}\ns_waitcnt vmcnt(0)\ns_cbranch_scc1 {lp}")
        A.label(ok)
        A("s_mov_b64 exec, -1")
        A(f"v_readlane_b32 s100, v72, {sG}\nv_readlane_b32 s101, v73, {sG}")
        A(f"s_getreg_b32 {sT0}, hwreg(HW_REG_XCC_ID)\ns_and_b32 {sT0}, {sT0}, 15\ns_mul_i32 {sT1}, {sT0}, 6\ns_add_u32 {sT1}, {sT1}, 8")
        A(f"s_lshr_b64 s[100:101], s[100:101], {sT1}\ns_and_b32 s100, s100, 63\ns_cmp_eq_u32 s100, 32\ns_cselect_b32 {sMode}, 1, 0")
        A(f"s_cmp_lt_u32 {sT0}, 8\ns_cselect_b32 {sMode}, {sMode}, 0")
        if s.forceG: A(f"s_mov_b32 {sMode}, 0")
        A("v_and_b32 v62, 0xf0, v6")
        qid = A.vm(f"buffer_load_dwordx4 {q4(QREG)}, v62, {rWS}, {sQg} offen sc1")
        for f in range(50, 64): ids[("k", f)] = s.kv_load("k", f)
        class P1: pass
        p1 = P1(); p1.ids = ids; p1.next = 0
        def issue_upto(n):
            while p1.next <= min(n, 63):
                ids[("v", p1.next)] = s.kv_load("v", p1.next); p1.next += 1
        def code_prefetch():
            A("s_getpc_b64 s[20:21]")
            A.label("L_pc")
            A.raw("    s_add_u32 s20, s20, L_chain-L_pc\n    s_addc_u32 s21, s21, 0\n    s_mov_b32 s22, L_code_end-L_chain\n    s_and_b32 s20, s20, 0xffffffc0")
            A(f"s_lshl_b32 {sT0}, {sW}, 10\ns_add_u32 m0, {sT0}, {L_SO}\nv_lshlrev_b32 v59, 4, v0")
            for j in range(s.ncpf):
                A.vm(f"buffer_load_dwordx4 v59, {rX}, {sT0} offen lds")
                A(f"s_add_u32 {sT0}, {sT0}, 4096")
            s.m0cur = None
        s.ncpf = 3
        p1.issue_upto = issue_upto; p1.code_prefetch = code_prefetch
        p1.issue_more = lambda k: issue_upto(p1.next + k - 1)
        issue_upto(3)
        A.wait_vm(qid)
        ok = A.newlabel("L_q_ok"); lp = A.newlabel("L_q")
        A.label(lp)
        A(f"v_max_u32 v63, v{QREG}, v{QREG+1}\nv_max3_u32 v63, v63, v{QREG+2}, v{QREG+3}\nv_cmp_eq_u32 vcc, -1, v63")
        A(f"s_cbranch_vccz {ok}")
        A.vm(f"buffer_load_dwordx4 {q4(QREG)}, v62, {rWS}, {sQg} offen sc1", optional=True)
        A(f"s_add_u32 {sCnt}, {sCnt}, 1\ns_cmp_lt_u32 {sCnt}, {LIMIT}\ns_waitcnt vmcnt(0)\ns_cbranch_scc1 {lp}")
        A.label(ok)
        A(f"s_sub_u32 {sQown}, {sQown}, {QB0 - QB}\ns_sub_u32 {sQg}, {sQg}, {QB0 - QB}")
        s.stamp("q0got")
        s.att_prefetchK()
        s.attention(p1)
        if s.race:
            A(f"v_mov_b32 v28, -1\nv_mov_b32 v29, {L_RACE}")
            A.ds("ds_write_b32 v29, v28")
        A.wait_vm0()
        if s.padchain: s.spin_until(s.padchain)
        s.inchain = True; s.ts0 = s.nts
        s.ts_flush(True)
        A.label("L_chain")
        A.hist = [parse("v_mfma_f32_16x16x32_bf16 v[48:51], v[0:3], v[0:3], v[48:51]"), parse("v_add_f32 v63, v63, v63"),
                  parse("v_mfma_f32_16x16x32_bf16 v[52:55], v[0:3], v[0:3], v[52:55]"), parse("s_branch L_chain")]
        s.stamp("pvdone")
        A("s_mov_b32 exec_lo, 0\ns_brev_b32 exec_hi, 1")
        A.ds("ds_write_b64 v58, v[62:63]")
        A(f"v_mov_b32 v26, {L_ST}\ns_mov_b64 exec, {mOV}")
        A.ds("ds_write_b128 v56, v[48:51]")
        A.ds("ds_write_b128 v56, v[52:55] offset:128")
        A("s_mov_b64 exec, -1")
        A(f"v_mov_b32 v26, {L_ST}\nv_lshlrev_b32 v27, 2, v0\nv_mov_b32 v29, 0")
        A(f"s_cmp_lg_u32 {sW}, 0")
        A.wait_ds0()
        A("s_barrier")
        A("s_cbranch_scc1 L_S2")
        A.ds("ds_read_b128 v[64:67], v26")
        st2 = A.ds("ds_read_b128 v[68:71], v26 offset:16")
        for blk in range(8):
            A.ds(f"ds_read2st64_b32 {q2(72+2*blk)}, v57 offset0:{2*blk} offset1:{2*blk+1}")
        A.wait_ds(st2)
        A("v_max3_f32 v88, v64, v66, v68\nv_max_f32 v88, v88, v70")
        for w in range(4): A(f"v_sub_f32 v{64+2*w}, v{64+2*w}, v88")
        for w in range(4): A(f"v_exp_f32 v{64+2*w}, v{64+2*w}")
        s.mode_test()
        A.wait_ds0()
        for w in range(4): A(f"v_pk_add_f32 {q2(72+4*w)}, {q2(72+4*w)}, {q2(74+4*w)}")
        A("v_pk_mul_f32 v[90:91], v[72:73], v[64:65] op_sel_hi:[1,0]")
        A("v_mul_f32 v89, v64, v65")
        for w in range(1, 4):
            A(f"v_pk_fma_f32 v[90:91], {q2(72+4*w)}, {q2(64+2*w)}, v[90:91] op_sel_hi:[1,0,1]")
            A(f"v_fmac_f32 v89, v{64+2*w}, v{65+2*w}")
        A("v_cvt_pk_bf16_f32 v90, v90, v91\nv_min_u32 v88, -2, v88\nv_min_u32 v90, -2, v90\nv_min_u32 v89, -2, v89")
        s.publish([f"buffer_store_dword v90, v27, {rWS}, {sOown} offen {{pol}}",
                   f"s_mov_b64 exec, 1\nbuffer_store_dwordx2 v[88:89], v29, {rWS}, {sSTown} offen {{pol}}\ns_mov_b64 exec, -1"], tested=True)
        A.label("L_S2")
        A.ds_done = A.ds_issued
        s.stamp("opub")
        s.tr_reads(L_WO, 4, 16)
        A("v_mov_b32 v72, 0\nv_mov_b32 v73, 0")
        A(f"s_lshl_b32 {sT0}, {sW}, 7\ns_add_u32 {sT0}, {sT0}, {RED2}")
        A(f"v_and_b32 v80, 15, v0\nv_lshrrev_b32 v81, 5, v0\nv_lshlrev_b32 v80, 2, v80\nv_lshl_add_u32 v80, v81, 6, v80\nv_add_u32 v80, {sT0}, v80")
        A(f"v_lshlrev_b32 v81, 4, v0\nv_add_u32 v82, {RED2}, v81")
        def issue():
            A(f"s_mov_b64 exec, {mR8}")
            A(f"buffer_load_dwordx2 v[72:73], v11, {rWS}, {sSTg} offen sc1")
            A("s_mov_b64 exec, -1")
            A(f"buffer_load_dwordx4 v[32:35], v6, {rWS}, {sOg} offen sc1")
            A(f"buffer_load_dwordx4 v[36:39], v6, {rWS}, {sOg} offen offset:1024 sc1")
        s.poll(issue, 3, list(range(32, 40)) + [72, 73], 74, s.dL, s.gapL)
        s.stamp("ogot")
        A.wait_ds0()
        side = [f"v_max_f32_dpp v74, v72, v72 quad_perm:[1,0,3,2] {FULL}",
                f"v_max_f32_dpp v74, v74, v74 quad_perm:[2,3,0,1] {FULL}",
                "v_sub_f32 v75, v72, v74", "v_exp_f32 v75, v75", "v_mul_f32 v76, v75, v73",
                f"v_add_f32_dpp v76, v76, v76 quad_perm:[1,0,3,2] {FULL}",
                f"v_add_f32_dpp v76, v76, v76 quad_perm:[2,3,0,1] {FULL}",
                "v_rcp_f32 v76, v76"]
        for b in range(2):
            for c in range(4):
                A(f"v_mfma_f32_16x16x32_bf16 {q4(40+16*b+4*c)}, {q4(32+4*b)}, {q4(16+4*c)}, 0")
                A(side.pop(0))
        A("v_mul_f32 v75, v75, v76")
        A("v_add_f32 v40, v40, v45\nv_add_f32 v50, v50, v55\nv_add_f32 v40, v40, v50")
        A(f"v_mul_f32_dpp v78, v75, v40 row_newbcast:0 {FULL}")
        A("v_add_f32 v56, v56, v61\nv_add_f32 v66, v66, v71\nv_add_f32 v56, v56, v66")
        A(f"v_mul_f32_dpp v79, v75, v56 row_newbcast:4 {FULL}")
        A("v_permlane32_swap_b32 v78, v79\nv_add_f32 v78, v78, v79\nv_mov_b32 v79, v78")
        A("v_permlane16_swap_b32 v78, v79\nv_add_f32 v78, v78, v79")
        A.ds("ds_write_b32 v80, v78")
        A(f"s_cmp_lg_u32 {sW}, 0")
        s.drain()
        A.wait_ds0()
        A("s_barrier")
        A("s_cbranch_scc1 L_S3")
        A(f"s_mov_b64 exec, {m8}")
        for w in range(4): A.ds(f"ds_read_b128 {q4(64+4*w)}, v82 offset:{128*w}")
        A(f"s_add_u32 {sT0}, {sAPown}, 8192")
        A.wait_ds(A.ds_issued - 3)
        A("v_pk_add_f32 v[64:65], v[64:65], v[68:69]\nv_pk_add_f32 v[66:67], v[66:67], v[70:71]")
        A.wait_ds0()
        A("v_pk_add_f32 v[72:73], v[72:73], v[76:77]\nv_pk_add_f32 v[74:75], v[74:75], v[78:79]")
        A("v_pk_add_f32 v[64:65], v[64:65], v[72:73]\nv_pk_add_f32 v[66:67], v[66:67], v[74:75]")
        for k in range(64, 68): A(f"v_min_u32 v{k}, -2, v{k}")
        A(f"buffer_store_dwordx4 v[64:67], v81, {rWS}, {sAPown} offen sc1")
        A(f"buffer_store_dwordx4 v[64:67], v81, {rWS}, {sT0} offen sc1")
        A("s_mov_b64 exec, -1")
        s.stamp("appub")
        A.label("L_S3")
        A.ds_done = A.ds_issued
        s.ln_pre(L_W1, RED4, sX1g)
        if s.race: A(f"s_lshl_b32 {sT0}, {sLayer}, 1\ns_add_u32 {sT0}, {sT0}, {sW}\ns_cmp_lt_u32 {sT0}, 2\ns_cselect_b32 {sT0}, 0, {sW}\ns_cmp_lg_u32 {sT0}, 0")
        else: A(f"s_cmp_lg_u32 {sW}, 0")
        A("s_cbranch_scc1 L_S4")
        def xreduce(sg, addb2):
            A(f"s_mov_b64 exec, {m16}")
            A("v_lshlrev_b32 v82, 3, v0")
            A("v_lshlrev_b32 v80, 16, v13\nv_and_b32 v81, 0xffff0000, v13")
            if addb2:
                A("v_lshlrev_b32 v90, 16, v15\nv_and_b32 v91, 0xffff0000, v15")
                A("v_pk_add_f32 v[80:81], v[80:81], v[90:91]")
            s.pair_off(83, 89, 10)
            A(f"s_add_u32 {sT0}, {sg}, {sCopy}")
            def issue():
                for j in range(8): A(f"buffer_load_dwordx2 {q2(64+2*j)}, v82, {rWS}, {sT0} offen offset:{j*128} sc1")
            s.poll(issue, 8, range(64, 80), 89, s.dG, s.gapG)
            A("v_pk_add_f32 v[90:91], v[64:65], v[66:67]\nv_pk_add_f32 v[92:93], v[68:69], v[70:71]")
            A("v_pk_add_f32 v[94:95], v[72:73], v[74:75]\nv_pk_add_f32 v[96:97], v[76:77], v[78:79]")
            A("v_pk_add_f32 v[90:91], v[90:91], v[92:93]\nv_pk_add_f32 v[94:95], v[94:95], v[96:97]")
            A("v_pk_add_f32 v[90:91], v[90:91], v[80:81]")
            s.mode_test()
            A("v_pk_add_f32 v[90:91], v[90:91], v[94:95]")
            A("v_cvt_pk_bf16_f32 v13, v90, v91")
        xreduce(sAPg, False)
        A("v_min_u32 v90, -2, v13")
        s.publish(f"buffer_store_dword v90, v83, {rWS}, {sX1own} offen {{pol}}", tested=True)
        A("s_mov_b64 exec, -1")
        s.stamp("x1pub")
        if s.race:
            A(f"s_memtime s[100:101]\ns_cmp_eq_u32 {sW}, 0\ns_cbranch_scc1 L_S4")
            A(f"v_mov_b32 v91, {L_RACE}\ns_waitcnt lgkmcnt(0)\nv_mov_b32 v90, s100")
            A("ds_write_b32 v91, v90")
        A.label("L_S4")
        A(f"s_cmp_ge_u32 {sI}, 11\ns_cbranch_scc1 L_S5")
        s.ln_poll(sX1g)
        s.stamp("xgot")
        s.ln_mma()
        A(f"s_cmp_lg_u32 {sW}, 0\ns_cbranch_scc1 L_S7")
        A(f"s_mov_b64 exec, {m16}")
        s.drain()
        s.ln_final_pre = None
        A(f"s_cmp_lt_u32 {sTau}, 86\ns_cselect_b32 {sT3}, -1, 0")
        k1 = -2.0 * math.sqrt(2.0 / math.pi) * math.log2(math.e)
        A("v_lshlrev_b32 v92, 16, v14\nv_and_b32 v93, 0xffff0000, v14")
        A(f"v_mov_b32 v94, {f2u(k1 * 0.044715)}\nv_mov_b32 v96, {f2u(k1)}")
        A("v_and_b32 v98, 3, v0\nv_lshlrev_b32 v98, 2, v98\nv_and_b32 v99, 4, v0\nv_lshl_add_u32 v98, v99, 3, v98\nv_and_b32 v99, 8, v0\nv_lshl_add_u32 v98, v99, 1, v98")
        s.ln_final()
        A("v_pk_add_f32 v[64:65], v[64:65], v[92:93]")
        A("v_pk_mul_f32 v[66:67], v[64:65], v[64:65]")
        A("v_pk_fma_f32 v[66:67], v[66:67], v[94:95], v[96:97] op_sel_hi:[1,0,0]")
        A("v_pk_mul_f32 v[66:67], v[66:67], v[64:65]")
        A("v_exp_f32 v66, v66\nv_exp_f32 v67, v67")
        A("v_add_f32 v66, 1.0, v66\nv_add_f32 v67, 1.0, v67")
        A("v_rcp_f32 v66, v66\nv_rcp_f32 v67, v67")
        s.mode_test()
        A("v_pk_mul_f32 v[64:65], v[64:65], v[66:67]")
        A(f"v_cvt_pk_bf16_f32 v64, v64, v65\nv_min_u32 v64, -2, v64\nv_and_b32 v64, {sT3}, v64")
        s.publish(f"buffer_store_dword v64, v98, {rWS}, {sHown} offen {{pol}}", tested=True)
        A("s_mov_b64 exec, -1")
        s.stamp("hpub")
        A.label("L_S5")
        A.ds_done = A.ds_issued
        A(f"s_cmp_lg_u32 {sW}, 0\ns_cbranch_scc1 L_S7")
        s.tr_reads(L_W2, 6, 16, "v10", 1024)
        for k in range(60, 64): A(f"v_mov_b32 v{k}, 0")
        A("v_and_b32 v86, 1, v0\nv_lshrrev_b32 v87, 4, v0\nv_lshlrev_b32 v87, 4, v87\nv_lshl_add_u32 v85, v86, 6, v87\nv_lshlrev_b32 v87, 1, v87\nv_lshl_add_u32 v84, v86, 4, v87")
        if s.race:
            A(f"v_mov_b32 v86, {L_RACE}")
            A.ds("ds_read_b32 v87, v86")
        def issue():
            A(f"s_mov_b64 exec, {mAlo}")
            A(f"buffer_load_dwordx4 v[60:63], v84, {rWS}, {sHg} offen offset:640 sc1")
            A(f"s_mov_b64 exec, {mA}")
            for kk in range(5): A(f"buffer_load_dwordx4 {q4(40+4*kk)}, v84, {rWS}, {sHg} offen offset:{kk*128} sc1")
        s.poll(issue, 6, range(40, 64), 88, s.dL, s.gapL)
        A("s_mov_b64 exec, -1")
        A.wait_ds0()
        for kk in range(6):
            d = 90 if kk % 2 == 0 else 94
            A(f"v_mfma_f32_16x16x32_bf16 {q4(d)}, {q4(16+4*kk)}, {q4(40+4*kk)}, {'0' if kk < 2 else q4(d)}")
            if s.race and kk == 0: A(f"v_readfirstlane_b32 {sT1}, v87")
        A(f"s_add_u32 {sT0}, {sYPown}, 8192")
        A(f"s_mov_b64 exec, {mA}")
        s.drain()
        A("v_pk_add_f32 v[90:91], v[90:91], v[94:95]\nv_pk_add_f32 v[92:93], v[92:93], v[96:97]")
        for k in range(90, 94): A(f"v_min_u32 v{k}, -2, v{k}")
        A(f"buffer_store_dwordx4 v[90:93], v85, {rWS}, {sYPown} offen sc1")
        A(f"buffer_store_dwordx4 v[90:93], v85, {rWS}, {sT0} offen sc1")
        A("s_mov_b64 exec, -1")
        s.stamp("yppub")
        A(f"s_cmp_eq_u32 {sLayer}, 0\ns_cselect_b32 {sT0}, 0, {sG}\ns_cmp_lg_u32 {sT0}, 0\ns_cbranch_scc1 L_done")
        if s.race:
            A(f"s_cmp_eq_u32 {sT1}, -1\ns_cselect_b32 {sT1}, s100, {sT1}")
            A(f"s_sub_u32 {sT1}, {sT1}, s100\ns_cmp_lt_i32 {sT1}, 0\ns_cselect_b32 {sT1}, 8192, 0")
            A(f"s_cmp_eq_u32 {sLayer}, 0\ns_cselect_b32 {sCopy}, {sT1}, {sCopy}")
        s.ln_pre(L_WQ, RED4, sX2g)
        xreduce(sYPg, True)
        A(f"s_cmp_lg_u32 {sLayer}, 0\ns_cbranch_scc1 L_fin")
        A("v_min_u32 v90, -2, v13")
        s.publish(f"buffer_store_dword v90, v83, {rWS}, {sX2own} offen {{pol}}")
        A("s_mov_b64 exec, -1")
        s.stamp("x2pub")
        A("s_branch L_S7b")
        A.label("L_S7")
        A(f"s_cmp_lg_u32 {sLayer}, 0\ns_cbranch_scc1 L_done")
        s.drain()
        s.ln_pre(L_WQ, RED4, sX2g)
        A.label("L_S7b")
        s.ln_poll(sX2g)
        s.stamp("xgot")
        s.ln_mma()
        A(f"s_cmp_lg_u32 {sW}, 0\ns_cbranch_scc1 L_S8")
        A(f"s_mov_b64 exec, {m16}")
        s.drain()
        s.pair_off(98, 99, 8)
        s.ln_final()
        s.mode_test()
        A("v_cvt_pk_bf16_f32 v64, v64, v65\nv_min_u32 v64, -2, v64")
        s.publish(f"buffer_store_dword v64, v98, {rWS}, {sQown} offen {{pol}}", tested=True)
        A("s_mov_b64 exec, -1")
        s.stamp("qpub")
        A.label("L_S8")
        A.ds_done = A.ds_issued
        s.ts_flush()
        if s.padq: s.spin_until(s.padq)
        s.att_prefetchK()
        A("v_and_b32 v62, 0xf0, v6")
        A(f"s_mov_b32 {sLayer}, 1")
        def issue(): A(f"buffer_load_dwordx4 {q4(QREG)}, v62, {rWS}, {sQg} offen sc1")
        s.poll(issue, 1, range(QREG, QREG + 4), 61, 1, 0)
        s.stamp("qgot")
        A(f"s_add_u32 s16, s16, {LSTRIDE}\ns_addc_u32 s17, s17, 0\ns_sub_u32 s18, s18, {LSTRIDE}")
        s.attention(None)
        if s.pad2: s.spin_until(s.pad2)
        A("s_branch L_chain")
        A.label("L_fin")
        A(f"s_lshl_b32 {sT0}, {sI}, 5")
        A(f"buffer_store_dword v13, v83, {rOUT}, {sT0} offen")
        A.label("L_done")
        if s.padend: s.spin_until(s.padend)
        if s.padcyc:
            A("s_memtime s[98:99]\ns_waitcnt lgkmcnt(0)\ns_mov_b32 s97, s98")
            s.spin_until(s.padcyc, "s_memtime")
        if s.ts:
            A("s_mov_b64 exec, -1")
            s.stamp("end")
            s.ts_flush()
            A(f"s_mul_i32 {sT0}, {sLayer}, {LSTRIDE}\ns_lshl_b32 {sT1}, s2, 2\ns_add_u32 {sT1}, {sT1}, {sW}\ns_lshl_b32 {sT1}, {sT1}, 8")
            A(f"s_add_u32 {sT1}, {sT1}, {TS_OFF}\ns_sub_u32 {sT1}, {sT1}, {sT0}\nv_lshlrev_b32 v16, 2, v0")
            A(f"buffer_store_dword v12, v16, {rWS}, {sT1} offen")
        A("L_end:\ns_endpgm")
        for t in s.tail: A.raw(t)
        A.raw("L_code_end:")
        A.raw('.section .rodata,"a"\n.p2align 6')
        A.raw(f".amdhsa_kernel {NAME}_kernel")
        A.raw("  .amdhsa_next_free_vgpr 512\n  .amdhsa_next_free_sgpr 102\n  .amdhsa_accum_offset 256\n  .amdhsa_group_segment_fixed_size 0")
        A.raw("  .amdhsa_kernarg_size 104\n  .amdhsa_user_sgpr_count 2\n  .amdhsa_user_sgpr_kernarg_segment_ptr 1\n  .amdhsa_system_sgpr_workgroup_id_x 1")
        A.raw("  .amdhsa_float_denorm_mode_32 3\n.end_amdhsa_kernel")
        return A.text()

if __name__ == "__main__":
    out = sys.argv[1] if len(sys.argv) > 1 else f"cdna_kernels/{NAME}.s"
    kw = {}
    for a in sys.argv[2:]:
        k, v = a.split("=")
        kw[k] = int(v) if v.lstrip("-").isdigit() else v
    g = Gen(**kw)
    open(out, "w").write(g.build())
    if kw.get("ts"): open(out + ".names", "w").write(" ".join(g.tsnames))
    print("wrote", out, "nops", g.A.nops)
```

```python
import sys, math, struct
from asmlib import Asm, parse

NAME = "interleave_layers__gqa_block_cached__dense_activation_gelu__decode"
HEADER = open("cdna_kernels/%s.s.ref" % NAME).read().split("; Override launch")[0]

L_WQ, L_WO, L_W1, L_W2 = 0, 16384, 32768, 49152
L_ACC = 55296
L_SO = 57344
L_KV = 61440
NLDS = 25
RED2 = L_ACC
RED4 = L_ACC + 512
L_ST = L_ACC + 1536
L_RACE = L_ACC + 1600
OB, AP, YP, ST, HB, X1, X2, QB = 0x0, 0x10000, 0x20000, 0x30000, 0x32000, 0x34000, 0x38000, 0x3c000
LSTRIDE = 0x40000
QB0 = 0x80000
WS_BYTES = 0x84000
TS_OFF = 0x100000

sW, sG, sI, sHH, sB = "s3", "s4", "s5", "s6", "s7"
rK, rV, rWS, rX, rWQ, rWO, rW1, rW2, rB1, rB2, rOUT, rDBG = [f"s[{k}:{k+3}]" for k in range(8, 56, 4)]
mA, mAlo, m16, m8, sAlive, mOV = [f"s[{k}:{k+1}]" for k in range(56, 68, 2)]
sCnt, sMode, sLayer, sRot, sKVl, sSK, sSV, sT0, sT1, sT2 = [f"s{k}" for k in range(68, 78)]
sOown, sSTown, sOg, sSTg, sAPown, sAPg, sX1own, sX1g, sHown, sHg, sYPown, sYPg, sX2own, sX2g, sQown, sQg = [f"s{k}" for k in range(78, 94)]
sCopy, sT3, sTau = "s94", "s95", "s96"
mR8 = "s[0:1]"
sTS = "s[98:99]"
LIMIT = 100000
QREG = 56

C_SCALE = math.log2(math.e) / math.sqrt(128.0)
def f2u(x): return "0x%08x" % struct.unpack("<I", struct.pack("<f", x))[0]

def kloc(f):
    return ("l", f) if f < 12 else ("r", f"a[{4*(f-12)}:{4*(f-12)+3}]")
def vloc(f):
    if f < 13: return ("l", 12 + f)
    if f < 25: return ("r", f"a[{208+4*(f-13)}:{208+4*(f-13)+3}]")
    return ("r", f"v[{100+4*(f-25)}:{100+4*(f-25)+3}]")
def q4(b): return f"v[{b}:{b+3}]"
def q2(b): return f"v[{b}:{b+1}]"
FULL = "row_mask:0xf bank_mask:0xf"

class Gen:
    def __init__(s, kvpol="nt", wpol="", ts=False, lag=16, forceG=False, padend=0, padchain=0, padcyc=0,
                 dL=2, dG=3, gapL=1, gapG=2, race=1, copy=0, cpf=6, bar=1, dQ=1, cpf0=1, padbase=1, padq=0, pad2=0, vpol=None, early=0, touch=1, s7at=40, tilesat=48, chkv=12, qv=24):
        s.A = Asm(); s.kvpol = kvpol; s.wpol = wpol; s.ts = ts; s.lag = lag; s.forceG = forceG
        s.padend = padend; s.padchain = padchain; s.padcyc = padcyc
        s.dL = dL; s.dG = dG; s.gapL = gapL; s.gapG = gapG; s.race = race; s.copy = copy; s.cpf = cpf; s.bar = bar; s.dQ = dQ; s.cpf0 = cpf0; s.padbase = padbase; s.padq = padq; s.pad2 = pad2; s.early = early; s.touch = touch; s.s7at = s7at; s.tilesat = tilesat; s.chkv = chkv; s.qv = qv; s.kvpol = s.kvpol.replace('+', ' '); s.wpol = s.wpol.replace('+', ' '); s.vpol = s.kvpol if vpol is None else vpol.replace('+', ' ')
        s.tail = []
        s.hook = None
        s.nts = 0; s.inchain = False; s.ts0 = 0
    def stamp(s, name):
        if not s.ts: return
        A = s.A
        k = s.nts; s.nts += 1
        s.tsnames = getattr(s, "tsnames", []) + [name]
        if s.inchain:
            j = k - s.ts0
            assert j < 14
            A(f"s_memrealtime s[{20+2*j}:{21+2*j}]")
            return
        A(f"s_memrealtime {sTS}")
        A(f"s_lshl_b32 s97, {sLayer}, 5\ns_add_u32 m0, s97, {k}")
        A("s_waitcnt lgkmcnt(0)")
        A.ds_done = A.ds_issued
        A(f"v_writelane_b32 v12, s98, m0")
    def ts_flush(s, zero_only=False):
        if not s.ts: return
        A = s.A
        if not zero_only:
            A("s_waitcnt lgkmcnt(0)")
            A.ds_done = A.ds_issued
            A(f"s_lshl_b32 s97, {sLayer}, 5")
            for j in range(14):
                A(f"s_add_u32 m0, s97, {s.ts0 + j}\nv_writelane_b32 v12, s{20+2*j}, m0")
        for j in range(14): A(f"s_mov_b32 s{20+2*j}, 0")
    def spin_until(s, n, clock="s_memrealtime", base="s97"):
        A = s.A; l = A.newlabel("L_spin")
        A.label(l)
        A(f"{clock} s[98:99]\ns_waitcnt lgkmcnt(0)\ns_sub_u32 s98, s98, {base}\ns_cmp_lt_u32 s98, {n}\ns_cbranch_scc1 {l}")
    def mode_test(s):
        s.A(f"s_cmp_eq_u32 {sMode}, 0")
    def publish(s, stores, tested=False):
        A = s.A
        if isinstance(stores, str): stores = [stores]
        slow = A.newlabel("L_slow"); back = A.newlabel("L_back")
        if not tested: s.mode_test()
        A(f"s_cbranch_scc1 {slow}")
        for t in stores: A(t.format(pol=""))
        A.label(back)
        s.tail.append(f"{slow}:\n" + "".join("    " + l + "\n" for t in stores for l in t.format(pol="sc1").split("\n")) + f"    s_branch {back}")
    def poll(s, issue, nld, regs, tmp, depth, gap):
        A = s.A
        for p in range(depth - 1):
            issue()
            if gap: A(f"s_sleep {gap}")
        lab = A.newlabel("L_poll"); A.label(lab)
        issue()
        A(f"s_add_u32 {sCnt}, {sCnt}, 1")
        A(f"s_cmp_lt_u32 {sCnt}, {LIMIT}")
        A(f"s_cselect_b64 {sAlive}, -1, 0")
        A(f"s_waitcnt vmcnt({(depth-1)*nld})")
        regs = list(regs)
        if len(regs) % 2 == 0:
            A(f"v_max_u32 v{tmp}, v{regs[0]}, v{regs[1]}"); rest = regs[2:]
        else:
            A(f"v_max3_u32 v{tmp}, v{regs[0]}, v{regs[1]}, v{regs[2]}"); rest = regs[3:]
        for k in range(0, len(rest), 2):
            A(f"v_max3_u32 v{tmp}, v{tmp}, v{rest[k]}, v{rest[k+1]}")
        A(f"v_cmp_eq_u32 vcc, -1, v{tmp}")
        A(f"s_and_b64 vcc, vcc, {sAlive}")
        A(f"s_cbranch_scc1 {lab}")
    def drain(s):
        s.A("s_waitcnt vmcnt(0)")
    def tr_reads(s, tile, nsteps, base, addr="v8", step=256):
        for kk in range(nsteps):
            for hf in range(2):
                s.A.ds(f"ds_read_b64_tr_b16 {q2(base + 4*kk + 2*hf)}, {addr} offset:{tile + kk*step + hf*128}")
    def kv_load(s, kind, f):
        A = s.A
        if kind == "k":
            u, rem = f // 4, (f % 4) * 1024; loc = kloc(f); srd, vo, so = rK, "v6", sSK
        else:
            u, rem = f // 4, ((f % 4) >> 1) * 512 + (f & 1) * 128; loc = vloc(f); srd, vo, so = rV, "v7", sSV
        m0 = None
        pol = s.kvpol if kind == "k" else s.vpol
        if loc[0] == "l":
            m0 = loc[1]*1024 - rem
            if s.m0cur != m0: A(f"s_add_u32 m0, {sKVl}, {m0}")
        if f % 4 == 0:
            A(f"s_add_u32 {so}, {sRot}, {u*4096}")
            A(f"s_and_b32 {so}, {so}, 0xffff")
        if loc[0] == "r":
            return A.vm(f"buffer_load_dwordx4 {loc[1]}, {vo}, {srd}, {so} offen offset:{rem} {pol}")
        s.m0cur = m0 if not s.ts else None
        return A.vm(f"buffer_load_dwordx4 {vo}, {srd}, {so} offen offset:{rem} {pol} lds")
    def ln_pre(s, tile, red, sg=None):
        A = s.A
        if tile is not None: s.tr_reads(tile, 4, 16)
        A("v_bfe_u32 v84, v0, 2, 2")
        A("v_cmp_eq_u32 vcc, 2, v84")
        A("v_mov_b32 v85, 0x3f803f80")
        A(f"s_mul_i32 {sT0}, {sW}, 192\ns_add_u32 {sT0}, {sT0}, {red}")
        A("v_cndmask_b32 v32, 0, v85, vcc")
        for k in range(33, 36): A(f"v_mov_b32 v{k}, v32")
        if sg is not None:
            A(f"s_mov_b64 exec, {mR8}")
            A(f"buffer_load_dwordx4 v[32:35], v9, {rWS}, {sg} offen sc1")
            A("s_mov_b64 exec, -1")
        A(f"v_lshlrev_b32 v84, 2, v0\nv_add_u32 v84, {sT0}, v84")
        A(f"s_lshl_b32 {sT0}, {sW}, 4\ns_add_u32 {sT0}, {sT0}, {red + 768}")
        A("v_bfe_u32 v85, v0, 2, 1\nv_lshrrev_b32 v86, 5, v0\nv_lshlrev_b32 v85, 3, v85\nv_lshl_add_u32 v85, v86, 2, v85")
        A(f"v_add_u32 v85, {sT0}, v85")
        A(f"v_lshlrev_b32 v86, 3, v0\nv_and_b32 v87, 56, v86\nv_add_u32 v86, {red}, v86\nv_add_u32 v87, {red + 128}, v87")
        A(f"v_and_b32 v88, 8, v0\nv_add_u32 v88, {red + 768}, v88")
    def ln_mma(s):
        A = s.A
        A.wait_ds0()
        A("v_mfma_f32_16x16x32_bf16 v[52:55], v[32:35], v[32:35], 0")
        for c in range(4):
            A(f"v_mfma_f32_16x16x32_bf16 {q4(36+4*c)}, v[32:35], {q4(16+4*c)}, 0")
        A("s_mov_b32 s100, 0x00100001\ns_mov_b32 s101, 0x11") if False else None
        A(f"v_mov_b32_dpp v56, v52 quad_perm:[0,0,0,0] {FULL}")
        for c in range(1, 4): A(f"v_add_f32_dpp v56, v{52+c}, v56 quad_perm:[{c},{c},{c},{c}] {FULL}")
        A("s_mov_b32 exec_lo, 0x00100001\ns_mov_b32 exec_hi, 0x11")
        A.ds("ds_write_b32 v85, v56")
        A("s_mov_b32 exec_lo, -1\ns_mov_b32 exec_hi, 0xffff")
        A("v_add_f32 v36, v36, v41\nv_add_f32 v46, v46, v51\nv_add_f32 v36, v36, v46")
        A.ds("ds_write_b32 v84, v36")
        A("s_mov_b64 exec, -1")
        A.wait_ds0()
        A("s_barrier")
    def ln_final(s):
        A = s.A
        A.ds("ds_read2_b64 v[72:75], v88 offset0:0 offset1:2")
        st = A.ds("ds_read2_b64 v[76:79], v88 offset0:4 offset1:6")
        A.ds("ds_read2_b64 v[64:67], v86 offset0:0 offset1:24")
        A.ds("ds_read2_b64 v[68:71], v86 offset0:48 offset1:72")
        A.ds("ds_read2_b64 v[80:83], v87 offset0:0 offset1:24")
        A.ds("ds_read2_b64 v[84:87], v87 offset0:48 offset1:72")
        A.wait_ds(st)
        A("v_pk_add_f32 v[72:73], v[72:73], v[74:75]\nv_pk_add_f32 v[76:77], v[76:77], v[78:79]")
        A("v_pk_add_f32 v[72:73], v[72:73], v[76:77]")
        A(f"v_mul_f32 v74, {f2u(1/512)}, v73")
        A(f"v_mul_f32 v72, {f2u(1/512)}, v72")
        A("v_fma_f32 v72, -v74, v74, v72")
        A("v_max_f32 v72, 0, v72")
        A(f"v_add_f32 v72, {f2u(1e-5)}, v72")
        A("v_rsq_f32 v76, v72")
        A.wait_ds0()
        A("v_pk_add_f32 v[64:65], v[64:65], v[66:67]\nv_pk_add_f32 v[68:69], v[68:69], v[70:71]")
        A("v_pk_add_f32 v[80:81], v[80:81], v[82:83]\nv_pk_add_f32 v[84:85], v[84:85], v[86:87]")
        A("v_pk_add_f32 v[64:65], v[64:65], v[68:69]\nv_pk_add_f32 v[80:81], v[80:81], v[84:85]")
        A("v_pk_fma_f32 v[64:65], v[80:81], v[74:75], v[64:65] op_sel_hi:[1,0,1] neg_lo:[1,0,0] neg_hi:[1,0,0]")
        A("v_pk_mul_f32 v[64:65], v[64:65], v[76:77] op_sel_hi:[1,0]")
    def ln_poll(s, sg):
        A = s.A
        if s.bar: A("s_barrier")
        A(f"s_mov_b64 exec, {mR8}")
        def issue(): A(f"buffer_load_dwordx4 v[32:35], v9, {rWS}, {sg} offen sc1")
        s.poll(issue, 1, range(32, 36), 63, s.dL, s.gapL)
        A("s_mov_b64 exec, -1")
    def pair_off(s, dst, tmp, shift):
        s.A(f"v_lshlrev_b32 v{dst}, 2, v0\nv_and_b32 v{dst}, 28, v{dst}\nv_bfe_u32 v{tmp}, v0, 3, 1\nv_lshl_add_u32 v{dst}, v{tmp}, {shift}, v{dst}")
    def att_prefetchK(s):
        A = s.A
        s.stg = {}
        for f in range(8):
            s.stg[("k", f)] = (64 + 4*f, A.ds(f"ds_read_b128 {q4(64+4*f)}, v1 offset:{f*1024}"))
        for k in range(16, 32): A(f"v_mov_b32 v{k}, 0")
        A(f"v_mov_b32 v63, {f2u(C_SCALE)}")
    def attention(s, p1=None):
        A = s.A
        stg = s.stg
        free = [96]
        def ldsread(kind, f, slotreg):
            slot = kloc(f)[1] if kind == "k" else vloc(f)[1]
            if p1: A.wait_vm(p1.ids[(kind, f)])
            stg[(kind, f)] = (slotreg, A.ds(f"ds_read_b128 {q4(slotreg)}, v1 offset:{slot*1024}"))
        def operand(kind, f, ahead=0):
            loc = kloc(f) if kind == "k" else vloc(f)
            if loc[0] == "r":
                if p1: A.wait_vm(p1.ids[(kind, f)])
                return loc[1]
            reg, did = stg[(kind, f)]
            if did >= A.ds_done:
                last = max([d for (k2, f2), (r2, d) in stg.items() if k2 == kind and f <= f2 <= f + ahead] )
                A.wait_ds(last)
            return q4(reg)
        def build_aq(t):
            for k in range(4):
                A(f"v_mov_b32_dpp v{16+4*t+k}, v{QREG+k} quad_perm:[0,1,2,3] row_mask:0xf bank_mask:{1<<t:#x}")
        order = [0, 1, 3, 4, 5, 2] + list(range(6, 16))
        D = lambda n: 48 + 4 * (n % 3)
        vq = list(range(13))
        def dppsum(n, c):
            u = order[n]
            if c == 0: A(f"v_mul_f32_dpp v{32+u}, v{D(n)}, v63 quad_perm:[0,0,0,0] {FULL}")
            else: A(f"v_fmac_f32_dpp v{32+u}, v{D(n)+c}, v63 quad_perm:[{c},{c},{c},{c}] {FULL}")
        build_aq(0); build_aq(1)
        extra = []
        for n, u in enumerate(order):
            for t in range(4):
                op = operand("k", 4*u + t, 7 if u == 0 else 3)
                A(f"v_mfma_f32_16x16x32_bf16 {q4(D(n))}, {q4(16+4*t)}, {op}, {'0' if t == 0 else q4(D(n))}")
                if n == 0 and t < 2: build_aq(t + 2)
                if n >= 2: dppsum(n - 2, t)
                if extra: extra.pop(0)()
            if n == 0:
                for k in range(4): extra.append(lambda k=k: ldsread("k", 8 + k, 64 + 4*k))
            if n == 1: free += [80, 84, 88, 92]
            if n == 5: free += [64, 68, 72, 76]
            if n >= 1 and free and vq:
                extra.append(lambda f=vq.pop(0), r=free.pop(0): ldsread("v", f, r))
            if n >= 3 and n % 2 == 1:
                a, b = order[n-3], order[n-2]
                if n == 3: extra.append(lambda a=a, b=b: A(f"v_max_f32 v60, v{32+a}, v{32+b}"))
                else: extra.append(lambda a=a, b=b: A(f"v_max3_f32 v60, v60, v{32+a}, v{32+b}"))
            if p1: p1.issue_more(1)
        if s.hook: s.hook(1)
        if p1: A("s_barrier")
        for c in range(4): dppsum(14, c)
        while extra: extra.pop(0)()
        A(f"v_max_f32 v60, v60, v{32+order[14]}")
        for c in range(4): dppsum(15, c)
        A(f"v_max_f32 v60, v60, v{32+order[15]}")
        A("v_lshrrev_b32 v56, 5, v0\nv_and_b32 v57, 1, v0")
        A(f"v_max_f32_dpp v60, v60, v60 row_ror:4 {FULL}")
        A("v_lshlrev_b32 v56, 9, v56\nv_lshl_add_u32 v56, v57, 8, v56")
        A(f"v_max_f32_dpp v60, v60, v60 row_ror:8 {FULL}")
        A("v_and_b32 v57, 28, v0\nv_lshl_add_u32 v56, v57, 2, v56")
        A("v_max_f32_dpp v60, v60, v60 row_bcast:15 row_mask:0xa bank_mask:0xf")
        A(f"s_lshl_b32 {sT1}, {sW}, 10\ns_add_u32 {sT1}, {sT1}, {L_SO}")
        A("v_max_f32_dpp v60, v60, v60 row_bcast:31 row_mask:0xc bank_mask:0xf")
        A(f"v_add_u32 v56, {sT1}, v56")
        A(f"v_readlane_b32 {sT0}, v60, 63")
        A("v_and_b32 v57, 48, v0\nv_and_b32 v58, 3, v0")
        A(f"v_mov_b32 v62, {sT0}")
        def expo(u, part):
            t = 28 + (u & 1)
            if part == 0: A(f"v_sub_f32 v{t}, v{32+u}, v62")
            elif part == 1: A(f"v_exp_f32 v{t}, v{t}")
            elif part == 2: A(f"v_cvt_pk_bf16_f32 v{32+u}, v{t}, v{t}")
            elif u == 0: A(f"v_mov_b32 v63, v{t}")
            else: A(f"v_add_f32 v63, v63, v{t}")
        B = lambda k: 16 + 4 * (k % 3)
        def band(k, c):
            u, sidx = k >> 1, k & 1
            n = (4*c - 2 - 8*sidx) % 16
            A(f"v_and_b32_dpp v{B(k)+c}, v{32+u}, v{2+c} row_ror:{n} {FULL}")
        expo(0, 0); expo(1, 0); expo(0, 1); expo(1, 1); expo(0, 2); expo(0, 3); expo(1, 2)
        for c in range(4): band(0, c)
        expo(1, 3)
        if s.hook: s.hook(2)
        for c in range(4): band(1, c)
        fill = []
        fill.append("v_lshl_add_u32 v57, v58, 2, v57")
        fill.append("v_bfe_u32 v58, v0, 2, 2")
        fill.append("v_add_u32 v57, v57, v58")
        fill.append(f"v_lshlrev_b32 v57, 2, v57")
        fill.append(f"v_add_u32 v57, {L_SO}, v57")
        fill.append(f"s_lshl_b32 {sT1}, {sW}, 3\ns_add_u32 {sT1}, {sT1}, {L_ST}")
        fill.append(f"v_mov_b32 v58, {sT1}")
        red = [f"v_add_f32_dpp v63, v63, v63 row_ror:4 {FULL}",
               f"v_add_f32_dpp v63, v63, v63 row_ror:8 {FULL}",
               "v_add_f32_dpp v63, v63, v63 row_bcast:15 row_mask:0xa bank_mask:0xf",
               "v_add_f32_dpp v63, v63, v63 row_bcast:31 row_mask:0xc bank_mask:0xf"]
        for u in range(16):
            if p1:
                p1.issue_upto(4*u + 3 + s.lag)
                if u == s.cpf: p1.code_prefetch()
            for j in range(4):
                f = 4*u + j; k = 2*u + (j >> 1)
                op = operand("v", f, 3)
                o = 48 + 4*(j & 1)
                first = (u == 0 and j < 2)
                A(f"v_mfma_f32_16x16x32_bf16 {q4(o)}, {op}, {q4(B(k))}, {'0' if first else q4(o)}")
                if k + 2 < 32:
                    band(k + 2, 2*(j & 1)); band(k + 2, 2*(j & 1) + 1)
                if u + 2 < 16: expo(u + 2, j)
                elif red and (j % 2 == 0): A(red.pop(0))
                if u >= 14 or (u >= 4 and j == 0):
                    if fill: A(fill.pop(0))
                if vloc(f)[0] == "l":
                    free.append(stg[("v", f)][0])
                    if vq: ldsread("v", vq.pop(0), free.pop(0))
        assert not red and not fill, (red, fill)
    def build(s):
        A = s.A
        s.m0cur = None
        A.raw(HEADER.rstrip())
        A.raw("; @launch grid=(256,1,1) block=(256,1,1) lds=163840")
        A.raw('.amdgcn_target "amdgcn-amd-amdhsa--gfx950"\n.text')
        A.raw(f".globl {NAME}_kernel\n.p2align 8\n.type {NAME}_kernel,@function\n{NAME}_kernel:")
        if s.padbase == 0: A("s_memrealtime s[98:99]")
        A("s_load_dwordx16 s[56:71], s[0:1], 0")
        A("s_load_dwordx8 s[72:79], s[0:1], 64")
        A("s_load_dwordx2 s[80:81], s[0:1], 96")
        A("s_cmp_ge_u32 s2, 256\ns_cbranch_scc1 L_end")
        if s.ts: A("v_mov_b32 v12, 0")
        if s.cpf0:
            A("s_getpc_b64 s[20:21]")
            A.label("L_pc0")
            A.raw(f"    s_mov_b32 s22, L_code_end-{NAME}_kernel")
            A("s_and_b32 s20, s20, 0xffffff00")
            A("s_mov_b32 s23, 0x20000\nv_lshlrev_b32 v2, 4, v0\ns_movk_i32 s24, 0x1000\ns_movk_i32 s25, 0x2000\ns_movk_i32 s26, 0x3000\ns_movk_i32 s27, 0x4000")
            for j, so in enumerate(("0", "s24", "s25", "s26", "s27")):
                A.vm(f"buffer_load_dwordx4 {q4(100+4*j)}, v2, {rX}, {so} offen")
        A("v_lshrrev_b32 v1, 6, v0")
        A("v_and_b32 v0, 63, v0")
        A(f"v_readfirstlane_b32 {sW}, v1")
        A(f"s_and_b32 {sG}, s2, 7\ns_lshr_b32 {sI}, s2, 3\ns_lshr_b32 {sHH}, s2, 6\ns_bfe_u32 {sB}, s2, 0x10005")
        A("v_and_b32 v16, 3, v0")
        A("v_bfe_u32 v17, v0, 2, 2")
        A("v_lshrrev_b32 v18, 4, v0")
        A("v_lshlrev_b32 v6, 4, v16\nv_lshl_add_u32 v6, v17, 8, v6\nv_lshl_add_u32 v6, v18, 6, v6")
        A("v_and_b32 v19, 7, v0\nv_bfe_u32 v20, v0, 3, 1")
        A("v_lshlrev_b32 v7, 4, v19\nv_lshl_add_u32 v7, v20, 8, v7\nv_lshl_add_u32 v7, v18, 10, v7")
        A(f"s_lshl_b32 s82, {sB}, 5\ns_lshl_b32 s83, {sG}, 2\ns_add_u32 s82, s82, s83\ns_add_u32 s82, s82, {sHH}\ns_lshl_b32 s82, s82, 20")
        A(f"s_and_b32 s83, {sI}, 3\ns_lshl_b32 s83, s83, 18\ns_add_u32 s82, s82, s83\ns_lshl_b32 s83, {sW}, 16\ns_add_u32 s82, s82, s83")
        A(f"s_lshl_b32 s84, s2, 2\ns_add_u32 s84, s84, {sW}\ns_and_b32 s84, s84, 15\ns_lshl_b32 s84, s84, 12")
        A(f"s_mul_i32 s85, {sW}, {NLDS*1024}\ns_add_u32 s85, s85, {L_KV}")
        A("s_mov_b32 s10, 0x10000\ns_mov_b32 s11, 0x20000\ns_mov_b32 m0, s85")
        A("s_waitcnt lgkmcnt(0)")
        if s.padbase == 0: A("s_mov_b32 s97, s98")
        if s.padbase == 2: A("s_memrealtime s[98:99]\ns_waitcnt lgkmcnt(0)\ns_mov_b32 s97, s98")
        A("s_add_u32 s8, s58, s82\ns_addc_u32 s9, s59, 0")
        ids = {}
        for f in range(4):
            ids[("k", f)] = A.vm(f"buffer_load_dwordx4 v6, {rK}, s84 offen offset:{f*1024} {s.kvpol} lds")
        A("s_add_u32 s12, s60, s82\ns_addc_u32 s13, s61, 0\ns_mov_b32 s14, 0x10000\ns_mov_b32 s15, 0x20000")
        if s.touch:
            A(f"s_add_u32 m0, s85, {12*1024}")
            ids[("v", 0)] = A.vm(f"buffer_load_dwordx4 v7, {rV}, s84 offen {s.vpol} lds")
        def srd(k, lo, n):
            A(f"s_mov_b32 s{k}, s{lo}\ns_mov_b32 s{k+1}, s{lo+1}\ns_mov_b32 s{k+2}, {n}\ns_mov_b32 s{k+3}, 0x20000")
        srd(16, 80, WS_BYTES if not s.ts else TS_OFF + 0x40000)
        srd(20, 56, 2048); srd(24, 62, 4 << 20); srd(28, 64, 4 << 20); srd(32, 68, 512*2752)
        A(f"s_mul_i32 s83, {sG}, {176*1024}\ns_add_u32 s36, s72, s83\ns_addc_u32 s37, s73, 0")
        A(f"s_sub_u32 s38, {1376*1024}, s83\ns_min_u32 s38, s38, {176*1024}\ns_mov_b32 s39, 0x20000")
        srd(40, 70, 2752); srd(44, 74, 1024); srd(48, 76, 2048); srd(52, 78, 256)
        A(f"s_mov_b32 {sRot}, s84\ns_mov_b32 {sKVl}, s85")
        A("s_mov_b32 s56, 0x00030003\ns_mov_b32 s57, 0x00030003\ns_mov_b32 s58, 0x00030003\ns_mov_b32 s59, 0")
        A("s_mov_b32 s60, 0xffff\ns_mov_b32 s61, 0\ns_mov_b32 s62, 0xff\ns_mov_b32 s63, 0")
        A("s_mov_b32 s66, 0x33333333\ns_mov_b32 s67, 0xcccccccc")
        A(f"s_mov_b32 {sCnt}, 0\ns_mov_b32 {sMode}, 0\ns_mov_b32 {sLayer}, 0")
        A(f"s_mul_i32 {sTau}, {sG}, 11\ns_add_u32 {sTau}, {sTau}, {sI}")
        s.stamp("start")
        if (s.padend or s.padchain) and s.padbase == 1: A("s_memrealtime s[98:99]\ns_waitcnt lgkmcnt(0)\ns_mov_b32 s97, s98")
        A("v_mov_b32 v22, -1\nv_mov_b32 v23, -1")
        A(f"s_lshl_b32 {sT0}, s2, 11\ns_lshl_b32 {sT1}, {sW}, 9\ns_add_u32 {sT0}, {sT0}, {sT1}")
        A("v_lshlrev_b32 v21, 3, v0")
        A.vm(f"buffer_store_dwordx2 v[22:23], v21, {rWS}, {sT0} offen sc1")
        A("v_and_b32 v27, 1, v0")
        A("v_lshrrev_b32 v83, 1, v0\nv_lshlrev_b32 v89, 4, v27")
        A("v_lshl_add_u32 v80, v83, 13, v89\nv_lshl_add_u32 v81, v83, 10, v89\nv_mul_u32_u24 v82, 2752, v83\nv_add_u32 v82, v82, v89")
        A(f"s_lshl_b32 {sT2}, {sI}, 5")
        A(f"s_lshl_b32 {sT0}, {sW}, 20\ns_lshl_b32 {sT1}, {sG}, 10\ns_add_u32 {sT0}, {sT0}, {sT1}\ns_add_u32 {sT0}, {sT0}, {sT2}")
        A(f"s_lshl_b32 {sT1}, {sW}, 12")
        for j in range(4):
            A(f"s_add_u32 m0, {sT1}, {L_WQ + j*1024}")
            A.vm(f"buffer_load_dwordx4 v80, {rWQ}, {sT0} offen {s.wpol} lds")
            A(f"s_add_u32 {sT0}, {sT0}, {32*8192}")
        A(f"s_lshl_b32 {sT0}, {sW}, 8")
        A(f"v_and_b32 v9, 0x1f0, v6\nv_and_b32 v28, 0x100, v9\nv_mad_u32_u24 v9, v28, 3, v9\nv_add_u32 v9, {sT0}, v9")
        A("s_mov_b32 s0, 0x00ff00ff\ns_mov_b32 s1, 0x00ff00ff")
        s.ln_pre(None, L_SO)
        A(f"s_mov_b64 exec, {mR8}")
        A.vm(f"buffer_load_dwordx4 v[32:35], v9, {rX}, 0 offen")
        A("s_mov_b64 exec, -1")
        A(f"s_lshl_b32 {sT0}, {sG}, 5\ns_add_u32 {sT0}, {sT0}, {sI}\ns_lshl_b32 {sOown}, {sT0}, 8")
        A(f"s_lshl_b32 {sOg}, {sG}, 13\ns_lshl_b32 {sT0}, {sW}, 11\ns_add_u32 {sOg}, {sOg}, {sT0}")
        A(f"s_lshl_b32 {sT0}, {sG}, 2\ns_add_u32 {sT1}, {sT0}, {sHH}\ns_add_u32 {sT0}, {sT0}, {sW}")
        A(f"s_lshl_b32 {sSTg}, {sT0}, 7\ns_add_u32 {sSTg}, {sSTg}, {ST}")
        A(f"s_and_b32 {sT3}, {sI}, 7\ns_lshl_b32 {sSTown}, {sT3}, 3\ns_lshl_b32 {sT0}, {sT1}, 7\ns_add_u32 {sSTown}, {sSTown}, {sT0}\ns_add_u32 {sSTown}, {sSTown}, {ST}")
        A(f"s_lshl_b32 {sAPg}, {sT3}, 10\ns_lshl_b32 {sT0}, {sHH}, 14\ns_add_u32 {sAPg}, {sAPg}, {sT0}\ns_add_u32 {sAPg}, {sAPg}, {AP}")
        A(f"s_lshl_b32 {sT0}, {sG}, 7\ns_add_u32 {sAPown}, {sAPg}, {sT0}")
        A(f"s_add_u32 {sYPg}, {sAPg}, {YP-AP}\ns_add_u32 {sYPown}, {sAPown}, {YP-AP}")
        A(f"s_lshl_b32 {sT0}, {sT1}, 9\ns_lshl_b32 {sT3}, {sT3}, 5\ns_add_u32 {sQown}, {sT0}, {sT3}\ns_lshl_b32 {sT3}, {sB}, 8\ns_add_u32 {sQg}, {sT0}, {sT3}")
        A(f"s_add_u32 {sQown}, {sQown}, {QB0}\ns_add_u32 {sQg}, {sQg}, {QB0}")
        A(f"s_lshl_b32 {sX1g}, {sG}, 11\ns_add_u32 {sX1g}, {sX1g}, {X1}\ns_add_u32 {sX1own}, {sX1g}, {sT2}")
        A(f"s_add_u32 {sX2g}, {sX1g}, {X2-X1}\ns_add_u32 {sX2own}, {sX1own}, {X2-X1}")
        A(f"s_lshl_b32 {sHg}, {sG}, 10\ns_add_u32 {sHg}, {sHg}, {HB}\ns_lshl_b32 {sHown}, {sI}, 6\ns_add_u32 {sHown}, {sHown}, {sHg}")
        if s.race: A(f"s_lshl_b32 {sCopy}, {sW}, 13")
        else: A(f"s_getreg_b32 {sCopy}, hwreg(HW_REG_XCC_ID)\ns_bfe_u32 {sCopy}, {sCopy}, 0x10002\ns_xor_b32 {sCopy}, {sCopy}, {s.copy}\ns_lshl_b32 {sCopy}, {sCopy}, 13")
        A("v_lshlrev_b32 v24, 2, v19\nv_lshl_add_u32 v25, v20, 8, v24\nv_lshl_add_u32 v26, v20, 10, v24")
        A(f"s_mov_b64 exec, {m16}")
        A.vm(f"buffer_store_dword v22, v25, {rWS}, {sQown} offen sc1")
        A.vm(f"buffer_load_dword v13, v26, {rX}, {sT2} offen")
        A.vm(f"buffer_load_dword v15, v24, {rB2}, {sT2} offen")
        A(f"s_lshl_b32 {sT0}, {sTau}, 5")
        last = A.vm(f"buffer_load_dword v14, v24, {rB1}, {sT0} offen")
        A("s_mov_b64 exec, -1")
        def tiles():
            A(f"s_lshl_b32 {sT2}, {sI}, 5")
            A(f"s_lshl_b32 {sT0}, {sG}, 19\ns_lshl_b32 {sT1}, {sW}, 17\ns_add_u32 {sT0}, {sT0}, {sT1}\ns_add_u32 {sT0}, {sT0}, {sT2}")
            A(f"s_lshl_b32 {sT1}, {sW}, 12")
            for j in range(4):
                A(f"s_add_u32 m0, {sT1}, {L_WO + j*1024}")
                A.vm(f"buffer_load_dwordx4 v81, {rWO}, {sT0} offen {s.wpol} lds")
                A(f"s_add_u32 {sT0}, {sT0}, {32*1024}")
            A(f"s_mul_i32 {sT0}, {sW}, {128*2752}\ns_lshl_b32 s100, {sTau}, 5\ns_add_u32 {sT0}, {sT0}, s100")
            A(f"s_cmp_lt_u32 {sI}, 11\ns_cselect_b32 s34, s34, 0")
            for j in range(4):
                A(f"s_add_u32 m0, {sT1}, {L_W1 + j*1024}")
                A.vm(f"buffer_load_dwordx4 v82, {rW1}, {sT0} offen {s.wpol} lds")
                A(f"s_add_u32 {sT0}, {sT0}, {32*2752}")
            A(f"s_lshl_b32 {sT0}, {sW}, 16\ns_add_u32 {sT0}, {sT0}, {sT2}\nv_add_u32 v81, {sT0}, v81\nv_add_u32 v82, 0x8000, v81")
            A(f"s_lshl_b32 {sT1}, {sW}, 11")
            for j in range(2):
                A(f"s_add_u32 m0, {sT1}, {L_W2 + j*1024}")
                A.vm(f"buffer_load_dwordx4 v{81+j}, {rW2}, 0 offen {s.wpol} lds")
            s.m0cur = None
        if s.touch:
            A("s_mov_b64 exec, 1")
            A.vm(f"buffer_load_dword v100, off, {rOUT}, 0")
            A("s_mov_b64 exec, -1")
        s.m0cur = None
        for f in range(4, 16): ids[("k", f)] = s.kv_load("k", f)
        A(f"v_lshlrev_b32 v1, 4, v0\nv_add_u32 v1, {sKVl}, v1")
        A(f"s_lshl_b32 {sT0}, {sW}, 12")
        A(f"v_lshlrev_b32 v8, 3, v16\nv_lshl_add_u32 v8, v17, 5, v8\nv_lshl_add_u32 v10, v18, 8, v8\nv_lshl_add_u32 v8, v18, 10, v8\nv_add_u32 v8, {sT0}, v8")
        A("v_add_u32 v28, v16, v18\nv_and_b32 v28, 3, v28\nv_and_b32 v11, 4, v0\nv_lshlrev_b32 v11, 3, v11\nv_lshl_add_u32 v11, v28, 3, v11")
        A("v_mov_b32 v29, 0xffff\nv_mov_b32 v30, 0xffff0000\nv_cmp_eq_u32 vcc, 1, v27\nv_cndmask_b32 v29, v29, v30, vcc")
        for c in range(4):
            A(f"v_cmp_eq_u32 vcc, {c}, v17\nv_cndmask_b32 v{2+c}, 0, v29, vcc")
        for f in range(16, s.s7at): ids[("k", f)] = s.kv_load("k", f)
        A.wait_vm(last)
        s.tr_reads(L_WQ, 4, 16)
        s.ln_mma()
        skip = A.newlabel("L_skip")
        A(f"s_cmp_lg_u32 {sW}, 0\ns_cbranch_scc1 {skip}")
        A("v_mov_b32 v90, v80\nv_mov_b32 v91, v81\nv_mov_b32 v92, v82")
        A(f"s_mov_b64 exec, {m16}")
        s.ln_final()
        s.pair_off(68, 69, 8)
        A("v_cvt_pk_bf16_f32 v64, v64, v65\nv_min_u32 v64, -2, v64")
        A.vm(f"buffer_store_dword v64, v68, {rWS}, {sQown} offen sc1", optional=True)
        A(f"s_getreg_b32 {sT0}, hwreg(HW_REG_XCC_ID)\ns_and_b32 {sT0}, {sT0}, 15\ns_mul_i32 {sT1}, {sT0}, 6\ns_add_u32 {sT1}, {sT1}, 8")
        A(f"s_lshl_b64 s[100:101], 1, {sT1}\ns_cmp_lt_u32 {sT0}, 8\ns_cselect_b64 s[100:101], s[100:101], 0\ns_or_b32 s100, s100, 1")
        A(f"v_mov_b32 v76, s100\nv_mov_b32 v77, s101\ns_lshl_b32 {sT0}, {sG}, 5\nv_mov_b32 v78, {sT0}")
        A("s_mov_b64 exec, 1")
        A.vm(f"buffer_atomic_add_x2 v[76:77], v78, {rDBG}, 0 offen sc1", optional=True)
        A("s_mov_b64 exec, -1")
        A("v_mov_b32 v81, v91\nv_mov_b32 v82, v92")
        A.label(skip)
        A.ds_done = A.ds_issued
        s.stamp("q0pub")
        for f in range(s.s7at, s.tilesat): ids[("k", f)] = s.kv_load("k", f)
        tiles()
        for f in range(s.tilesat, 64): ids[("k", f)] = s.kv_load("k", f)
        class P1: pass
        p1 = P1(); p1.ids = ids; p1.next = 0
        if s.touch:
            p1.next = 1
            A(f"s_mov_b32 {sSV}, {sRot}")
        def issue_upto(n):
            while p1.next <= min(n, 63):
                ids[("v", p1.next)] = s.kv_load("v", p1.next); p1.next += 1
        A("v_lshlrev_b32 v70, 5, v0")
        A(f"s_mov_b64 exec, {m8}")
        chk = A.vm(f"buffer_load_dwordx2 v[72:73], v70, {rDBG}, 0 offen sc1")
        A("s_mov_b64 exec, -1")
        issue_upto(s.chkv - 1)
        A.wait_vm(chk)
        ok = A.newlabel("L_arr_ok"); lp = A.newlabel("L_arr")
        A(f"s_mov_b64 exec, {m8}")
        A.label(lp)
        A("v_and_b32 v74, 0xff, v72\nv_cmp_ne_u32 vcc, 32, v74")
        A(f"s_cbranch_vccz {ok}")
        A(f"s_sleep 4")
        A.vm(f"buffer_load_dwordx2 v[72:73], v70, {rDBG}, 0 offen sc1", optional=True)
        A(f"s_add_u32 {sCnt}, {sCnt}, 1\ns_cmp_lt_u32 {sCnt}, {LIMIT}\ns_waitcnt vmcnt(0)\ns_cbranch_scc1 {lp}")
        A.label(ok)
        A("s_mov_b64 exec, -1")
        A(f"v_readlane_b32 s100, v72, {sG}\nv_readlane_b32 s101, v73, {sG}")
        A(f"s_getreg_b32 {sT0}, hwreg(HW_REG_XCC_ID)\ns_and_b32 {sT0}, {sT0}, 15\ns_mul_i32 {sT1}, {sT0}, 6\ns_add_u32 {sT1}, {sT1}, 8")
        A(f"s_lshr_b64 s[100:101], s[100:101], {sT1}\ns_and_b32 s100, s100, 63\ns_cmp_eq_u32 s100, 32\ns_cselect_b32 {sMode}, 1, 0")
        A(f"s_cmp_lt_u32 {sT0}, 8\ns_cselect_b32 {sMode}, {sMode}, 0")
        if s.forceG: A(f"s_mov_b32 {sMode}, 0")
        A("v_and_b32 v62, 0xf0, v6")
        qid = A.vm(f"buffer_load_dwordx4 {q4(QREG)}, v62, {rWS}, {sQg} offen sc1")
        def code_prefetch():
            A("s_getpc_b64 s[20:21]")
            A.label("L_pc")
            A.raw("    s_add_u32 s20, s20, L_chain-L_pc\n    s_addc_u32 s21, s21, 0\n    s_mov_b32 s22, L_code_end-L_chain\n    s_and_b32 s20, s20, 0xffffffc0")
            A(f"s_lshl_b32 {sT0}, {sW}, 10\ns_add_u32 m0, {sT0}, {L_SO}\nv_lshlrev_b32 v59, 4, v0")
            for j in range(s.ncpf):
                A.vm(f"buffer_load_dwordx4 v59, {rX}, {sT0} offen lds")
                A(f"s_add_u32 {sT0}, {sT0}, 4096")
            s.m0cur = None
        s.ncpf = 3
        p1.issue_upto = issue_upto; p1.code_prefetch = code_prefetch
        p1.issue_more = lambda k: issue_upto(p1.next + k - 1)
        issue_upto(s.qv - 1)
        A.wait_vm(qid)
        ok = A.newlabel("L_q_ok"); lp = A.newlabel("L_q")
        A.label(lp)
        A(f"v_max_u32 v63, v{QREG}, v{QREG+1}\nv_max3_u32 v63, v63, v{QREG+2}, v{QREG+3}\nv_cmp_eq_u32 vcc, -1, v63")
        A(f"s_cbranch_vccz {ok}")
        A.vm(f"buffer_load_dwordx4 {q4(QREG)}, v62, {rWS}, {sQg} offen sc1", optional=True)
        A(f"s_add_u32 {sCnt}, {sCnt}, 1\ns_cmp_lt_u32 {sCnt}, {LIMIT}\ns_waitcnt vmcnt(0)\ns_cbranch_scc1 {lp}")
        A.label(ok)
        A(f"s_sub_u32 {sQown}, {sQown}, {QB0 - QB}\ns_sub_u32 {sQg}, {sQg}, {QB0 - QB}")
        s.stamp("q0got")
        s.att_prefetchK()
        s.attention(p1)
        if s.race:
            A(f"v_mov_b32 v28, -1\nv_mov_b32 v29, {L_RACE}")
            A.ds("ds_write_b32 v29, v28")
        A.wait_vm0()
        if s.padchain: s.spin_until(s.padchain)
        s.inchain = True; s.ts0 = s.nts
        s.ts_flush(True)
        A.label("L_chain")
        A.hist = [parse("v_mfma_f32_16x16x32_bf16 v[48:51], v[0:3], v[0:3], v[48:51]"), parse("v_add_f32 v63, v63, v63"),
                  parse("v_mfma_f32_16x16x32_bf16 v[52:55], v[0:3], v[0:3], v[52:55]"), parse("s_branch L_chain")]
        s.stamp("pvdone")
        A("s_mov_b32 exec_lo, 0\ns_brev_b32 exec_hi, 1")
        A.ds("ds_write_b64 v58, v[62:63]")
        A(f"v_mov_b32 v26, {L_ST}\ns_mov_b64 exec, {mOV}")
        A.ds("ds_write_b128 v56, v[48:51]")
        A.ds("ds_write_b128 v56, v[52:55] offset:128")
        A("s_mov_b64 exec, -1")
        A(f"v_mov_b32 v26, {L_ST}\nv_lshlrev_b32 v27, 2, v0\nv_mov_b32 v29, 0")
        A(f"s_cmp_lg_u32 {sW}, 0")
        A.wait_ds0()
        A("s_barrier")
        A("s_cbranch_scc1 L_S2")
        A.ds("ds_read_b128 v[64:67], v26")
        st2 = A.ds("ds_read_b128 v[68:71], v26 offset:16")
        for blk in range(8):
            A.ds(f"ds_read2st64_b32 {q2(72+2*blk)}, v57 offset0:{2*blk} offset1:{2*blk+1}")
        A.wait_ds(st2)
        A("v_max3_f32 v88, v64, v66, v68\nv_max_f32 v88, v88, v70")
        for w in range(4): A(f"v_sub_f32 v{64+2*w}, v{64+2*w}, v88")
        for w in range(4): A(f"v_exp_f32 v{64+2*w}, v{64+2*w}")
        s.mode_test()
        A.wait_ds0()
        for w in range(4): A(f"v_pk_add_f32 {q2(72+4*w)}, {q2(72+4*w)}, {q2(74+4*w)}")
        A("v_pk_mul_f32 v[90:91], v[72:73], v[64:65] op_sel_hi:[1,0]")
        A("v_mul_f32 v89, v64, v65")
        for w in range(1, 4):
            A(f"v_pk_fma_f32 v[90:91], {q2(72+4*w)}, {q2(64+2*w)}, v[90:91] op_sel_hi:[1,0,1]")
            A(f"v_fmac_f32 v89, v{64+2*w}, v{65+2*w}")
        A("v_cvt_pk_bf16_f32 v90, v90, v91\nv_min_u32 v88, -2, v88\nv_min_u32 v90, -2, v90\nv_min_u32 v89, -2, v89")
        s.publish([f"buffer_store_dword v90, v27, {rWS}, {sOown} offen {{pol}}",
                   f"s_mov_b64 exec, 1\nbuffer_store_dwordx2 v[88:89], v29, {rWS}, {sSTown} offen {{pol}}\ns_mov_b64 exec, -1"], tested=True)
        A.label("L_S2")
        A.ds_done = A.ds_issued
        s.stamp("opub")
        s.tr_reads(L_WO, 4, 16)
        A("v_mov_b32 v72, 0\nv_mov_b32 v73, 0")
        A(f"s_lshl_b32 {sT0}, {sW}, 7\ns_add_u32 {sT0}, {sT0}, {RED2}")
        A(f"v_and_b32 v80, 15, v0\nv_lshrrev_b32 v81, 5, v0\nv_lshlrev_b32 v80, 2, v80\nv_lshl_add_u32 v80, v81, 6, v80\nv_add_u32 v80, {sT0}, v80")
        A(f"v_lshlrev_b32 v81, 4, v0\nv_add_u32 v82, {RED2}, v81")
        def issue():
            A(f"s_mov_b64 exec, {mR8}")
            A(f"buffer_load_dwordx2 v[72:73], v11, {rWS}, {sSTg} offen sc1")
            A("s_mov_b64 exec, -1")
            A(f"buffer_load_dwordx4 v[32:35], v6, {rWS}, {sOg} offen sc1")
            A(f"buffer_load_dwordx4 v[36:39], v6, {rWS}, {sOg} offen offset:1024 sc1")
        s.poll(issue, 3, list(range(32, 40)) + [72, 73], 74, s.dL, s.gapL)
        s.stamp("ogot")
        A.wait_ds0()
        side = [f"v_max_f32_dpp v74, v72, v72 quad_perm:[1,0,3,2] {FULL}",
                f"v_max_f32_dpp v74, v74, v74 quad_perm:[2,3,0,1] {FULL}",
                "v_sub_f32 v75, v72, v74", "v_exp_f32 v75, v75", "v_mul_f32 v76, v75, v73",
                f"v_add_f32_dpp v76, v76, v76 quad_perm:[1,0,3,2] {FULL}",
                f"v_add_f32_dpp v76, v76, v76 quad_perm:[2,3,0,1] {FULL}",
                "v_rcp_f32 v76, v76"]
        for b in range(2):
            for c in range(4):
                A(f"v_mfma_f32_16x16x32_bf16 {q4(40+16*b+4*c)}, {q4(32+4*b)}, {q4(16+4*c)}, 0")
                A(side.pop(0))
        A("v_mul_f32 v75, v75, v76")
        A("v_add_f32 v40, v40, v45\nv_add_f32 v50, v50, v55\nv_add_f32 v40, v40, v50")
        A(f"v_mul_f32_dpp v78, v75, v40 row_newbcast:0 {FULL}")
        A("v_add_f32 v56, v56, v61\nv_add_f32 v66, v66, v71\nv_add_f32 v56, v56, v66")
        A(f"v_mul_f32_dpp v79, v75, v56 row_newbcast:4 {FULL}")
        A("v_permlane32_swap_b32 v78, v79\nv_add_f32 v78, v78, v79\nv_mov_b32 v79, v78")
        A("v_permlane16_swap_b32 v78, v79\nv_add_f32 v78, v78, v79")
        A.ds("ds_write_b32 v80, v78")
        A(f"s_cmp_lg_u32 {sW}, 0")
        s.drain()
        A.wait_ds0()
        A("s_barrier")
        A("s_cbranch_scc1 L_S3")
        A(f"s_mov_b64 exec, {m8}")
        for w in range(4): A.ds(f"ds_read_b128 {q4(64+4*w)}, v82 offset:{128*w}")
        A(f"s_add_u32 {sT0}, {sAPown}, 8192")
        A.wait_ds(A.ds_issued - 3)
        A("v_pk_add_f32 v[64:65], v[64:65], v[68:69]\nv_pk_add_f32 v[66:67], v[66:67], v[70:71]")
        A.wait_ds0()
        A("v_pk_add_f32 v[72:73], v[72:73], v[76:77]\nv_pk_add_f32 v[74:75], v[74:75], v[78:79]")
        A("v_pk_add_f32 v[64:65], v[64:65], v[72:73]\nv_pk_add_f32 v[66:67], v[66:67], v[74:75]")
        for k in range(64, 68): A(f"v_min_u32 v{k}, -2, v{k}")
        A(f"buffer_store_dwordx4 v[64:67], v81, {rWS}, {sAPown} offen sc1")
        A(f"buffer_store_dwordx4 v[64:67], v81, {rWS}, {sT0} offen sc1")
        A("s_mov_b64 exec, -1")
        s.stamp("appub")
        A.label("L_S3")
        A.ds_done = A.ds_issued
        s.ln_pre(L_W1, RED4, sX1g)
        if s.race: A(f"s_lshl_b32 {sT0}, {sLayer}, 1\ns_add_u32 {sT0}, {sT0}, {sW}\ns_cmp_lt_u32 {sT0}, 2\ns_cselect_b32 {sT0}, 0, {sW}\ns_cmp_lg_u32 {sT0}, 0")
        else: A(f"s_cmp_lg_u32 {sW}, 0")
        A("s_cbranch_scc1 L_S4")
        def xreduce(sg, addb2):
            A(f"s_mov_b64 exec, {m16}")
            A("v_lshlrev_b32 v82, 3, v0")
            A("v_lshlrev_b32 v80, 16, v13\nv_and_b32 v81, 0xffff0000, v13")
            if addb2:
                A("v_lshlrev_b32 v90, 16, v15\nv_and_b32 v91, 0xffff0000, v15")
                A("v_pk_add_f32 v[80:81], v[80:81], v[90:91]")
            s.pair_off(83, 89, 10)
            A(f"s_add_u32 {sT0}, {sg}, {sCopy}")
            def issue():
                for j in range(8): A(f"buffer_load_dwordx2 {q2(64+2*j)}, v82, {rWS}, {sT0} offen offset:{j*128} sc1")
            s.poll(issue, 8, range(64, 80), 89, s.dG, s.gapG)
            A("v_pk_add_f32 v[90:91], v[64:65], v[66:67]\nv_pk_add_f32 v[92:93], v[68:69], v[70:71]")
            A("v_pk_add_f32 v[94:95], v[72:73], v[74:75]\nv_pk_add_f32 v[96:97], v[76:77], v[78:79]")
            A("v_pk_add_f32 v[90:91], v[90:91], v[92:93]\nv_pk_add_f32 v[94:95], v[94:95], v[96:97]")
            A("v_pk_add_f32 v[90:91], v[90:91], v[80:81]")
            s.mode_test()
            A("v_pk_add_f32 v[90:91], v[90:91], v[94:95]")
            A("v_cvt_pk_bf16_f32 v13, v90, v91")
        xreduce(sAPg, False)
        A("v_min_u32 v90, -2, v13")
        s.publish(f"buffer_store_dword v90, v83, {rWS}, {sX1own} offen {{pol}}", tested=True)
        A("s_mov_b64 exec, -1")
        s.stamp("x1pub")
        if s.race:
            A(f"s_memtime s[100:101]\ns_cmp_eq_u32 {sW}, 0\ns_cbranch_scc1 L_S4")
            A(f"v_mov_b32 v91, {L_RACE}\ns_waitcnt lgkmcnt(0)\nv_mov_b32 v90, s100")
            A("ds_write_b32 v91, v90")
        A.label("L_S4")
        A(f"s_cmp_ge_u32 {sI}, 11\ns_cbranch_scc1 L_S5")
        s.ln_poll(sX1g)
        s.stamp("xgot")
        s.ln_mma()
        A(f"s_cmp_lg_u32 {sW}, 0\ns_cbranch_scc1 L_S7")
        A(f"s_mov_b64 exec, {m16}")
        s.drain()
        s.ln_final_pre = None
        A(f"s_cmp_lt_u32 {sTau}, 86\ns_cselect_b32 {sT3}, -1, 0")
        k1 = -2.0 * math.sqrt(2.0 / math.pi) * math.log2(math.e)
        A("v_lshlrev_b32 v92, 16, v14\nv_and_b32 v93, 0xffff0000, v14")
        A(f"v_mov_b32 v94, {f2u(k1 * 0.044715)}\nv_mov_b32 v96, {f2u(k1)}")
        A("v_and_b32 v98, 3, v0\nv_lshlrev_b32 v98, 2, v98\nv_and_b32 v99, 4, v0\nv_lshl_add_u32 v98, v99, 3, v98\nv_and_b32 v99, 8, v0\nv_lshl_add_u32 v98, v99, 1, v98")
        s.ln_final()
        A("v_pk_add_f32 v[64:65], v[64:65], v[92:93]")
        A("v_pk_mul_f32 v[66:67], v[64:65], v[64:65]")
        A("v_pk_fma_f32 v[66:67], v[66:67], v[94:95], v[96:97] op_sel_hi:[1,0,0]")
        A("v_pk_mul_f32 v[66:67], v[66:67], v[64:65]")
        A("v_exp_f32 v66, v66\nv_exp_f32 v67, v67")
        A("v_add_f32 v66, 1.0, v66\nv_add_f32 v67, 1.0, v67")
        A("v_rcp_f32 v66, v66\nv_rcp_f32 v67, v67")
        s.mode_test()
        A("v_pk_mul_f32 v[64:65], v[64:65], v[66:67]")
        A(f"v_cvt_pk_bf16_f32 v64, v64, v65\nv_min_u32 v64, -2, v64\nv_and_b32 v64, {sT3}, v64")
        s.publish(f"buffer_store_dword v64, v98, {rWS}, {sHown} offen {{pol}}", tested=True)
        A("s_mov_b64 exec, -1")
        s.stamp("hpub")
        A.label("L_S5")
        A.ds_done = A.ds_issued
        A(f"s_cmp_lg_u32 {sW}, 0\ns_cbranch_scc1 L_S7")
        s.tr_reads(L_W2, 6, 16, "v10", 1024)
        for k in range(60, 64): A(f"v_mov_b32 v{k}, 0")
        A("v_and_b32 v86, 1, v0\nv_lshrrev_b32 v87, 4, v0\nv_lshlrev_b32 v87, 4, v87\nv_lshl_add_u32 v85, v86, 6, v87\nv_lshlrev_b32 v87, 1, v87\nv_lshl_add_u32 v84, v86, 4, v87")
        if s.race:
            A(f"v_mov_b32 v86, {L_RACE}")
            A.ds("ds_read_b32 v87, v86")
        def issue():
            A(f"s_mov_b64 exec, {mAlo}")
            A(f"buffer_load_dwordx4 v[60:63], v84, {rWS}, {sHg} offen offset:640 sc1")
            A(f"s_mov_b64 exec, {mA}")
            for kk in range(5): A(f"buffer_load_dwordx4 {q4(40+4*kk)}, v84, {rWS}, {sHg} offen offset:{kk*128} sc1")
        s.poll(issue, 6, range(40, 64), 88, s.dL, s.gapL)
        A("s_mov_b64 exec, -1")
        A.wait_ds0()
        for kk in range(6):
            d = 90 if kk % 2 == 0 else 94
            A(f"v_mfma_f32_16x16x32_bf16 {q4(d)}, {q4(16+4*kk)}, {q4(40+4*kk)}, {'0' if kk < 2 else q4(d)}")
            if s.race and kk == 0: A(f"v_readfirstlane_b32 {sT1}, v87")
        A(f"s_add_u32 {sT0}, {sYPown}, 8192")
        A(f"s_mov_b64 exec, {mA}")
        s.drain()
        A("v_pk_add_f32 v[90:91], v[90:91], v[94:95]\nv_pk_add_f32 v[92:93], v[92:93], v[96:97]")
        for k in range(90, 94): A(f"v_min_u32 v{k}, -2, v{k}")
        A(f"buffer_store_dwordx4 v[90:93], v85, {rWS}, {sYPown} offen sc1")
        A(f"buffer_store_dwordx4 v[90:93], v85, {rWS}, {sT0} offen sc1")
        A("s_mov_b64 exec, -1")
        s.stamp("yppub")
        A(f"s_cmp_eq_u32 {sLayer}, 0\ns_cselect_b32 {sT0}, 0, {sG}\ns_cmp_lg_u32 {sT0}, 0\ns_cbranch_scc1 L_done")
        if s.race:
            A(f"s_cmp_eq_u32 {sT1}, -1\ns_cselect_b32 {sT1}, s100, {sT1}")
            A(f"s_sub_u32 {sT1}, {sT1}, s100\ns_cmp_lt_i32 {sT1}, 0\ns_cselect_b32 {sT1}, 8192, 0")
            A(f"s_cmp_eq_u32 {sLayer}, 0\ns_cselect_b32 {sCopy}, {sT1}, {sCopy}")
        s.ln_pre(L_WQ, RED4, sX2g)
        xreduce(sYPg, True)
        A(f"s_cmp_lg_u32 {sLayer}, 0\ns_cbranch_scc1 L_fin")
        A("v_min_u32 v90, -2, v13")
        s.publish(f"buffer_store_dword v90, v83, {rWS}, {sX2own} offen {{pol}}")
        A("s_mov_b64 exec, -1")
        s.stamp("x2pub")
        A("s_branch L_S7b")
        A.label("L_S7")
        A(f"s_cmp_lg_u32 {sLayer}, 0\ns_cbranch_scc1 L_done")
        s.drain()
        s.ln_pre(L_WQ, RED4, sX2g)
        A.label("L_S7b")
        s.ln_poll(sX2g)
        s.stamp("xgot")
        s.ln_mma()
        A(f"s_cmp_lg_u32 {sW}, 0\ns_cbranch_scc1 L_S8")
        A(f"s_mov_b64 exec, {m16}")
        s.drain()
        s.pair_off(98, 99, 8)
        s.ln_final()
        s.mode_test()
        A("v_cvt_pk_bf16_f32 v64, v64, v65\nv_min_u32 v64, -2, v64")
        s.publish(f"buffer_store_dword v64, v98, {rWS}, {sQown} offen {{pol}}", tested=True)
        A("s_mov_b64 exec, -1")
        s.stamp("qpub")
        A.label("L_S8")
        A.ds_done = A.ds_issued
        s.ts_flush()
        if s.padq: s.spin_until(s.padq)
        s.att_prefetchK()
        A("v_and_b32 v62, 0xf0, v6")
        A(f"s_mov_b32 {sLayer}, 1")
        def issue(): A(f"buffer_load_dwordx4 {q4(QREG)}, v62, {rWS}, {sQg} offen sc1")
        s.poll(issue, 1, range(QREG, QREG + 4), 61, 1, 0)
        s.stamp("qgot")
        A(f"s_add_u32 s16, s16, {LSTRIDE}\ns_addc_u32 s17, s17, 0\ns_sub_u32 s18, s18, {LSTRIDE}")
        s.attention(None)
        if s.pad2: s.spin_until(s.pad2)
        A("s_branch L_chain")
        A.label("L_fin")
        A(f"s_lshl_b32 {sT0}, {sI}, 5")
        A(f"buffer_store_dword v13, v83, {rOUT}, {sT0} offen")
        A.label("L_done")
        if s.padend: s.spin_until(s.padend)
        if s.padcyc:
            A("s_memtime s[98:99]\ns_waitcnt lgkmcnt(0)\ns_mov_b32 s97, s98")
            s.spin_until(s.padcyc, "s_memtime")
        if s.ts:
            A("s_mov_b64 exec, -1")
            s.stamp("end")
            s.ts_flush()
            A(f"s_mul_i32 {sT0}, {sLayer}, {LSTRIDE}\ns_lshl_b32 {sT1}, s2, 2\ns_add_u32 {sT1}, {sT1}, {sW}\ns_lshl_b32 {sT1}, {sT1}, 8")
            A(f"s_add_u32 {sT1}, {sT1}, {TS_OFF}\ns_sub_u32 {sT1}, {sT1}, {sT0}\nv_lshlrev_b32 v16, 2, v0")
            A(f"buffer_store_dword v12, v16, {rWS}, {sT1} offen")
        A("L_end:\ns_endpgm")
        for t in s.tail: A.raw(t)
        A.raw("L_code_end:")
        A.raw('.section .rodata,"a"\n.p2align 6')
        A.raw(f".amdhsa_kernel {NAME}_kernel")
        A.raw("  .amdhsa_next_free_vgpr 512\n  .amdhsa_next_free_sgpr 102\n  .amdhsa_accum_offset 256\n  .amdhsa_group_segment_fixed_size 0")
        A.raw("  .amdhsa_kernarg_size 104\n  .amdhsa_user_sgpr_count 2\n  .amdhsa_user_sgpr_kernarg_segment_ptr 1\n  .amdhsa_system_sgpr_workgroup_id_x 1")
        A.raw("  .amdhsa_float_denorm_mode_32 3\n.end_amdhsa_kernel")
        return A.text()

if __name__ == "__main__":
    out = sys.argv[1] if len(sys.argv) > 1 else f"cdna_kernels/{NAME}.s"
    kw = {}
    for a in sys.argv[2:]:
        k, v = a.split("=")
        kw[k] = int(v) if v.lstrip("-").isdigit() else v
    g = Gen(**kw)
    open(out, "w").write(g.build())
    if kw.get("ts"): open(out + ".names", "w").write(" ".join(g.tsnames))
    print("wrote", out, "nops", g.A.nops)
```

```python
import sys, math, struct
from asmlib import Asm, parse

NAME = "interleave_layers__gqa_block_cached__dense_activation_gelu__decode"
HEADER = open("cdna_kernels/%s.s.ref" % NAME).read().split("; Override launch")[0]

L_WQ, L_WO, L_W1, L_W2 = 0, 16384, 32768, 49152
L_ACC = 55296
L_SO = 57344
L_KV = 61440
NLDS = 25
RED2 = L_ACC
RED4 = L_ACC + 512
L_ST = L_ACC + 1536
L_RACE = L_ACC + 1600
OB, AP, YP, ST, HB, X1, X2, QB = 0x0, 0x10000, 0x20000, 0x30000, 0x32000, 0x34000, 0x38000, 0x3c000
LSTRIDE = 0x40000
QB0 = 0x80000
WS_BYTES = 0x84000
TS_OFF = 0x100000

sW, sG, sI, sHH, sB = "s3", "s4", "s5", "s6", "s7"
rK, rV, rWS, rX, rWQ, rWO, rW1, rW2, rB1, rB2, rOUT, rDBG = [f"s[{k}:{k+3}]" for k in range(8, 56, 4)]
mA, mAlo, m16, m8, sAlive, mOV = [f"s[{k}:{k+1}]" for k in range(56, 68, 2)]
sCnt, sMode, sLayer, sRot, sKVl, sSK, sSV, sT0, sT1, sT2 = [f"s{k}" for k in range(68, 78)]
sOown, sSTown, sOg, sSTg, sAPown, sAPg, sX1own, sX1g, sHown, sHg, sYPown, sYPg, sX2own, sX2g, sQown, sQg = [f"s{k}" for k in range(78, 94)]
sCopy, sT3, sTau = "s94", "s95", "s96"
sDry = "s[46:47]"
mR8 = "s[0:1]"
sTS = "s[98:99]"
LIMIT = 100000
QREG = 96

C_SCALE = math.log2(math.e) / math.sqrt(128.0)
def f2u(x): return "0x%08x" % struct.unpack("<I", struct.pack("<f", x))[0]

def kloc(f):
    return ("l", f) if f < 12 else ("r", f"a[{4*(f-12)}:{4*(f-12)+3}]")
def vloc(f):
    if f < 13: return ("l", 12 + f)
    if f < 25: return ("r", f"a[{208+4*(f-13)}:{208+4*(f-13)+3}]")
    return ("r", f"v[{100+4*(f-25)}:{100+4*(f-25)+3}]")
def q4(b): return f"v[{b}:{b+3}]"
def q2(b): return f"v[{b}:{b+1}]"
FULL = "row_mask:0xf bank_mask:0xf"

class Gen:
    def __init__(s, kvpol="nt", wpol="", ts=False, lag=16, forceG=False, padend=0, padchain=0, padcyc=0,
                 dL=2, dG=3, gapL=1, gapG=2, race=0, copy=-1, cpf=6, bar=1, dQ=2, cpf0=1, padbase=1, padq=0, pad2=0, vpol=None, early=0, touch=1, s7at=40, tilesat=48, chkv=12, qv=24, wolast=1, gdelay=4, opt=1, rotm=(1, 4, 1), vrot=0, spread=0, sp0=8, sched=0, ssp=10, cpfone=1, skipt='', wqat=0, arrat=16, chkat=48, qi=12, stag=0, stag2=0, qpol=None, wopos=64, w12pos=64, stouch=0, late=0, dry=1, dryat=42, nanchk=1, odelay=4, q96=1, hdelay=0, qdelay=0, xdelay=0):
        s.A = Asm(); s.kvpol = kvpol; s.wpol = wpol; s.ts = ts; s.lag = lag; s.forceG = forceG
        s.padend = padend; s.padchain = padchain; s.padcyc = padcyc
        s.dL = dL; s.dG = dG; s.gapL = gapL; s.gapG = gapG; s.race = race; s.copy = copy; s.cpf = cpf; s.bar = bar; s.dQ = dQ; s.cpf0 = cpf0; s.padbase = padbase; s.padq = padq; s.pad2 = pad2; s.early = early; s.touch = touch; s.s7at = s7at; s.tilesat = tilesat; s.chkv = chkv; s.qv = qv; s.wolast = wolast; s.gdelay = gdelay; s.opt = opt; s.rotm = eval(rotm) if isinstance(rotm, str) else rotm; s.vrot = vrot; s.spread = spread; s.sp0 = sp0; s.sched = sched; s.ssp = ssp; s.cpfone = cpfone; s.skipt = skipt; s.wqat = wqat; s.arrat = arrat; s.chkat = chkat; s.qi = qi; s.stag = stag; s.stag2 = stag2; s.qpol = qpol; s.wopos = wopos; s.w12pos = w12pos; s.stouch = stouch; s.late = late; s.dry = dry; s.dryat = dryat; s.nanchk = nanchk; s.odelay = odelay; s.q96 = q96; s.hdelay = hdelay; s.qdelay = qdelay; s.xdelay = xdelay; s.kvpol = s.kvpol.replace('+', ' '); s.wpol = s.wpol.replace('+', ' '); s.vpol = s.kvpol if vpol is None else vpol.replace('+', ' ')
        s.tail = []
        s.hook = None
        s.nts = 0; s.inchain = False; s.ts0 = 0
    def stamp(s, name):
        if not s.ts: return
        A = s.A
        k = s.nts; s.nts += 1
        s.tsnames = getattr(s, "tsnames", []) + [name]
        if s.inchain:
            j = k - s.ts0
            assert j < 14
            A(f"s_memrealtime s[{20+2*j}:{21+2*j}]")
            return
        A(f"s_memrealtime {sTS}")
        A(f"s_lshl_b32 s97, {sLayer}, 5\ns_add_u32 m0, s97, {k}")
        A("s_waitcnt lgkmcnt(0)")
        A.ds_done = A.ds_issued
        A(f"v_writelane_b32 v12, s98, m0")
    def ts_flush(s, zero_only=False):
        if not s.ts: return
        A = s.A
        if not zero_only:
            A("s_waitcnt lgkmcnt(0)")
            A.ds_done = A.ds_issued
            A(f"s_lshl_b32 s97, {sLayer}, 5")
            for j in range(14):
                A(f"s_add_u32 m0, s97, {s.ts0 + j}\nv_writelane_b32 v12, s{20+2*j}, m0")
        for j in range(14): A(f"s_mov_b32 s{20+2*j}, 0")
    def spin_until(s, n, clock="s_memrealtime", base="s97"):
        A = s.A; l = A.newlabel("L_spin")
        A.label(l)
        A(f"{clock} s[98:99]\ns_waitcnt lgkmcnt(0)\ns_sub_u32 s98, s98, {base}\ns_cmp_lt_u32 s98, {n}\ns_cbranch_scc1 {l}")
    def mode_test(s):
        s.A(f"s_cmp_eq_u32 {sMode}, 0")
    def publish(s, stores, tested=False):
        A = s.A
        if isinstance(stores, str): stores = [stores]
        slow = A.newlabel("L_slow"); back = A.newlabel("L_back")
        if not tested: s.mode_test()
        A(f"s_cbranch_scc1 {slow}")
        for t in stores: A(t.format(pol=""))
        A.label(back)
        s.tail.append(f"{slow}:\n" + "".join("    " + l + "\n" for t in stores for l in t.format(pol="sc1").split("\n")) + f"    s_branch {back}")
    def poll(s, issue, nld, regs, tmp, depth, gap, primed=None):
        A = s.A
        for p in range(depth - 1):
            issue()
            if gap and not primed: A(f"s_sleep {gap}")
        if primed:
            A(f"s_waitcnt vmcnt({(depth-1)*nld})")
            primed()
        lab = A.newlabel("L_poll"); A.label(lab)
        issue()
        A(f"s_add_u32 {sCnt}, {sCnt}, 1")
        A(f"s_cmp_lt_u32 {sCnt}, {LIMIT}")
        A(f"s_cselect_b64 {sAlive}, -1, 0")
        A(f"s_waitcnt vmcnt({(depth-1)*nld})")
        regs = list(regs)
        if len(regs) % 2 == 0:
            A(f"v_max_u32 v{tmp}, v{regs[0]}, v{regs[1]}"); rest = regs[2:]
        else:
            A(f"v_max3_u32 v{tmp}, v{regs[0]}, v{regs[1]}, v{regs[2]}"); rest = regs[3:]
        for k in range(0, len(rest), 2):
            A(f"v_max3_u32 v{tmp}, v{tmp}, v{rest[k]}, v{rest[k+1]}")
        A(f"v_cmp_eq_u32 vcc, -1, v{tmp}")
        A(f"s_and_b64 vcc, vcc, {sAlive}")
        A(f"s_cbranch_scc1 {lab}")
    def probe(s, gx, add, op, va, vd):
        if s.copy >= 0 or s.race: return
        A = s.A
        l = A.newlabel("L_np")
        A(f"s_sub_u32 {sT0}, {sW}, 1\ns_cmp_gt_u32 {sT0}, 1\ns_cbranch_scc1 {l}")
        A(f"s_xor_b32 {sT1}, {sG}, {gx}\ns_and_b32 {sT1}, {sT1}, 6\ns_add_u32 {sT1}, {sT1}, {sT0}\ns_lshl_b32 {sT1}, {sT1}, 13\ns_lshl_b32 {sT2}, {sI}, 8\ns_add_u32 {sT1}, {sT1}, {sT2}\ns_add_u32 {sT1}, {sT1}, {add}")
        A(f"s_waitcnt lgkmcnt(0)\ns_memtime s[100:101]\ns_load_dword {sT2}, s[16:17], {sT1}\ns_waitcnt lgkmcnt(0)\ns_memtime s[98:99]")
        A(f"s_lshl_b32 {sT0}, {sT0}, 2\ns_add_u32 {sT0}, {sT0}, {L_RACE}\nv_mov_b32 v{va}, {sT0}\ns_waitcnt lgkmcnt(0)\ns_sub_u32 s100, s98, s100\nv_mov_b32 v{vd}, s100")
        A(f"{op} v{va}, v{vd}")
        A.label(l)
    def pick_copy(s, r):
        if s.copy >= 0 or s.race: return
        s.A(f"v_readfirstlane_b32 {sT2}, v{r}\nv_readfirstlane_b32 {sT1}, v{r+1}\ns_nop 0\ns_cmp_lt_u32 {sT1}, {sT2}\ns_cselect_b32 {sCopy}, 8192, 0")
    def barrier(s):
        A = s.A
        if s.dry > 1 and s.inchain:
            l = A.newlabel("L_nb")
            A(f"s_mov_b64 vcc, {sDry}\ns_cbranch_vccnz {l}\ns_barrier")
            A.label(l)
        else: A("s_barrier")
    def drain(s):
        s.A("s_waitcnt vmcnt(0)")
    def tr_reads(s, tile, nsteps, base, addr="v8", step=256):
        for kk in range(nsteps):
            for hf in range(2):
                s.A.ds(f"ds_read_b64_tr_b16 {q2(base + 4*kk + 2*hf)}, {addr} offset:{tile + kk*step + hf*128}")
    def kv_load(s, kind, f):
        A = s.A
        if kind == "k":
            u, rem = f // 4, (f % 4) * 1024; loc = kloc(f); srd, vo, so = rK, "v6", sSK
        else:
            u, rem = f // 4, ((f % 4) >> 1) * 512 + (f & 1) * 128; loc = vloc(f); srd, vo, so = rV, "v7", sSV
        m0 = None
        pol = s.kvpol if kind == "k" else s.vpol
        if loc[0] == "l":
            m0 = loc[1]*1024 - rem
            if s.m0cur != m0: A(f"s_add_u32 m0, {sKVl}, {m0}")
        if f % 4 == 0:
            A(f"s_add_u32 {so}, {sRot}, {u*4096}")
            A(f"s_and_b32 {so}, {so}, 0xffff")
        if loc[0] == "r":
            return A.vm(f"buffer_load_dwordx4 {loc[1]}, {vo}, {srd}, {so} offen offset:{rem} {pol}")
        s.m0cur = m0 if not s.ts else None
        return A.vm(f"buffer_load_dwordx4 {vo}, {srd}, {so} offen offset:{rem} {pol} lds")
    def ln_pre(s, tile, red, sg=None):
        A = s.A
        if tile is not None: s.tr_reads(tile, 4, 16)
        A("v_bfe_u32 v84, v0, 2, 2")
        A("v_cmp_eq_u32 vcc, 2, v84")
        A("v_mov_b32 v85, 0x3f803f80")
        A(f"s_mul_i32 {sT0}, {sW}, 192\ns_add_u32 {sT0}, {sT0}, {red}")
        A("v_cndmask_b32 v32, 0, v85, vcc")
        for k in range(33, 36): A(f"v_mov_b32 v{k}, v32")
        if sg is not None:
            A(f"s_mov_b64 exec, {mR8}")
            A(f"buffer_load_dwordx4 v[32:35], v9, {rWS}, {sg} offen sc1")
            A("s_mov_b64 exec, -1")
        A(f"v_lshlrev_b32 v84, 2, v0\nv_add_u32 v84, {sT0}, v84")
        A(f"s_lshl_b32 {sT0}, {sW}, 4\ns_add_u32 {sT0}, {sT0}, {red + 768}")
        A("v_bfe_u32 v85, v0, 2, 1\nv_lshrrev_b32 v86, 5, v0\nv_lshlrev_b32 v85, 3, v85\nv_lshl_add_u32 v85, v86, 2, v85")
        A(f"v_add_u32 v85, {sT0}, v85")
        A(f"v_lshlrev_b32 v86, 3, v0\nv_and_b32 v87, 56, v86\nv_add_u32 v86, {red}, v86\nv_add_u32 v87, {red + 128}, v87")
        A(f"v_and_b32 v88, 8, v0\nv_add_u32 v88, {red + 768}, v88")
    def ln_mma(s):
        A = s.A
        A.wait_ds0()
        A("v_mfma_f32_16x16x32_bf16 v[52:55], v[32:35], v[32:35], 0")
        for c in range(4):
            A(f"v_mfma_f32_16x16x32_bf16 {q4(36+4*c)}, v[32:35], {q4(16+4*c)}, 0")
        A("s_mov_b32 s100, 0x00100001\ns_mov_b32 s101, 0x11") if False else None
        A(f"v_mov_b32_dpp v56, v52 quad_perm:[0,0,0,0] {FULL}")
        for c in range(1, 4): A(f"v_add_f32_dpp v56, v{52+c}, v56 quad_perm:[{c},{c},{c},{c}] {FULL}")
        A("s_mov_b32 exec_lo, 0x00100001\ns_mov_b32 exec_hi, 0x11")
        A.ds("ds_write_b32 v85, v56")
        A("s_mov_b32 exec_lo, -1\ns_mov_b32 exec_hi, 0xffff")
        A("v_add_f32 v36, v36, v41\nv_add_f32 v46, v46, v51\nv_add_f32 v36, v36, v46")
        A.ds("ds_write_b32 v84, v36")
        A("s_mov_b64 exec, -1")
        A.wait_ds0()
        s.barrier()
    def ln_final(s):
        A = s.A
        A.ds("ds_read2_b64 v[72:75], v88 offset0:0 offset1:2")
        st = A.ds("ds_read2_b64 v[76:79], v88 offset0:4 offset1:6")
        A.ds("ds_read2_b64 v[64:67], v86 offset0:0 offset1:24")
        A.ds("ds_read2_b64 v[68:71], v86 offset0:48 offset1:72")
        A.ds("ds_read2_b64 v[80:83], v87 offset0:0 offset1:24")
        A.ds("ds_read2_b64 v[84:87], v87 offset0:48 offset1:72")
        A.wait_ds(st)
        A("v_pk_add_f32 v[72:73], v[72:73], v[74:75]\nv_pk_add_f32 v[76:77], v[76:77], v[78:79]")
        A("v_pk_add_f32 v[72:73], v[72:73], v[76:77]")
        A(f"v_mul_f32 v74, {f2u(1/512)}, v73")
        A(f"v_mul_f32 v72, {f2u(1/512)}, v72")
        A("v_fma_f32 v72, -v74, v74, v72")
        A("v_max_f32 v72, 0, v72")
        A(f"v_add_f32 v72, {f2u(1e-5)}, v72")
        A("v_rsq_f32 v76, v72")
        A.wait_ds0()
        A("v_pk_add_f32 v[64:65], v[64:65], v[66:67]\nv_pk_add_f32 v[68:69], v[68:69], v[70:71]")
        A("v_pk_add_f32 v[80:81], v[80:81], v[82:83]\nv_pk_add_f32 v[84:85], v[84:85], v[86:87]")
        A("v_pk_add_f32 v[64:65], v[64:65], v[68:69]\nv_pk_add_f32 v[80:81], v[80:81], v[84:85]")
        A("v_pk_fma_f32 v[64:65], v[80:81], v[74:75], v[64:65] op_sel_hi:[1,0,1] neg_lo:[1,0,0] neg_hi:[1,0,0]")
        A("v_pk_mul_f32 v[64:65], v[64:65], v[76:77] op_sel_hi:[1,0]")
    def ln_poll(s, sg):
        A = s.A
        if s.bar: s.barrier()
        if s.xdelay: A(f"s_sleep {s.xdelay}")
        A(f"s_mov_b64 exec, {mR8}")
        def issue(): A(f"buffer_load_dwordx4 v[32:35], v9, {rWS}, {sg} offen sc1")
        s.poll(issue, 1, range(32, 36), 63, s.dL, s.gapL)
        A("s_mov_b64 exec, -1")
    def pair_off(s, dst, tmp, shift):
        s.A(f"v_lshlrev_b32 v{dst}, 2, v0\nv_and_b32 v{dst}, 28, v{dst}\nv_bfe_u32 v{tmp}, v0, 3, 1\nv_lshl_add_u32 v{dst}, v{tmp}, {shift}, v{dst}")
    def att_prefetchK(s):
        A = s.A
        s.stg = {}
        for f in range(8):
            s.stg[("k", f)] = (64 + 4*f, A.ds(f"ds_read_b128 {q4(64+4*f)}, v1 offset:{f*1024}"))
        for k in range(16, 32): A(f"v_mov_b32 v{k}, 0")
        A(f"v_mov_b32 v63, {f2u(C_SCALE)}")
    def attention(s, p1=None):
        A = s.A
        stg = s.stg
        free = []
        def ldsread(kind, f, slotreg):
            slot = kloc(f)[1] if kind == "k" else vloc(f)[1]
            if p1: A.wait_vm(p1.ids[(kind, f)])
            stg[(kind, f)] = (slotreg, A.ds(f"ds_read_b128 {q4(slotreg)}, v1 offset:{slot*1024}"))
        def operand(kind, f, ahead=0):
            loc = kloc(f) if kind == "k" else vloc(f)
            if loc[0] == "r":
                if p1: A.wait_vm(p1.ids[(kind, f)])
                return loc[1]
            reg, did = stg[(kind, f)]
            if did >= A.ds_done:
                last = max([d for (k2, f2), (r2, d) in stg.items() if k2 == kind and f <= f2 <= f + ahead] )
                A.wait_ds(last)
            return q4(reg)
        def build_aq(t):
            for k in range(4):
                A(f"v_mov_b32_dpp v{16+4*t+k}, v{QREG+k} quad_perm:[0,1,2,3] row_mask:0xf bank_mask:{1<<t:#x}")
        order = [0, 1, 3, 4, 5, 2] + list(range(6, 16))
        D = lambda n: 48 + 4 * (n % 3)
        vq = list(range(13))
        def dppsum(n, c):
            u = order[n]
            if c == 0: A(f"v_mul_f32_dpp v{32+u}, v{D(n)}, v63 quad_perm:[0,0,0,0] {FULL}")
            else: A(f"v_fmac_f32_dpp v{32+u}, v{D(n)+c}, v63 quad_perm:[{c},{c},{c},{c}] {FULL}")
        build_aq(0); build_aq(1)
        extra = []
        for n, u in enumerate(order):
            for t in range(4):
                op = operand("k", 4*u + t, 7 if u == 0 else 3)
                A(f"v_mfma_f32_16x16x32_bf16 {q4(D(n))}, {q4(16+4*t)}, {op}, {'0' if t == 0 else q4(D(n))}")
                if n == 0 and t < 2: build_aq(t + 2)
                if n >= 2: dppsum(n - 2, t)
                if extra: extra.pop(0)()
            if n == 0:
                for k in range(4): extra.append(lambda k=k: ldsread("k", 8 + k, 64 + 4*k))
            if n == 1: free += [80, 84, 88, 92]
            if n == 5: free += [64, 68, 72, 76]
            if n >= 1 and free and vq:
                extra.append(lambda f=vq.pop(0), r=free.pop(0): ldsread("v", f, r))
            if n >= 3 and n % 2 == 1:
                a, b = order[n-3], order[n-2]
                if n == 3: extra.append(lambda a=a, b=b: A(f"v_max_f32 v60, v{32+a}, v{32+b}"))
                else: extra.append(lambda a=a, b=b: A(f"v_max3_f32 v60, v60, v{32+a}, v{32+b}"))
            if p1: p1.issue_more(1)
        if s.hook: s.hook(1)
        for c in range(4): dppsum(14, c)
        while extra: extra.pop(0)()
        A(f"v_max_f32 v60, v60, v{32+order[14]}")
        for c in range(4): dppsum(15, c)
        A(f"v_max_f32 v60, v60, v{32+order[15]}")
        A("v_lshrrev_b32 v56, 5, v0\nv_and_b32 v57, 1, v0")
        A(f"v_max_f32_dpp v60, v60, v60 row_ror:4 {FULL}")
        A("v_lshlrev_b32 v56, 9, v56\nv_lshl_add_u32 v56, v57, 8, v56")
        A(f"v_max_f32_dpp v60, v60, v60 row_ror:8 {FULL}")
        A("v_and_b32 v57, 28, v0\nv_lshl_add_u32 v56, v57, 2, v56")
        A("v_max_f32_dpp v60, v60, v60 row_bcast:15 row_mask:0xa bank_mask:0xf")
        A(f"s_lshl_b32 {sT1}, {sW}, 10\ns_add_u32 {sT1}, {sT1}, {L_SO}")
        A("v_max_f32_dpp v60, v60, v60 row_bcast:31 row_mask:0xc bank_mask:0xf")
        A(f"v_add_u32 v56, {sT1}, v56")
        A(f"v_readlane_b32 {sT0}, v60, 63")
        A("v_and_b32 v57, 48, v0\nv_and_b32 v58, 3, v0")
        A(f"v_mov_b32 v62, {sT0}")
        def expo(u, part):
            t = 28 + (u & 1)
            if part == 0: A(f"v_sub_f32 v{t}, v{32+u}, v62")
            elif part == 1: A(f"v_exp_f32 v{t}, v{t}")
            elif part == 2: A(f"v_cvt_pk_bf16_f32 v{32+u}, v{t}, v{t}")
            elif u == 0: A(f"v_mov_b32 v63, v{t}")
            else: A(f"v_add_f32 v63, v63, v{t}")
        B = lambda k: 16 + 4 * (k % 3)
        def band(k, c):
            u, sidx = k >> 1, k & 1
            n = (4*c - 2 - 8*sidx) % 16
            A(f"v_and_b32_dpp v{B(k)+c}, v{32+u}, v{2+c} row_ror:{n} {FULL}")
        expo(0, 0); expo(1, 0); expo(0, 1); expo(1, 1); expo(0, 2); expo(0, 3); expo(1, 2)
        for c in range(4): band(0, c)
        expo(1, 3)
        if s.hook: s.hook(2)
        for c in range(4): band(1, c)
        fill = []
        fill.append("v_lshl_add_u32 v57, v58, 2, v57")
        fill.append("v_bfe_u32 v58, v0, 2, 2")
        fill.append("v_add_u32 v57, v57, v58")
        fill.append(f"v_lshlrev_b32 v57, 2, v57")
        fill.append(f"v_add_u32 v57, {L_SO}, v57")
        fill.append(f"s_lshl_b32 {sT1}, {sW}, 3\ns_add_u32 {sT1}, {sT1}, {L_ST}\nv_mov_b32 v58, {sT1}")
        red = [f"v_add_f32_dpp v63, v63, v63 row_ror:4 {FULL}",
               f"v_add_f32_dpp v63, v63, v63 row_ror:8 {FULL}",
               "v_add_f32_dpp v63, v63, v63 row_bcast:15 row_mask:0xa bank_mask:0xf",
               "v_add_f32_dpp v63, v63, v63 row_bcast:31 row_mask:0xc bank_mask:0xf"]
        for u in range(16):
            if p1:
                p1.issue_upto(4*u + 3 + s.lag)
                if u == s.cpf: p1.code_prefetch()
                if u == 12: s.probe(2, 0, "ds_write_b32", 31, 59)
                if u == 13: s.probe(2, 128, "ds_min_u32", 31, 59)
            if u == 9 and s.opt:
                A(f"v_lshlrev_b32 v31, 7, v0\ns_mov_b64 exec, {m16}")
                A.vm(f"buffer_load_dword v61, v31, {rWS}, {sOg} offen sc1")
                A.vm(f"buffer_load_dword v61, off, {rWS}, {sSTg} sc1")
                A("s_mov_b64 exec, -1")
            for j in range(4):
                f = 4*u + j; k = 2*u + (j >> 1)
                op = operand("v", f, 3)
                o = 48 + 4*(j & 1)
                first = (u == 0 and j < 2)
                A(f"v_mfma_f32_16x16x32_bf16 {q4(o)}, {op}, {q4(B(k))}, {'0' if first else q4(o)}")
                if k + 2 < 32:
                    band(k + 2, 2*(j & 1)); band(k + 2, 2*(j & 1) + 1)
                if u + 2 < 16: expo(u + 2, j)
                elif red and (j % 2 == 0): A(red.pop(0))
                if u >= 14 or (u >= 4 and j == 0):
                    if fill: A(fill.pop(0))
                if vloc(f)[0] == "l":
                    free.append(stg[("v", f)][0])
                    if vq: ldsread("v", vq.pop(0), free.pop(0))
        assert not red and not fill, (red, fill)
    def build(s):
        A = s.A
        s.m0cur = None
        A.raw(HEADER.rstrip())
        A.raw("; @launch grid=(256,1,1) block=(256,1,1) lds=163840")
        A.raw('.amdgcn_target "amdgcn-amd-amdhsa--gfx950"\n.text')
        A.raw(f".globl {NAME}_kernel\n.p2align 8\n.type {NAME}_kernel,@function\n{NAME}_kernel:")
        if s.padbase == 0: A("s_memrealtime s[98:99]")
        if s.ts: A("s_memrealtime s[100:101]")
        A("s_load_dwordx16 s[56:71], s[0:1], 0")
        A("s_load_dwordx8 s[72:79], s[0:1], 64")
        A("s_load_dwordx2 s[80:81], s[0:1], 96")
        A("s_cmp_ge_u32 s2, 256\ns_cbranch_scc1 L_end")
        if s.ts: A("v_mov_b32 v12, 0")
        if s.cpf0:
            A("s_getpc_b64 s[20:21]")
            A.label("L_pc0")
            A.raw(f"    s_mov_b32 s22, L_code_end-{NAME}_kernel")
            A("s_and_b32 s20, s20, 0xffffff00")
            if s.cpfone:
                A("s_mov_b32 s23, 0x20000\nv_lshlrev_b32 v2, 4, v0\ns_lshr_b32 s24, s2, 3\ns_lshl_b32 s24, s24, 12")
                A.vm(f"buffer_load_dwordx4 v[100:103], v2, {rX}, s24 offen")
            else:
                A("s_mov_b32 s23, 0x20000\nv_lshlrev_b32 v2, 4, v0\ns_movk_i32 s24, 0x1000\ns_movk_i32 s25, 0x2000\ns_movk_i32 s26, 0x3000\ns_movk_i32 s27, 0x4000")
                for j, so in enumerate(("0", "s24", "s25", "s26", "s27")):
                    A.vm(f"buffer_load_dwordx4 {q4(100+4*j)}, v2, {rX}, {so} offen")
        A("v_lshrrev_b32 v1, 6, v0")
        A("v_and_b32 v0, 63, v0")
        A(f"v_readfirstlane_b32 {sW}, v1")
        A(f"s_and_b32 {sG}, s2, 7\ns_lshr_b32 {sI}, s2, 3\ns_lshr_b32 {sHH}, s2, 6\ns_bfe_u32 {sB}, s2, 0x10005")
        A("v_and_b32 v16, 3, v0")
        A("v_bfe_u32 v17, v0, 2, 2")
        A("v_lshrrev_b32 v18, 4, v0")
        A("v_lshlrev_b32 v6, 4, v16\nv_lshl_add_u32 v6, v17, 8, v6\nv_lshl_add_u32 v6, v18, 6, v6")
        A("v_and_b32 v19, 7, v0\nv_bfe_u32 v20, v0, 3, 1")
        A("v_lshlrev_b32 v7, 4, v19\nv_lshl_add_u32 v7, v20, 8, v7\nv_lshl_add_u32 v7, v18, 10, v7")
        A(f"s_lshl_b32 s82, {sB}, 5\ns_lshl_b32 s83, {sG}, 2\ns_add_u32 s82, s82, s83\ns_add_u32 s82, s82, {sHH}\ns_lshl_b32 s82, s82, 20")
        A(f"s_and_b32 s83, {sI}, 3\ns_lshl_b32 s83, s83, 18\ns_add_u32 s82, s82, s83\ns_lshl_b32 s83, {sW}, 16\ns_add_u32 s82, s82, s83")
        A(f"s_mul_i32 s84, {sG}, {s.rotm[0]}\ns_mul_i32 s83, {sI}, {s.rotm[1]}\ns_add_u32 s84, s84, s83\ns_mul_i32 s83, {sW}, {s.rotm[2]}\ns_add_u32 s84, s84, s83\ns_and_b32 s84, s84, 15\ns_lshl_b32 s84, s84, 12")
        A(f"s_mul_i32 s85, {sW}, {NLDS*1024}\ns_add_u32 s85, s85, {L_KV}")
        A("s_mov_b32 s10, 0x10000\ns_mov_b32 s11, 0x20000\ns_mov_b32 m0, s85")
        A("s_waitcnt lgkmcnt(0)")
        if s.padbase == 0: A("s_mov_b32 s97, s98")
        if s.padbase == 2: A("s_memrealtime s[98:99]\ns_waitcnt lgkmcnt(0)\ns_mov_b32 s97, s98")
        A("s_add_u32 s8, s58, s82\ns_addc_u32 s9, s59, 0")
        ids = {}
        for f in range(4):
            ids[("k", f)] = A.vm(f"buffer_load_dwordx4 v6, {rK}, s84 offen offset:{f*1024} {s.kvpol} lds")
        A("s_add_u32 s12, s60, s82\ns_addc_u32 s13, s61, 0\ns_mov_b32 s14, 0x10000\ns_mov_b32 s15, 0x20000")
        if s.stouch:
            A(f"s_lshl_b32 s86, {sG}, 19\ns_mul_i32 s87, {sG}, {176*1024}")
            for p, off in ((12, "0"), (80, "0"), (56, "0"), (62, "0"), (62, "0x200000 - 4"), (70, "0"), (74, "0"), (76, "0"), (78, "0"),
                           (64, "s86"), (68, "0"), (72, "s87")):
                if off.startswith("0x2"):
                    A("s_mov_b32 s88, 0x300000"); off = "s88"
                A(f"s_load_dword s99, s[{p}:{p+1}], {off}")
        if s.touch:
            A(f"s_add_u32 m0, s85, {12*1024}")
            ids[("v", 0)] = A.vm(f"buffer_load_dwordx4 v7, {rV}, s84 offen {s.vpol} lds")
        def srd(k, lo, n):
            A(f"s_mov_b32 s{k}, s{lo}\ns_mov_b32 s{k+1}, s{lo+1}\ns_mov_b32 s{k+2}, {n}\ns_mov_b32 s{k+3}, 0x20000")
        s.wsbytes = WS_BYTES if not s.ts else TS_OFF + 0x40000
        srd(16, 80, s.wsbytes)
        srd(20, 56, 2048); srd(24, 62, 4 << 20); srd(28, 64, 4 << 20); srd(32, 68, 512*2752)
        A(f"s_mul_i32 s83, {sG}, {176*1024}\ns_add_u32 s36, s72, s83\ns_addc_u32 s37, s73, 0")
        A(f"s_sub_u32 s38, {1376*1024}, s83\ns_min_u32 s38, s38, {176*1024}\ns_mov_b32 s39, 0x20000")
        srd(40, 70, 2752); srd(44, 74, 1024); srd(48, 76, 2048); srd(52, 78, 256)
        for ch, r in (("q", 26), ("o", 30), ("1", 34), ("2", 38)):
            if ch in str(s.skipt): A(f"s_mov_b32 s{r}, 0")
        A(f"s_mov_b32 {sRot}, s84\ns_mov_b32 {sKVl}, s85")
        A("s_mov_b32 s56, 0x00030003\ns_mov_b32 s57, 0x00030003\ns_mov_b32 s58, 0x00030003\ns_mov_b32 s59, 0")
        A("s_mov_b32 s60, 0xffff\ns_mov_b32 s61, 0\ns_mov_b32 s62, 0xff\ns_mov_b32 s63, 0")
        A("s_mov_b32 s66, 0x33333333\ns_mov_b32 s67, 0xcccccccc")
        A(f"s_mov_b32 {sCnt}, 0\ns_mov_b32 {sMode}, 0\ns_mov_b32 {sLayer}, 0")
        A(f"s_mul_i32 {sTau}, {sG}, 11\ns_add_u32 {sTau}, {sTau}, {sI}")
        if s.ts:
            s.nts = 1; s.tsnames = ["start"]
            A("v_writelane_b32 v12, s100, 0")
        s.m0cur = None
        for f in range(4, max(4, s.late)): ids[("k", f)] = s.kv_load("k", f)
        if (s.padend or s.padchain) and s.padbase == 1: A("s_memrealtime s[98:99]\ns_waitcnt lgkmcnt(0)\ns_mov_b32 s97, s98")
        A("v_mov_b32 v64, -1\nv_mov_b32 v65, -1\nv_mov_b32 v66, -1\nv_mov_b32 v67, -1")
        A(f"s_lshl_b32 {sT0}, s2, 11\nv_lshlrev_b32 v21, 4, v0")
        A(f"s_cmp_lg_u32 {sW}, 0\ns_cbranch_scc1 L_noclr")
        A.vm(f"buffer_store_dwordx4 v[64:67], v21, {rWS}, {sT0} offen sc1", optional=True)
        A.vm(f"buffer_store_dwordx4 v[64:67], v21, {rWS}, {sT0} offen offset:1024 sc1", optional=True)
        A.label("L_noclr")
        A("v_and_b32 v27, 1, v0")
        A("v_lshrrev_b32 v83, 1, v0\nv_lshlrev_b32 v89, 4, v27")
        A("v_lshl_add_u32 v80, v83, 13, v89\nv_lshl_add_u32 v81, v83, 10, v89\nv_mul_u32_u24 v82, 2752, v83\nv_add_u32 v82, v82, v89")
        A(f"s_lshl_b32 {sT2}, {sI}, 5")
        wq_ids = []
        def tile_wq():
            A(f"s_lshl_b32 {sT2}, {sI}, 5")
            A(f"s_lshl_b32 {sT0}, {sW}, 20\ns_lshl_b32 {sT1}, {sG}, 10\ns_add_u32 {sT0}, {sT0}, {sT1}\ns_add_u32 {sT0}, {sT0}, {sT2}")
            A(f"s_lshl_b32 {sT1}, {sW}, 12")
            for j in range(4):
                A(f"s_add_u32 m0, {sT1}, {L_WQ + j*1024}")
                wq_ids.append(A.vm(f"buffer_load_dwordx4 v80, {rWQ}, {sT0} offen {s.wpol if s.qpol is None else s.qpol} lds"))
                A(f"s_add_u32 {sT0}, {sT0}, {32*8192}")
            s.m0cur = None
        if s.wqat < 4: tile_wq()
        A(f"s_lshl_b32 {sT0}, {sW}, 8")
        A(f"v_and_b32 v9, 0x1f0, v6\nv_and_b32 v28, 0x100, v9\nv_mad_u32_u24 v9, v28, 3, v9\nv_add_u32 v9, {sT0}, v9")
        A("s_mov_b32 s0, 0x00ff00ff\ns_mov_b32 s1, 0x00ff00ff")
        s.ln_pre(None, L_SO)
        A(f"s_mov_b64 exec, {mR8}")
        A.vm(f"buffer_load_dwordx4 v[32:35], v9, {rX}, 0 offen")
        A("s_mov_b64 exec, -1")
        A(f"s_lshl_b32 {sT0}, {sG}, 5\ns_add_u32 {sT0}, {sT0}, {sI}\ns_lshl_b32 {sOown}, {sT0}, 8")
        A(f"s_lshl_b32 {sOg}, {sG}, 13\ns_lshl_b32 {sT0}, {sW}, 11\ns_add_u32 {sOg}, {sOg}, {sT0}")
        A(f"s_lshl_b32 {sT0}, {sG}, 2\ns_add_u32 {sT1}, {sT0}, {sHH}\ns_add_u32 {sT0}, {sT0}, {sW}")
        A(f"s_lshl_b32 {sSTg}, {sT0}, 7\ns_add_u32 {sSTg}, {sSTg}, {ST}")
        A(f"s_and_b32 {sT3}, {sI}, 7\ns_lshl_b32 {sSTown}, {sT3}, 3\ns_lshl_b32 {sT0}, {sT1}, 7\ns_add_u32 {sSTown}, {sSTown}, {sT0}\ns_add_u32 {sSTown}, {sSTown}, {ST}")
        A(f"s_lshl_b32 {sAPg}, {sT3}, 10\ns_lshl_b32 {sT0}, {sHH}, 14\ns_add_u32 {sAPg}, {sAPg}, {sT0}\ns_add_u32 {sAPg}, {sAPg}, {AP}")
        A(f"s_lshl_b32 {sT0}, {sG}, 7\ns_add_u32 {sAPown}, {sAPg}, {sT0}")
        A(f"s_add_u32 {sYPg}, {sAPg}, {YP-AP}\ns_add_u32 {sYPown}, {sAPown}, {YP-AP}")
        A(f"s_lshl_b32 {sT0}, {sT1}, 9\ns_lshl_b32 {sT3}, {sT3}, 5\ns_add_u32 {sQown}, {sT0}, {sT3}\ns_lshl_b32 {sT3}, {sB}, 8\ns_add_u32 {sQg}, {sT0}, {sT3}")
        A(f"s_add_u32 {sQown}, {sQown}, {QB0}\ns_add_u32 {sQg}, {sQg}, {QB0}")
        A(f"s_lshl_b32 {sX1g}, {sG}, 11\ns_add_u32 {sX1g}, {sX1g}, {X1}\ns_add_u32 {sX1own}, {sX1g}, {sT2}")
        A(f"s_add_u32 {sX2g}, {sX1g}, {X2-X1}\ns_add_u32 {sX2own}, {sX1own}, {X2-X1}")
        A(f"s_lshl_b32 {sHg}, {sG}, 10\ns_add_u32 {sHg}, {sHg}, {HB}\ns_lshl_b32 {sHown}, {sI}, 6\ns_add_u32 {sHown}, {sHown}, {sHg}")
        if s.race: A(f"s_lshl_b32 {sCopy}, {sW}, 13")
        elif s.copy < 0: A(f"s_mov_b32 {sCopy}, 0")
        else: A(f"s_getreg_b32 {sCopy}, hwreg(HW_REG_XCC_ID)\ns_bfe_u32 {sCopy}, {sCopy}, 0x10002\ns_xor_b32 {sCopy}, {sCopy}, {s.copy}\ns_lshl_b32 {sCopy}, {sCopy}, 13")
        A("v_lshlrev_b32 v24, 2, v19\nv_lshl_add_u32 v25, v20, 8, v24\nv_lshl_add_u32 v26, v20, 10, v24")
        A(f"s_mov_b64 exec, {m16}")
        A(f"s_cmp_lg_u32 {sW}, 0\ns_cbranch_scc1 L_noclr2")
        A("s_mov_b64 exec, 0x303")
        A("v_lshlrev_b32 v25, 4, v19\nv_lshl_add_u32 v25, v20, 8, v25")
        A.vm(f"buffer_store_dwordx4 v[64:67], v25, {rWS}, {sQown} offen sc1", optional=True)
        A(f"s_mov_b64 exec, {m16}")
        A.label("L_noclr2")
        A.vm(f"buffer_load_dword v13, v26, {rX}, {sT2} offen")
        A.vm(f"buffer_load_dword v15, v24, {rB2}, {sT2} offen")
        A(f"s_lshl_b32 {sT0}, {sTau}, 5")
        last = A.vm(f"buffer_load_dword v14, v24, {rB1}, {sT0} offen")
        A("s_mov_b64 exec, -1")
        def tile_wo():
            A(f"v_lshrrev_b32 v59, 1, v0\nv_lshlrev_b32 v59, 10, v59\nv_and_b32 v31, 1, v0\nv_lshl_add_u32 v59, v31, 4, v59")
            A(f"s_lshl_b32 {sT2}, {sI}, 5")
            A(f"s_lshl_b32 {sT0}, {sG}, 19\ns_lshl_b32 {sT1}, {sW}, 17\ns_add_u32 {sT0}, {sT0}, {sT1}\ns_add_u32 {sT0}, {sT0}, {sT2}")
            A(f"s_lshl_b32 {sT3}, {sW}, 12")
            for j in range(4):
                A(f"s_add_u32 m0, {sT3}, {L_WO + j*1024}")
                A.vm(f"buffer_load_dwordx4 v59, {rWO}, {sT0} offen {s.wpol} lds")
                A(f"s_add_u32 {sT0}, {sT0}, {32*1024}")
            s.m0cur = None
        def tile_w12():
            A(f"v_lshrrev_b32 v59, 1, v0\nv_and_b32 v31, 1, v0\nv_lshlrev_b32 v31, 4, v31\nv_mul_u32_u24 v30, 2752, v59\nv_add_u32 v30, v30, v31\nv_lshl_add_u32 v59, v59, 10, v31")
            A(f"s_lshl_b32 {sT2}, {sI}, 5\ns_lshl_b32 {sT1}, {sW}, 12")
            A(f"s_mul_i32 {sT0}, {sW}, {128*2752}\ns_lshl_b32 s100, {sTau}, 5\ns_add_u32 {sT0}, {sT0}, s100")
            A(f"s_cmp_lt_u32 {sI}, 11\ns_cselect_b32 s34, s34, 0")
            for j in range(4):
                A(f"s_add_u32 m0, {sT1}, {L_W1 + j*1024}")
                A.vm(f"buffer_load_dwordx4 v30, {rW1}, {sT0} offen {s.wpol} lds")
                A(f"s_add_u32 {sT0}, {sT0}, {32*2752}")
            l = A.newlabel("L_w2")
            A(f"s_cmp_eq_u32 {sW}, 3\ns_cbranch_scc1 {l}")
            A(f"s_lshl_b32 {sT0}, {sW}, 16\ns_add_u32 {sT0}, {sT0}, {sT2}\nv_add_u32 v59, {sT0}, v59\nv_add_u32 v31, 0x8000, v59")
            A(f"s_lshl_b32 {sT1}, {sW}, 11")
            for j in range(2):
                A(f"s_add_u32 m0, {sT1}, {L_W2 + j*1024}")
                A.vm(f"buffer_load_dwordx4 v{(59, 31)[j]}, {rW2}, 0 offen {s.wpol} lds", optional=True)
            A.label(l)
            s.m0cur = None
        def tiles():
            if s.wolast < 1: tile_wo()
            if s.wolast < 2: tile_w12()
        ev = {}
        def kload(f):
            ids[("k", f)] = s.kv_load("k", f)
            for fn in ev.pop(f, []): fn()
        if s.touch:
            A("s_mov_b64 exec, 1")
            A.vm(f"buffer_load_dword v100, off, {rOUT}, 0")
            if s.touch > 1:
                A(f"s_lshl_b32 {sT0}, {sG}, 19\ns_mov_b32 {sT1}, {511*2752}")
                A.vm(f"buffer_load_dword v101, off, {rWO}, {sT0}")
                A.vm(f"buffer_load_dword v102, off, {rW1}, 0")
                A.vm(f"buffer_load_dword v103, off, {rW1}, {sT1}")
                A.vm(f"buffer_load_dword v104, off, {rW2}, 0")
            A("s_mov_b64 exec, -1")
        s.m0cur = None
        st = {}
        def e_pers():
            A(f"v_lshlrev_b32 v1, 4, v0\nv_add_u32 v1, {sKVl}, v1")
            A(f"s_lshl_b32 {sT0}, {sW}, 12")
            A(f"v_lshlrev_b32 v8, 3, v16\nv_lshl_add_u32 v8, v17, 5, v8\nv_lshl_add_u32 v10, v18, 8, v8\nv_lshl_add_u32 v8, v18, 10, v8\nv_add_u32 v8, {sT0}, v8")
            A("v_add_u32 v28, v16, v18\nv_and_b32 v28, 3, v28\nv_and_b32 v11, 4, v0\nv_lshlrev_b32 v11, 3, v11\nv_lshl_add_u32 v11, v28, 3, v11")
            A("v_mov_b32 v29, 0xffff\nv_mov_b32 v30, 0xffff0000\nv_cmp_eq_u32 vcc, 1, v27\nv_cndmask_b32 v29, v29, v30, vcc")
            for c in range(4):
                A(f"v_cmp_eq_u32 vcc, {c}, v17\nv_cndmask_b32 v{2+c}, 0, v29, vcc")
        def e_s7():
            A.wait_vm(max(last, wq_ids[-1]))
            s.tr_reads(L_WQ, 4, 16)
            s.ln_mma()
            skip = A.newlabel("L_skip")
            A(f"s_cmp_lg_u32 {sW}, 0\ns_cbranch_scc1 {skip}")
            A("v_mov_b32 v90, v80\nv_mov_b32 v91, v81\nv_mov_b32 v92, v82")
            A(f"s_mov_b64 exec, {m16}")
            s.ln_final()
            s.pair_off(68, 69, 8)
            A("v_cvt_pk_bf16_f32 v64, v64, v65\nv_min_u32 v64, -2, v64")
            A.vm(f"buffer_store_dword v64, v68, {rWS}, {sQown} offen sc1", optional=True)
            A("s_mov_b64 exec, -1")
            A("v_mov_b32 v81, v91\nv_mov_b32 v82, v92")
            A.label(skip)
            A.ds_done = A.ds_issued
            s.stamp("q0pub")
        def e_arr():
            A(f"s_cmp_lg_u32 {sW}, 0\ns_cbranch_scc1 L_noarr")
            A(f"s_waitcnt vmcnt({A.vm_issued - 1 - last})")
            A(f"s_getreg_b32 {sT0}, hwreg(HW_REG_XCC_ID)\ns_and_b32 {sT0}, {sT0}, 15\ns_mul_i32 {sT1}, {sT0}, 6\ns_add_u32 {sT1}, {sT1}, 8")
            A(f"s_lshl_b64 s[100:101], 1, {sT1}\ns_cmp_lt_u32 {sT0}, 8\ns_cselect_b64 s[100:101], s[100:101], 0\ns_or_b32 s100, s100, 1")
            A(f"v_mov_b32 v98, s100\nv_mov_b32 v99, s101\ns_lshl_b32 {sT0}, {sG}, 5\nv_mov_b32 v97, {sT0}")
            A("s_mov_b64 exec, 1")
            A.vm(f"buffer_atomic_add_x2 v[98:99], v97, {rDBG}, 0 offen sc1", optional=True)
            A("s_mov_b64 exec, -1")
            A.label("L_noarr")
        def e_chk():
            A("v_lshlrev_b32 v93, 5, v0")
            A(f"s_mov_b64 exec, {m8}")
            st['chk'] = A.vm(f"buffer_load_dwordx2 v[94:95], v93, {rDBG}, 0 offen sc1")
            A("s_mov_b64 exec, -1")
        def e_chk2():
            A.wait_vm(st['chk'])
            ok = A.newlabel("L_arr_ok"); lp = A.newlabel("L_arr")
            A(f"s_mov_b64 exec, {m8}")
            A.label(lp)
            A("v_and_b32 v96, 0xff, v94\nv_cmp_ne_u32 vcc, 32, v96")
            A(f"s_cbranch_vccz {ok}")
            A(f"s_sleep 4")
            A.vm(f"buffer_load_dwordx2 v[94:95], v93, {rDBG}, 0 offen sc1", optional=True)
            A(f"s_add_u32 {sCnt}, {sCnt}, 1\ns_cmp_lt_u32 {sCnt}, {LIMIT}\ns_waitcnt vmcnt(0)\ns_cbranch_scc1 {lp}")
            A.label(ok)
            A("s_mov_b64 exec, -1")
            A(f"v_readlane_b32 s100, v94, {sG}\nv_readlane_b32 s101, v95, {sG}")
            A(f"s_getreg_b32 {sT0}, hwreg(HW_REG_XCC_ID)\ns_and_b32 {sT0}, {sT0}, 15\ns_mul_i32 {sT1}, {sT0}, 6\ns_add_u32 {sT1}, {sT1}, 8")
            A(f"s_lshr_b64 s[100:101], s[100:101], {sT1}\ns_and_b32 s100, s100, 63\ns_cmp_eq_u32 s100, 32\ns_cselect_b32 {sMode}, 1, 0")
            A(f"s_cmp_lt_u32 {sT0}, 8\ns_cselect_b32 {sMode}, {sMode}, 0")
            if s.forceG: A(f"s_mov_b32 {sMode}, 0")
        def slot(fn, k):
            def g():
                l = A.newlabel("L_slot")
                A(f"s_and_b32 {sT0}, {sI}, 3\ns_cmp_lg_u32 {sT0}, {k}\ns_cbranch_scc1 {l}")
                n = A.vm_issued
                fn()
                A.vm_issued = n
                A.label(l)
                s.m0cur = None
                if k == 3 and fn is tile_wq: wq_ids.append(n)
            return g
        def e_dry():
            A(f"s_mov_b64 {sDry}, 0")
            A(f"s_cmp_lg_u32 {sW}, 3\ns_cbranch_scc1 L_dry_ret")
            A(f"s_mov_b64 {sDry}, -1")
            if s.dry > 1:
                if s.ts: A("s_mov_b32 s54, s28\ns_mov_b32 s55, s29")
                A(f"s_mov_b32 s18, 0\ns_mov_b32 {sW}, 0")
            A("s_branch L_att2")
            A.label("L_dry_back")
            if s.dry > 1:
                A(f"s_mov_b32 s18, {s.wsbytes}\ns_mov_b32 {sW}, 3")
                if s.ts: A(f"s_mov_b32 s28, s54\ns_mov_b32 s29, s55\ns_mov_b32 s30, {4<<20}\ns_mov_b32 s31, 0x20000\ns_mov_b32 s23, 0x20000")
            A(f"s_mov_b64 {sDry}, 0\ns_waitcnt lgkmcnt(0)")
            A.label("L_dry_ret")
            s.m0cur = None
        plan = [(max(15, s.late), e_pers), (s.arrat, e_arr), (s.chkat, e_chk), (s.s7at, e_s7), (s.chkat + 12, e_chk2)]
        if s.stag: plan += [(s.wqat + k * s.stag, slot(tile_wq, k)) for k in range(4)]
        else: plan.append((s.wqat, tile_wq))
        if s.stag2: plan += [(s.tilesat + k * s.stag2, slot(tiles, k)) for k in range(4)]
        else: plan.append((s.tilesat, tiles))
        if s.dry: plan.append((s.dryat, e_dry))
        for pos, f in plan:
            if pos >= 4: ev.setdefault(pos, []).append(f)
        for f in range(max(4, s.late), 64): kload(f)
        assert not ev
        class P1: pass
        p1 = P1(); p1.ids = ids; p1.next = 0
        if s.touch:
            p1.next = 1
            A(f"s_mov_b32 {sSV}, {sRot}")
        def issue_upto(n):
            while p1.next <= min(n, 63):
                ids[("v", p1.next)] = s.kv_load("v", p1.next); p1.next += 1
                if p1.next == s.wopos and s.wolast: tile_wo()
                if p1.next == s.w12pos and s.wolast > 1: tile_w12()
        issue_upto(s.qi - 1)
        A("v_and_b32 v62, 0xf0, v6")
        qid = A.vm(f"buffer_load_dwordx4 {q4(QREG)}, v62, {rWS}, {sQg} offen sc1")
        def code_prefetch():
            A("s_getpc_b64 s[20:21]")
            A.label("L_pc")
            A.raw("    s_add_u32 s20, s20, L_chain-L_pc\n    s_addc_u32 s21, s21, 0\n    s_mov_b32 s22, L_code_end-L_chain\n    s_and_b32 s20, s20, 0xffffffc0")
            A(f"s_lshl_b32 {sT0}, {sW}, 10\ns_add_u32 m0, {sT0}, {L_SO}\nv_lshlrev_b32 v59, 4, v0")
            if s.cpfone:
                A(f"s_lshl_b32 {sT1}, {sI}, 12\ns_add_u32 {sT0}, {sT0}, {sT1}")
                s.ncpf = 1
            for j in range(s.ncpf):
                A.vm(f"buffer_load_dwordx4 v59, {rX}, {sT0} offen lds")
                A(f"s_add_u32 {sT0}, {sT0}, 4096")
            s.m0cur = None
        s.ncpf = 3
        p1.issue_upto = issue_upto; p1.code_prefetch = code_prefetch
        p1.issue_more = lambda k: issue_upto(p1.next + k - 1)
        issue_upto(s.qv - 1)
        A.wait_vm(qid)
        ok = A.newlabel("L_q_ok"); lp = A.newlabel("L_q")
        A.label(lp)
        A(f"v_max_u32 v63, v{QREG}, v{QREG+1}\nv_max3_u32 v63, v63, v{QREG+2}, v{QREG+3}\nv_cmp_eq_u32 vcc, -1, v63")
        A(f"s_cbranch_vccz {ok}")
        A.vm(f"buffer_load_dwordx4 {q4(QREG)}, v62, {rWS}, {sQg} offen sc1", optional=True)
        A(f"s_add_u32 {sCnt}, {sCnt}, 1\ns_cmp_lt_u32 {sCnt}, {LIMIT}\ns_waitcnt vmcnt(0)\ns_cbranch_scc1 {lp}")
        A.label(ok)
        A(f"s_sub_u32 {sQown}, {sQown}, {QB0 - QB}\ns_sub_u32 {sQg}, {sQg}, {QB0 - QB}")
        s.stamp("q0got")
        s.att_prefetchK()
        s.attention(p1)
        if s.race:
            A(f"v_mov_b32 v28, -1\nv_mov_b32 v29, {L_RACE}")
            A.ds("ds_write_b32 v29, v28")
        if not s.wolast: A.wait_vm0()
        if s.padchain: s.spin_until(s.padchain)
        s.inchain = True; s.ts0 = s.nts
        s.ts_flush(True)
        A.label("L_chain")
        A.hist = [parse("v_mfma_f32_16x16x32_bf16 v[48:51], v[0:3], v[0:3], v[48:51]"), parse("v_add_f32 v63, v63, v63"),
                  parse("v_mfma_f32_16x16x32_bf16 v[52:55], v[0:3], v[0:3], v[52:55]"), parse("s_branch L_chain")]
        s.stamp("pvdone")
        A("s_mov_b32 exec_lo, 0\ns_brev_b32 exec_hi, 1")
        A.ds("ds_write_b64 v58, v[62:63]")
        A(f"v_mov_b32 v26, {L_ST}\ns_mov_b64 exec, {mOV}")
        A.ds("ds_write_b128 v56, v[48:51]")
        A.ds("ds_write_b128 v56, v[52:55] offset:128")
        A("s_mov_b64 exec, -1")
        A(f"v_mov_b32 v26, {L_ST}\nv_lshlrev_b32 v27, 2, v0\nv_mov_b32 v29, 0")
        A(f"s_cmp_lg_u32 {sW}, 0")
        A.wait_ds0()
        s.barrier()
        A("s_cbranch_scc1 L_S2w" if s.odelay else "s_cbranch_scc1 L_S2")
        if s.odelay: s.tail.append(f"L_S2w:\n    s_sleep {s.odelay}\n    s_branch L_S2")
        A.ds("ds_read_b128 v[64:67], v26")
        st2 = A.ds("ds_read_b128 v[68:71], v26 offset:16")
        for blk in range(8):
            A.ds(f"ds_read2st64_b32 {q2(72+2*blk)}, v57 offset0:{2*blk} offset1:{2*blk+1}")
        A.wait_ds(st2)
        A("v_max3_f32 v88, v64, v66, v68\nv_max_f32 v88, v88, v70")
        for w in range(4): A(f"v_sub_f32 v{64+2*w}, v{64+2*w}, v88")
        for w in range(4): A(f"v_exp_f32 v{64+2*w}, v{64+2*w}")
        s.mode_test()
        A.wait_ds0()
        for w in range(4): A(f"v_pk_add_f32 {q2(72+4*w)}, {q2(72+4*w)}, {q2(74+4*w)}")
        A("v_pk_mul_f32 v[90:91], v[72:73], v[64:65] op_sel_hi:[1,0]")
        A("v_mul_f32 v89, v64, v65")
        for w in range(1, 4):
            A(f"v_pk_fma_f32 v[90:91], {q2(72+4*w)}, {q2(64+2*w)}, v[90:91] op_sel_hi:[1,0,1]")
            A(f"v_fmac_f32 v89, v{64+2*w}, v{65+2*w}")
        A("v_cvt_pk_bf16_f32 v90, v90, v91\nv_min_u32 v88, -2, v88\nv_min_u32 v90, -2, v90\nv_min_u32 v89, -2, v89")
        s.publish([f"buffer_store_dword v90, v27, {rWS}, {sOown} offen {{pol}}",
                   f"s_mov_b64 exec, 1\nbuffer_store_dwordx2 v[88:89], v29, {rWS}, {sSTown} offen {{pol}}\ns_mov_b64 exec, -1"], tested=True)
        A.label("L_S2")
        A.ds_done = A.ds_issued
        s.stamp("opub")
        A("v_mov_b32 v72, 0\nv_mov_b32 v73, 0")
        A(f"s_lshl_b32 {sT0}, {sW}, 7\ns_add_u32 {sT0}, {sT0}, {RED2}")
        A(f"v_and_b32 v80, 15, v0\nv_lshrrev_b32 v81, 5, v0\nv_lshlrev_b32 v80, 2, v80\nv_lshl_add_u32 v80, v81, 6, v80\nv_add_u32 v80, {sT0}, v80")
        A(f"v_lshlrev_b32 v81, 4, v0\nv_add_u32 v82, {RED2}, v81\nv_mov_b32 v83, {L_RACE}")
        def issue():
            A(f"s_mov_b64 exec, {mR8}")
            A(f"buffer_load_dwordx2 v[72:73], v11, {rWS}, {sSTg} offen sc1")
            A("s_mov_b64 exec, -1")
            A(f"buffer_load_dwordx4 v[32:35], v6, {rWS}, {sOg} offen sc1")
            A(f"buffer_load_dwordx4 v[36:39], v6, {rWS}, {sOg} offen offset:1024 sc1")
        def primed():
            s.tr_reads(L_WO, 4, 16)
        s.poll(issue, 3, list(range(32, 40)) + [72, 73], 74, s.dL, s.gapL, primed)
        s.stamp("ogot")
        A.wait_ds0()
        side = [f"v_max_f32_dpp v74, v72, v72 quad_perm:[1,0,3,2] {FULL}",
                f"v_max_f32_dpp v74, v74, v74 quad_perm:[2,3,0,1] {FULL}",
                "v_sub_f32 v75, v72, v74", "v_exp_f32 v75, v75", "v_mul_f32 v76, v75, v73",
                f"v_add_f32_dpp v76, v76, v76 quad_perm:[1,0,3,2] {FULL}",
                f"v_add_f32_dpp v76, v76, v76 quad_perm:[2,3,0,1] {FULL}",
                "v_rcp_f32 v76, v76"]
        for b in range(2):
            for c in range(4):
                A(f"v_mfma_f32_16x16x32_bf16 {q4(40+16*b+4*c)}, {q4(32+4*b)}, {q4(16+4*c)}, 0")
                A(side.pop(0))
        A("v_mul_f32 v75, v75, v76")
        A("v_add_f32 v40, v40, v45\nv_add_f32 v50, v50, v55\nv_add_f32 v40, v40, v50")
        A(f"v_mul_f32_dpp v78, v75, v40 row_newbcast:0 {FULL}")
        A("v_add_f32 v56, v56, v61\nv_add_f32 v66, v66, v71\nv_add_f32 v56, v56, v66")
        A(f"v_mul_f32_dpp v79, v75, v56 row_newbcast:4 {FULL}")
        A("v_permlane32_swap_b32 v78, v79\nv_add_f32 v78, v78, v79\nv_mov_b32 v79, v78")
        A("v_permlane16_swap_b32 v78, v79\nv_add_f32 v78, v78, v79")
        A.ds("ds_write_b32 v80, v78")
        A(f"s_cmp_lg_u32 {sW}, 0")
        s.drain()
        A.wait_ds0()
        s.barrier()
        A("s_cbranch_scc1 L_S3")
        A(f"s_mov_b64 exec, {m8}")
        for w in range(4): A.ds(f"ds_read_b128 {q4(64+4*w)}, v82 offset:{128*w}")
        base = A.ds_issued
        if s.copy < 0 and not s.race: A.ds(f"ds_read_b64 v[84:85], v83")
        A(f"s_add_u32 {sT0}, {sAPown}, 8192")
        A.wait_ds(base - 3)
        A("v_pk_add_f32 v[64:65], v[64:65], v[68:69]\nv_pk_add_f32 v[66:67], v[66:67], v[70:71]")
        A.wait_ds(base - 1)
        A("v_pk_add_f32 v[72:73], v[72:73], v[76:77]\nv_pk_add_f32 v[74:75], v[74:75], v[78:79]")
        A("v_pk_add_f32 v[64:65], v[64:65], v[72:73]\nv_pk_add_f32 v[66:67], v[66:67], v[74:75]")
        for k in range(64, 68): A(f"v_min_u32 v{k}, -2, v{k}")
        A(f"buffer_store_dwordx4 v[64:67], v81, {rWS}, {sAPown} offen sc1")
        A(f"buffer_store_dwordx4 v[64:67], v81, {rWS}, {sT0} offen sc1")
        A("s_mov_b64 exec, -1")
        s.stamp("appub")
        if s.copy < 0 and not s.race:
            A.wait_ds0()
            s.pick_copy(84)
        A.label("L_S3")
        A.ds_done = A.ds_issued
        s.ln_pre(L_W1, RED4, sX1g)
        s.probe(4, 0, "ds_min_u32", 90, 91)
        if s.race: A(f"s_lshl_b32 {sT0}, {sLayer}, 1\ns_add_u32 {sT0}, {sT0}, {sW}\ns_cmp_lt_u32 {sT0}, 2\ns_cselect_b32 {sT0}, 0, {sW}\ns_cmp_lg_u32 {sT0}, 0")
        else: A(f"s_cmp_lg_u32 {sW}, 0")
        A("s_cbranch_scc1 L_S4")
        def xreduce(sg, addb2):
            A(f"s_mov_b64 exec, {m16}")
            A("v_lshlrev_b32 v82, 3, v0")
            A("v_lshlrev_b32 v80, 16, v13\nv_and_b32 v81, 0xffff0000, v13")
            if addb2:
                A("v_lshlrev_b32 v90, 16, v15\nv_and_b32 v91, 0xffff0000, v15")
                A("v_pk_add_f32 v[80:81], v[80:81], v[90:91]")
            s.pair_off(83, 89, 10)
            A(f"s_add_u32 {sT0}, {sg}, {sCopy}")
            def issue():
                for j in range(8): A(f"buffer_load_dwordx2 {q2(64+2*j)}, v82, {rWS}, {sT0} offen offset:{j*128} sc1")
            if s.gdelay: A(f"s_sleep {s.gdelay}")
            def total():
                A("v_pk_add_f32 v[90:91], v[64:65], v[66:67]\nv_pk_add_f32 v[92:93], v[68:69], v[70:71]")
                A("v_pk_add_f32 v[94:95], v[72:73], v[74:75]\nv_pk_add_f32 v[96:97], v[76:77], v[78:79]")
                A("v_pk_add_f32 v[90:91], v[90:91], v[92:93]\nv_pk_add_f32 v[94:95], v[94:95], v[96:97]")
                A("v_pk_add_f32 v[90:91], v[90:91], v[80:81]")
                A("v_pk_add_f32 v[90:91], v[90:91], v[94:95]")
            if not s.nanchk:
                s.poll(issue, 8, range(64, 80), 89, s.dG, s.gapG)
                total()
                s.mode_test()
            else:
                for p in range(s.dG - 1):
                    issue()
                    A(f"s_sleep {s.gapG}")
                lab = A.newlabel("L_poll"); ok = A.newlabel("L_ok"); slow = A.newlabel("L_exact")
                A.label(lab)
                issue()
                A(f"s_add_u32 {sCnt}, {sCnt}, 1")
                A(f"s_waitcnt vmcnt({(s.dG-1)*8})")
                total()
                s.mode_test()
                A("v_cmp_u_f32 vcc, v90, v91")
                A(f"s_cbranch_vccnz {slow}")
                A.label(ok)
                t = [f"{slow}:", "v_max_u32 v89, v64, v65"] + [f"v_max3_u32 v89, v89, v{k}, v{k+1}" for k in range(66, 80, 2)]
                t += ["v_cmp_eq_u32 vcc, -1, v89", f"s_cmp_lt_u32 {sCnt}, {LIMIT}", f"s_cselect_b64 {sAlive}, -1, 0", f"s_and_b64 vcc, vcc, {sAlive}", f"s_cbranch_scc1 {lab}", "s_waitcnt vmcnt(0)"]
                t += ["v_pk_add_f32 v[90:91], v[64:65], v[66:67]", "v_pk_add_f32 v[92:93], v[68:69], v[70:71]", "v_pk_add_f32 v[94:95], v[72:73], v[74:75]", "v_pk_add_f32 v[96:97], v[76:77], v[78:79]",
                      "v_pk_add_f32 v[90:91], v[90:91], v[92:93]", "v_pk_add_f32 v[94:95], v[94:95], v[96:97]", "v_pk_add_f32 v[90:91], v[90:91], v[80:81]", "v_pk_add_f32 v[90:91], v[90:91], v[94:95]"]
                t += [f"s_cmp_eq_u32 {sMode}, 0", f"s_branch {ok}"]
                s.tail.append("\n".join(l if l.endswith(":") else "    " + l for l in t))
            A("v_cvt_pk_bf16_f32 v13, v90, v91")
        xreduce(sAPg, False)
        A("v_min_u32 v90, -2, v13")
        s.publish(f"buffer_store_dword v90, v83, {rWS}, {sX1own} offen {{pol}}", tested=True)
        A("s_mov_b64 exec, -1")
        s.stamp("x1pub")
        if s.race:
            A(f"s_memtime s[100:101]\ns_cmp_eq_u32 {sW}, 0\ns_cbranch_scc1 L_S4")
            A(f"v_mov_b32 v91, {L_RACE}\ns_waitcnt lgkmcnt(0)\nv_mov_b32 v90, s100")
            A("ds_write_b32 v91, v90")
        A.label("L_S4")
        A(f"s_cmp_ge_u32 {sI}, 11\ns_cbranch_scc1 {'L_S5w' if s.hdelay else 'L_S5'}")
        if s.hdelay: s.tail.append(f"L_S5w:\n    s_sleep {s.hdelay}\n    s_branch L_S5")
        s.ln_poll(sX1g)
        s.stamp("xgot")
        s.ln_mma()
        A(f"s_cmp_lg_u32 {sW}, 0\ns_cbranch_scc1 L_S7")
        A(f"s_mov_b64 exec, {m16}")
        s.drain()
        s.ln_final_pre = None
        A(f"s_cmp_lt_u32 {sTau}, 86\ns_cselect_b32 {sT3}, -1, 0")
        k1 = -2.0 * math.sqrt(2.0 / math.pi) * math.log2(math.e)
        A("v_lshlrev_b32 v92, 16, v14\nv_and_b32 v93, 0xffff0000, v14")
        A(f"v_mov_b32 v94, {f2u(k1 * 0.044715)}\nv_mov_b32 v96, {f2u(k1)}")
        A("v_and_b32 v98, 3, v0\nv_lshlrev_b32 v98, 2, v98\nv_and_b32 v99, 4, v0\nv_lshl_add_u32 v98, v99, 3, v98\nv_and_b32 v99, 8, v0\nv_lshl_add_u32 v98, v99, 1, v98")
        s.ln_final()
        A("v_pk_add_f32 v[64:65], v[64:65], v[92:93]")
        A("v_pk_mul_f32 v[66:67], v[64:65], v[64:65]")
        A("v_pk_fma_f32 v[66:67], v[66:67], v[94:95], v[96:97] op_sel_hi:[1,0,0]")
        A("v_pk_mul_f32 v[66:67], v[66:67], v[64:65]")
        A("v_exp_f32 v66, v66\nv_exp_f32 v67, v67")
        A("v_add_f32 v66, 1.0, v66\nv_add_f32 v67, 1.0, v67")
        A("v_rcp_f32 v66, v66\nv_rcp_f32 v67, v67")
        s.mode_test()
        A("v_pk_mul_f32 v[64:65], v[64:65], v[66:67]")
        A(f"v_cvt_pk_bf16_f32 v64, v64, v65\nv_min_u32 v64, -2, v64\nv_and_b32 v64, {sT3}, v64")
        s.publish(f"buffer_store_dword v64, v98, {rWS}, {sHown} offen {{pol}}", tested=True)
        A("s_mov_b64 exec, -1")
        s.stamp("hpub")
        A.label("L_S5")
        A.ds_done = A.ds_issued
        A(f"s_cmp_lg_u32 {sW}, 0\ns_cbranch_scc1 L_S7")
        s.tr_reads(L_W2, 6, 16, "v10", 1024)
        for k in range(60, 64): A(f"v_mov_b32 v{k}, 0")
        A("v_and_b32 v86, 1, v0\nv_lshrrev_b32 v87, 4, v0\nv_lshlrev_b32 v87, 4, v87\nv_lshl_add_u32 v85, v86, 6, v87\nv_lshlrev_b32 v87, 1, v87\nv_lshl_add_u32 v84, v86, 4, v87")
        if s.race:
            A(f"v_mov_b32 v86, {L_RACE}")
            A.ds("ds_read_b32 v87, v86")
        elif s.copy < 0:
            A(f"v_mov_b32 v86, {L_RACE}")
            A.ds("ds_read_b64 v[98:99], v86")
        def issue():
            A(f"s_mov_b64 exec, {mAlo}")
            A(f"buffer_load_dwordx4 v[60:63], v84, {rWS}, {sHg} offen offset:640 sc1")
            A(f"s_mov_b64 exec, {mA}")
            for kk in range(5): A(f"buffer_load_dwordx4 {q4(40+4*kk)}, v84, {rWS}, {sHg} offen offset:{kk*128} sc1")
        s.poll(issue, 6, range(40, 64), 88, s.dL, s.gapL)
        A("s_mov_b64 exec, -1")
        A.wait_ds0()
        for kk in range(6):
            d = 90 if kk % 2 == 0 else 94
            A(f"v_mfma_f32_16x16x32_bf16 {q4(d)}, {q4(16+4*kk)}, {q4(40+4*kk)}, {'0' if kk < 2 else q4(d)}")
            if s.race and kk == 0: A(f"v_readfirstlane_b32 {sT1}, v87")
        A(f"s_add_u32 {sT0}, {sYPown}, 8192")
        A(f"s_mov_b64 exec, {mA}")
        s.drain()
        A("v_pk_add_f32 v[90:91], v[90:91], v[94:95]\nv_pk_add_f32 v[92:93], v[92:93], v[96:97]")
        for k in range(90, 94): A(f"v_min_u32 v{k}, -2, v{k}")
        A(f"buffer_store_dwordx4 v[90:93], v85, {rWS}, {sYPown} offen sc1")
        A(f"buffer_store_dwordx4 v[90:93], v85, {rWS}, {sT0} offen sc1")
        A("s_mov_b64 exec, -1")
        s.stamp("yppub")
        A(f"s_cmp_eq_u32 {sLayer}, 0\ns_cselect_b32 {sT0}, 0, {sG}\ns_cmp_lg_u32 {sT0}, 0\ns_cbranch_scc1 L_done")
        if s.race:
            A(f"s_cmp_eq_u32 {sT1}, -1\ns_cselect_b32 {sT1}, s100, {sT1}")
            A(f"s_sub_u32 {sT1}, {sT1}, s100\ns_cmp_lt_i32 {sT1}, 0\ns_cselect_b32 {sT1}, 8192, 0")
            A(f"s_cmp_eq_u32 {sLayer}, 0\ns_cselect_b32 {sCopy}, {sT1}, {sCopy}")
        s.pick_copy(98)
        s.ln_pre(L_WQ, RED4, sX2g)
        xreduce(sYPg, True)
        A(f"s_cmp_lg_u32 {sLayer}, 0\ns_cbranch_scc1 L_fin")
        A("v_min_u32 v90, -2, v13")
        s.publish(f"buffer_store_dword v90, v83, {rWS}, {sX2own} offen {{pol}}")
        A("s_mov_b64 exec, -1")
        s.stamp("x2pub")
        A("s_branch L_S7b")
        A.label("L_S7")
        A(f"s_cmp_lg_u32 {sLayer}, 0\ns_cbranch_scc1 L_done")
        s.drain()
        s.ln_pre(L_WQ, RED4, sX2g)
        A.label("L_S7b")
        s.ln_poll(sX2g)
        s.stamp("xgot")
        s.ln_mma()
        A(f"s_cmp_lg_u32 {sW}, 0\ns_cbranch_scc1 {'L_S8w' if s.qdelay else 'L_S8'}")
        if s.qdelay: s.tail.append(f"L_S8w:\n    s_sleep {s.qdelay}\n    s_branch L_S8")
        A(f"s_mov_b64 exec, {m16}")
        s.drain()
        s.pair_off(98, 99, 8)
        s.ln_final()
        s.mode_test()
        A("v_cvt_pk_bf16_f32 v64, v64, v65\nv_min_u32 v64, -2, v64")
        s.publish(f"buffer_store_dword v64, v98, {rWS}, {sQown} offen {{pol}}", tested=True)
        A("s_mov_b64 exec, -1")
        s.stamp("qpub")
        A.label("L_S8")
        A.ds_done = A.ds_issued
        s.ts_flush()
        if s.padq: s.spin_until(s.padq)
        s.att_prefetchK()
        A("v_and_b32 v62, 0xf0, v6")
        if s.dry > 1: A("s_cmp_lg_u32 s46, 0\ns_cbranch_scc1 L_dry_back")
        A(f"s_mov_b32 {sLayer}, 1")
        def issue(): A(f"buffer_load_dwordx4 {q4(QREG)}, v62, {rWS}, {sQg} offen sc1")
        s.poll(issue, 1, range(QREG, QREG + 4), 61, s.dQ, s.gapL)
        s.stamp("qgot")
        A(f"s_add_u32 s16, s16, {LSTRIDE}\ns_addc_u32 s17, s17, 0\ns_sub_u32 s18, s18, {LSTRIDE}")
        A.label("L_att2")
        s.attention(None)
        if s.dry == 1: A("s_cmp_lg_u32 s46, 0\ns_cbranch_scc1 L_dry_back")
        if s.pad2: s.spin_until(s.pad2)
        A("s_branch L_chain")
        A.label("L_fin")
        A(f"s_lshl_b32 {sT0}, {sI}, 5")
        A(f"buffer_store_dword v13, v83, {rOUT}, {sT0} offen")
        A.label("L_done")
        if s.padend: s.spin_until(s.padend)
        if s.padcyc:
            A("s_memtime s[98:99]\ns_waitcnt lgkmcnt(0)\ns_mov_b32 s97, s98")
            s.spin_until(s.padcyc, "s_memtime")
        if s.ts:
            A("s_mov_b64 exec, -1")
            s.stamp("end")
            s.ts_flush()
            A(f"v_writelane_b32 v12, {sCopy}, 63\nv_writelane_b32 v12, {sCnt}, 62")
            A(f"s_mul_i32 {sT0}, {sLayer}, {LSTRIDE}\ns_lshl_b32 {sT1}, s2, 2\ns_add_u32 {sT1}, {sT1}, {sW}\ns_lshl_b32 {sT1}, {sT1}, 8")
            A(f"s_add_u32 {sT1}, {sT1}, {TS_OFF}\ns_sub_u32 {sT1}, {sT1}, {sT0}\nv_lshlrev_b32 v16, 2, v0")
            A(f"buffer_store_dword v12, v16, {rWS}, {sT1} offen")
        A("L_end:\ns_endpgm")
        for t in s.tail: A.raw(t)
        A.raw("L_code_end:")
        A.raw('.section .rodata,"a"\n.p2align 6')
        A.raw(f".amdhsa_kernel {NAME}_kernel")
        A.raw("  .amdhsa_next_free_vgpr 512\n  .amdhsa_next_free_sgpr 102\n  .amdhsa_accum_offset 256\n  .amdhsa_group_segment_fixed_size 0")
        A.raw("  .amdhsa_kernarg_size 104\n  .amdhsa_user_sgpr_count 2\n  .amdhsa_user_sgpr_kernarg_segment_ptr 1\n  .amdhsa_system_sgpr_workgroup_id_x 1")
        A.raw("  .amdhsa_float_denorm_mode_32 3\n.end_amdhsa_kernel")
        return A.text()

if __name__ == "__main__":
    out = sys.argv[1] if len(sys.argv) > 1 else f"cdna_kernels/{NAME}.s"
    kw = {}
    for a in sys.argv[2:]:
        k, v = a.split("=")
        kw[k] = int(v) if v.lstrip("-").isdigit() else v
    g = Gen(**kw)
    open(out, "w").write(g.build())
    if kw.get("ts"): open(out + ".names", "w").write(" ".join(g.tsnames))
    print("wrote", out, "nops", g.A.nops)
```

```python
import sys, math, struct
from asmlib import Asm, parse

NAME = "interleave_layers__gqa_block_cached__dense_activation_gelu__decode"
HEADER = open("cdna_kernels/%s.s.ref" % NAME).read().split("; Override launch")[0]

L_WQ, L_WO, L_W1, L_W2 = 0, 16384, 32768, 49152
L_ACC = 55296
L_SO = 57344
L_KV = 61440
NLDS = 25
RED2 = L_ACC
RED4 = L_ACC + 512
L_ST = L_ACC + 1536
L_RACE = L_ACC + 1600
OB, AP, YP, ST, HB, X1, X2, QB = 0x0, 0x10000, 0x20000, 0x30000, 0x32000, 0x34000, 0x38000, 0x3c000
LSTRIDE = 0x40000
QB0 = 0x80000
WS_BYTES = 0x84000
TS_OFF = 0x100000

sW, sG, sI, sHH, sB = "s3", "s4", "s5", "s6", "s7"
rK, rV, rWS, rX, rWQ, rWO, rW1, rW2, rB1, rB2, rOUT, rDBG = [f"s[{k}:{k+3}]" for k in range(8, 56, 4)]
mA, mAlo, m16, m8, sAlive, mOV = [f"s[{k}:{k+1}]" for k in range(56, 68, 2)]
sCnt, sMode, sLayer, sRot, sKVl, sSK, sSV, sT0, sT1, sT2 = [f"s{k}" for k in range(68, 78)]
sOown, sSTown, sOg, sSTg, sAPown, sAPg, sX1own, sX1g, sHown, sHg, sYPown, sYPg, sX2own, sX2g, sQown, sQg = [f"s{k}" for k in range(78, 94)]
sCopy, sT3, sTau = "s94", "s95", "s96"
sDry = "s[46:47]"
mR8 = "s[0:1]"
sTS = "s[98:99]"
LIMIT = 100000
QREG = 96

C_SCALE = math.log2(math.e) / math.sqrt(128.0)
def f2u(x): return "0x%08x" % struct.unpack("<I", struct.pack("<f", x))[0]

def kloc(f):
    return ("l", f) if f < 12 else ("r", f"a[{4*(f-12)}:{4*(f-12)+3}]")
def vloc(f):
    if f < 13: return ("l", 12 + f)
    if f < 25: return ("r", f"a[{208+4*(f-13)}:{208+4*(f-13)+3}]")
    return ("r", f"v[{100+4*(f-25)}:{100+4*(f-25)+3}]")
def q4(b): return f"v[{b}:{b+3}]"
def q2(b): return f"v[{b}:{b+1}]"
FULL = "row_mask:0xf bank_mask:0xf"

class Gen:
    def __init__(s, kvpol="nt", wpol="", ts=False, lag=16, forceG=False, padend=0, padchain=0, padcyc=0,
                 dL=2, dG=3, gapL=1, gapG=2, race=0, copy=-1, cpf=6, bar=1, dQ=2, cpf0=1, padbase=1, padq=0, pad2=0, vpol=None, early=0, touch=1, s7at=41, tilesat=56, chkv=12, qv=24, wolast=1, gdelay=4, opt=1, rotm=(1, 4, 1), vrot=0, spread=0, sp0=8, sched=0, ssp=10, cpfone=1, skipt='', wqat=30, arrat=20, chkat=48, qi=12, stag=0, stag2=0, qpol=None, wopos=64, w12pos=64, stouch=0, late=0, dry=1, dryat=42, nanchk=1, odelay=4, q96=1, hdelay=0, qdelay=0, xdelay=0, busy=0, busyat=0, early_ts=0, prio=0, priooff=12, win=0, off='', lin=0, k0n=8, xi=0, wpf=3, pfb=36, pfo=44):
        s.A = Asm(); s.kvpol = kvpol; s.wpol = wpol; s.ts = ts; s.lag = lag; s.forceG = forceG
        s.padend = padend; s.padchain = padchain; s.padcyc = padcyc
        s.dL = dL; s.dG = dG; s.gapL = gapL; s.gapG = gapG; s.race = race; s.copy = copy; s.cpf = cpf; s.bar = bar; s.dQ = dQ; s.cpf0 = cpf0; s.padbase = padbase; s.padq = padq; s.pad2 = pad2; s.early = early; s.touch = touch; s.s7at = s7at; s.tilesat = tilesat; s.chkv = chkv; s.qv = qv; s.wolast = wolast; s.gdelay = gdelay; s.opt = opt; s.rotm = eval(rotm.replace('_', ',')) if isinstance(rotm, str) else rotm; s.vrot = vrot; s.spread = spread; s.sp0 = sp0; s.sched = sched; s.ssp = ssp; s.cpfone = cpfone; s.skipt = skipt; s.wqat = wqat; s.arrat = arrat; s.chkat = chkat; s.qi = qi; s.stag = stag; s.stag2 = stag2; s.qpol = qpol; s.wopos = wopos; s.w12pos = w12pos; s.stouch = stouch; s.late = late; s.dry = dry; s.dryat = dryat; s.nanchk = nanchk; s.odelay = odelay; s.q96 = q96; s.hdelay = hdelay; s.qdelay = qdelay; s.xdelay = xdelay; s.busy = busy; s.busyat = busyat; s.early_ts = early_ts; s.prio = prio; s.priooff = priooff; s.win = win; s.off = str(off); s.lin = lin; s.k0n = k0n; s.xi = xi; s.wpf = wpf; s.pfb = pfb; s.pfo = pfo; s.kvpol = s.kvpol.replace('+', ' '); s.wpol = s.wpol.replace('+', ' '); s.vpol = s.kvpol if vpol is None else vpol.replace('+', ' ')
        s.tail = []
        s.hook = None
        s.nts = 0; s.inchain = False; s.ts0 = 0
    def stamp(s, name):
        if not s.ts: return
        A = s.A
        k = s.nts; s.nts += 1
        s.tsnames = getattr(s, "tsnames", []) + [name]
        if s.inchain:
            j = k - s.ts0
            assert j < 14
            A(f"s_memrealtime s[{20+2*j}:{21+2*j}]")
            return
        A(f"s_memrealtime {sTS}")
        A(f"s_lshl_b32 s97, {sLayer}, 5\ns_add_u32 m0, s97, {k}")
        A("s_waitcnt lgkmcnt(0)")
        A.ds_done = A.ds_issued
        A(f"v_writelane_b32 v12, s98, m0")
    def ts_flush(s, zero_only=False):
        if not s.ts: return
        A = s.A
        if not zero_only:
            A("s_waitcnt lgkmcnt(0)")
            A.ds_done = A.ds_issued
            A(f"s_lshl_b32 s97, {sLayer}, 5")
            for j in range(14):
                A(f"s_add_u32 m0, s97, {s.ts0 + j}\nv_writelane_b32 v12, s{20+2*j}, m0")
        for j in range(14): A(f"s_mov_b32 s{20+2*j}, 0")
    def spin_until(s, n, clock="s_memrealtime", base="s97"):
        A = s.A; l = A.newlabel("L_spin")
        A.label(l)
        A(f"{clock} s[98:99]\ns_waitcnt lgkmcnt(0)\ns_sub_u32 s98, s98, {base}\ns_cmp_lt_u32 s98, {n}\ns_cbranch_scc1 {l}")
    def busyloop(s):
        A = s.A; l = A.newlabel("L_busy")
        A(f"s_mov_b32 s97, {s.busy}")
        A.label(l)
        for k in range(16): A("v_fma_f32 v61, v61, v61, v61")
        A(f"s_sub_u32 s97, s97, 1\ns_cmp_lg_u32 s97, 0\ns_cbranch_scc1 {l}")
    def mode_test(s):
        s.A(f"s_cmp_eq_u32 {sMode}, 0")
    def publish(s, stores, tested=False):
        A = s.A
        if isinstance(stores, str): stores = [stores]
        slow = A.newlabel("L_slow"); back = A.newlabel("L_back")
        if not tested: s.mode_test()
        A(f"s_cbranch_scc1 {slow}")
        for t in stores: A(t.format(pol=""))
        A.label(back)
        s.tail.append(f"{slow}:\n" + "".join("    " + l + "\n" for t in stores for l in t.format(pol="sc1").split("\n")) + f"    s_branch {back}")
    def poll(s, issue, nld, regs, tmp, depth, gap, primed=None):
        A = s.A
        for p in range(depth - 1):
            issue()
            if gap and not primed: A(f"s_sleep {gap}")
        if primed:
            A(f"s_waitcnt vmcnt({(depth-1)*nld})")
            primed()
        lab = A.newlabel("L_poll"); A.label(lab)
        issue()
        A(f"s_add_u32 {sCnt}, {sCnt}, 1")
        A(f"s_cmp_lt_u32 {sCnt}, {LIMIT}")
        A(f"s_cselect_b64 {sAlive}, -1, 0")
        A(f"s_waitcnt vmcnt({(depth-1)*nld})")
        regs = list(regs)
        if len(regs) % 2 == 0:
            A(f"v_max_u32 v{tmp}, v{regs[0]}, v{regs[1]}"); rest = regs[2:]
        else:
            A(f"v_max3_u32 v{tmp}, v{regs[0]}, v{regs[1]}, v{regs[2]}"); rest = regs[3:]
        for k in range(0, len(rest), 2):
            A(f"v_max3_u32 v{tmp}, v{tmp}, v{rest[k]}, v{rest[k+1]}")
        A(f"v_cmp_eq_u32 vcc, -1, v{tmp}")
        A(f"s_and_b64 vcc, vcc, {sAlive}")
        A(f"s_cbranch_scc1 {lab}")
    def probe(s, gx, add, op, va, vd):
        if s.copy >= 0 or s.race or 'p' in s.off: return
        A = s.A
        l = A.newlabel("L_np")
        A(f"s_sub_u32 {sT0}, {sW}, 1\ns_cmp_gt_u32 {sT0}, 1\ns_cbranch_scc1 {l}")
        A(f"s_xor_b32 {sT1}, {sG}, {gx}\ns_and_b32 {sT1}, {sT1}, 6\ns_add_u32 {sT1}, {sT1}, {sT0}\ns_lshl_b32 {sT1}, {sT1}, 13\ns_lshl_b32 {sT2}, {sI}, 8\ns_add_u32 {sT1}, {sT1}, {sT2}\ns_add_u32 {sT1}, {sT1}, {add}")
        A(f"s_waitcnt lgkmcnt(0)\ns_memtime s[100:101]\ns_load_dword {sT2}, s[16:17], {sT1}\ns_waitcnt lgkmcnt(0)\ns_memtime s[98:99]")
        A(f"s_lshl_b32 {sT0}, {sT0}, 2\ns_add_u32 {sT0}, {sT0}, {L_RACE}\nv_mov_b32 v{va}, {sT0}\ns_waitcnt lgkmcnt(0)\ns_sub_u32 s100, s98, s100\nv_mov_b32 v{vd}, s100")
        A(f"{op} v{va}, v{vd}")
        A.label(l)
    def pick_copy(s, r):
        if s.copy >= 0 or s.race: return
        s.A(f"v_readfirstlane_b32 {sT2}, v{r}\nv_readfirstlane_b32 {sT1}, v{r+1}\ns_nop 0\ns_cmp_lt_u32 {sT1}, {sT2}\ns_cselect_b32 {sCopy}, 8192, 0")
    def barrier(s):
        A = s.A
        if s.dry > 1 and s.inchain:
            l = A.newlabel("L_nb")
            A(f"s_mov_b64 vcc, {sDry}\ns_cbranch_vccnz {l}\ns_barrier")
            A.label(l)
        else: A("s_barrier")
    def drain(s):
        s.A("s_waitcnt vmcnt(0)")
    def tr_reads(s, tile, nsteps, base, addr="v8", step=256):
        for kk in range(nsteps):
            for hf in range(2):
                s.A.ds(f"ds_read_b64_tr_b16 {q2(base + 4*kk + 2*hf)}, {addr} offset:{tile + kk*step + hf*128}")
    def kv_load(s, kind, f):
        A = s.A
        if kind == "k":
            u, rem = f // 4, (f % 4) * 1024; loc = kloc(f); srd, vo, so = rK, "v6", sSK
        else:
            u, rem = f // 4, ((f % 4) >> 1) * 512 + (f & 1) * 128; loc = vloc(f); srd, vo, so = rV, "v7", sSV
        m0 = None
        if s.win and A.vm_issued - s.win >= 0: A.wait_vm(A.vm_issued - s.win)
        pol = s.kvpol if kind == "k" else s.vpol
        if loc[0] == "l":
            m0 = loc[1]*1024 - rem
            if s.m0cur != m0: A(f"s_add_u32 m0, {sKVl}, {m0}")
        if f % 4 == 0:
            A(f"s_add_u32 {so}, {sRot}, {u*4096}")
            A(f"s_and_b32 {so}, {so}, 0xffff")
        if loc[0] == "r":
            return A.vm(f"buffer_load_dwordx4 {loc[1]}, {vo}, {srd}, {so} offen offset:{rem} {pol}")
        s.m0cur = m0 if not s.ts else None
        return A.vm(f"buffer_load_dwordx4 {vo}, {srd}, {so} offen offset:{rem} {pol} lds")
    def ln_pre(s, tile, red, sg=None):
        A = s.A
        if tile is not None: s.tr_reads(tile, 4, 16)
        A("v_bfe_u32 v84, v0, 2, 2")
        A("v_cmp_eq_u32 vcc, 2, v84")
        A("v_mov_b32 v85, 0x3f803f80")
        A(f"s_mul_i32 {sT0}, {sW}, 192\ns_add_u32 {sT0}, {sT0}, {red}")
        A("v_cndmask_b32 v32, 0, v85, vcc")
        for k in range(33, 36): A(f"v_mov_b32 v{k}, v32")
        if sg is not None:
            A(f"s_mov_b64 exec, {mR8}")
            A(f"buffer_load_dwordx4 v[32:35], v9, {rWS}, {sg} offen sc1")
            A("s_mov_b64 exec, -1")
        A(f"v_lshlrev_b32 v84, 2, v0\nv_add_u32 v84, {sT0}, v84")
        A(f"s_lshl_b32 {sT0}, {sW}, 4\ns_add_u32 {sT0}, {sT0}, {red + 768}")
        A("v_bfe_u32 v85, v0, 2, 1\nv_lshrrev_b32 v86, 5, v0\nv_lshlrev_b32 v85, 3, v85\nv_lshl_add_u32 v85, v86, 2, v85")
        A(f"v_add_u32 v85, {sT0}, v85")
        A(f"v_lshlrev_b32 v86, 3, v0\nv_and_b32 v87, 56, v86\nv_add_u32 v86, {red}, v86\nv_add_u32 v87, {red + 128}, v87")
        A(f"v_and_b32 v88, 8, v0\nv_add_u32 v88, {red + 768}, v88")
    def ln_mma(s):
        A = s.A
        A.wait_ds0()
        A("v_mfma_f32_16x16x32_bf16 v[52:55], v[32:35], v[32:35], 0")
        for c in range(4):
            A(f"v_mfma_f32_16x16x32_bf16 {q4(36+4*c)}, v[32:35], {q4(16+4*c)}, 0")
        A("s_mov_b32 s100, 0x00100001\ns_mov_b32 s101, 0x11") if False else None
        A(f"v_mov_b32_dpp v56, v52 quad_perm:[0,0,0,0] {FULL}")
        for c in range(1, 4): A(f"v_add_f32_dpp v56, v{52+c}, v56 quad_perm:[{c},{c},{c},{c}] {FULL}")
        A("s_mov_b32 exec_lo, 0x00100001\ns_mov_b32 exec_hi, 0x11")
        A.ds("ds_write_b32 v85, v56")
        A("s_mov_b32 exec_lo, -1\ns_mov_b32 exec_hi, 0xffff")
        A("v_add_f32 v36, v36, v41\nv_add_f32 v46, v46, v51\nv_add_f32 v36, v36, v46")
        A.ds("ds_write_b32 v84, v36")
        A("s_mov_b64 exec, -1")
        A.wait_ds0()
        s.barrier()
    def ln_final(s):
        A = s.A
        A.ds("ds_read2_b64 v[72:75], v88 offset0:0 offset1:2")
        st = A.ds("ds_read2_b64 v[76:79], v88 offset0:4 offset1:6")
        A.ds("ds_read2_b64 v[64:67], v86 offset0:0 offset1:24")
        A.ds("ds_read2_b64 v[68:71], v86 offset0:48 offset1:72")
        A.ds("ds_read2_b64 v[80:83], v87 offset0:0 offset1:24")
        A.ds("ds_read2_b64 v[84:87], v87 offset0:48 offset1:72")
        A.wait_ds(st)
        A("v_pk_add_f32 v[72:73], v[72:73], v[74:75]\nv_pk_add_f32 v[76:77], v[76:77], v[78:79]")
        A("v_pk_add_f32 v[72:73], v[72:73], v[76:77]")
        A(f"v_mul_f32 v74, {f2u(1/512)}, v73")
        A(f"v_mul_f32 v72, {f2u(1/512)}, v72")
        A("v_fma_f32 v72, -v74, v74, v72")
        A("v_max_f32 v72, 0, v72")
        A(f"v_add_f32 v72, {f2u(1e-5)}, v72")
        A("v_rsq_f32 v76, v72")
        A.wait_ds0()
        A("v_pk_add_f32 v[64:65], v[64:65], v[66:67]\nv_pk_add_f32 v[68:69], v[68:69], v[70:71]")
        A("v_pk_add_f32 v[80:81], v[80:81], v[82:83]\nv_pk_add_f32 v[84:85], v[84:85], v[86:87]")
        A("v_pk_add_f32 v[64:65], v[64:65], v[68:69]\nv_pk_add_f32 v[80:81], v[80:81], v[84:85]")
        A("v_pk_fma_f32 v[64:65], v[80:81], v[74:75], v[64:65] op_sel_hi:[1,0,1] neg_lo:[1,0,0] neg_hi:[1,0,0]")
        A("v_pk_mul_f32 v[64:65], v[64:65], v[76:77] op_sel_hi:[1,0]")
    def ln_poll(s, sg):
        A = s.A
        if s.bar: s.barrier()
        if s.xdelay: A(f"s_sleep {s.xdelay}")
        A(f"s_mov_b64 exec, {mR8}")
        def issue(): A(f"buffer_load_dwordx4 v[32:35], v9, {rWS}, {sg} offen sc1")
        s.poll(issue, 1, range(32, 36), 63, s.dL, s.gapL)
        A("s_mov_b64 exec, -1")
    def pair_off(s, dst, tmp, shift):
        s.A(f"v_lshlrev_b32 v{dst}, 2, v0\nv_and_b32 v{dst}, 28, v{dst}\nv_bfe_u32 v{tmp}, v0, 3, 1\nv_lshl_add_u32 v{dst}, v{tmp}, {shift}, v{dst}")
    def att_prefetchK(s):
        A = s.A
        s.stg = {}
        for f in range(8):
            s.stg[("k", f)] = (64 + 4*f, A.ds(f"ds_read_b128 {q4(64+4*f)}, v1 offset:{f*1024}"))
        for k in range(16, 32): A(f"v_mov_b32 v{k}, 0")
        A(f"v_mov_b32 v63, {f2u(C_SCALE)}")
    def attention(s, p1=None):
        A = s.A
        stg = s.stg
        free = []
        def ldsread(kind, f, slotreg):
            slot = kloc(f)[1] if kind == "k" else vloc(f)[1]
            if p1: A.wait_vm(p1.ids[(kind, f)])
            stg[(kind, f)] = (slotreg, A.ds(f"ds_read_b128 {q4(slotreg)}, v1 offset:{slot*1024}"))
        def operand(kind, f, ahead=0):
            loc = kloc(f) if kind == "k" else vloc(f)
            if loc[0] == "r":
                if p1: A.wait_vm(p1.ids[(kind, f)])
                return loc[1]
            reg, did = stg[(kind, f)]
            if did >= A.ds_done:
                last = max([d for (k2, f2), (r2, d) in stg.items() if k2 == kind and f <= f2 <= f + ahead] )
                A.wait_ds(last)
            return q4(reg)
        def build_aq(t):
            for k in range(4):
                A(f"v_mov_b32_dpp v{16+4*t+k}, v{QREG+k} quad_perm:[0,1,2,3] row_mask:0xf bank_mask:{1<<t:#x}")
        order = [0, 1, 3, 4, 5, 2] + list(range(6, 16))
        D = lambda n: 48 + 4 * (n % 3)
        vq = list(range(13))
        def dppsum(n, c):
            u = order[n]
            if c == 0: A(f"v_mul_f32_dpp v{32+u}, v{D(n)}, v63 quad_perm:[0,0,0,0] {FULL}")
            else: A(f"v_fmac_f32_dpp v{32+u}, v{D(n)+c}, v63 quad_perm:[{c},{c},{c},{c}] {FULL}")
        build_aq(0); build_aq(1)
        extra = []
        for n, u in enumerate(order):
            for t in range(4):
                op = operand("k", 4*u + t, 7 if u == 0 else 3)
                A(f"v_mfma_f32_16x16x32_bf16 {q4(D(n))}, {q4(16+4*t)}, {op}, {'0' if t == 0 else q4(D(n))}")
                if n == 0 and t < 2: build_aq(t + 2)
                if n >= 2: dppsum(n - 2, t)
                if extra: extra.pop(0)()
            if n == 0:
                for k in range(4): extra.append(lambda k=k: ldsread("k", 8 + k, 64 + 4*k))
            if n == 1: free += [80, 84, 88, 92]
            if n == 5: free += [64, 68, 72, 76]
            if n >= 1 and free and vq:
                extra.append(lambda f=vq.pop(0), r=free.pop(0): ldsread("v", f, r))
            if n >= 3 and n % 2 == 1:
                a, b = order[n-3], order[n-2]
                if n == 3: extra.append(lambda a=a, b=b: A(f"v_max_f32 v60, v{32+a}, v{32+b}"))
                else: extra.append(lambda a=a, b=b: A(f"v_max3_f32 v60, v60, v{32+a}, v{32+b}"))
            if p1: p1.issue_more(1)
        if s.hook: s.hook(1)
        for c in range(4): dppsum(14, c)
        while extra: extra.pop(0)()
        A(f"v_max_f32 v60, v60, v{32+order[14]}")
        for c in range(4): dppsum(15, c)
        A(f"v_max_f32 v60, v60, v{32+order[15]}")
        A("v_lshrrev_b32 v56, 5, v0\nv_and_b32 v57, 1, v0")
        A(f"v_max_f32_dpp v60, v60, v60 row_ror:4 {FULL}")
        A("v_lshlrev_b32 v56, 9, v56\nv_lshl_add_u32 v56, v57, 8, v56")
        A(f"v_max_f32_dpp v60, v60, v60 row_ror:8 {FULL}")
        A("v_and_b32 v57, 28, v0\nv_lshl_add_u32 v56, v57, 2, v56")
        A("v_max_f32_dpp v60, v60, v60 row_bcast:15 row_mask:0xa bank_mask:0xf")
        A(f"s_lshl_b32 {sT1}, {sW}, 10\ns_add_u32 {sT1}, {sT1}, {L_SO}")
        A("v_max_f32_dpp v60, v60, v60 row_bcast:31 row_mask:0xc bank_mask:0xf")
        A(f"v_add_u32 v56, {sT1}, v56")
        A(f"v_readlane_b32 {sT0}, v60, 63")
        A("v_and_b32 v57, 48, v0\nv_and_b32 v58, 3, v0")
        A(f"v_mov_b32 v62, {sT0}")
        def expo(u, part):
            t = 28 + (u & 1)
            if part == 0: A(f"v_sub_f32 v{t}, v{32+u}, v62")
            elif part == 1: A(f"v_exp_f32 v{t}, v{t}")
            elif part == 2: A(f"v_cvt_pk_bf16_f32 v{32+u}, v{t}, v{t}")
            elif u == 0: A(f"v_mov_b32 v63, v{t}")
            else: A(f"v_add_f32 v63, v63, v{t}")
        B = lambda k: 16 + 4 * (k % 3)
        def band(k, c):
            u, sidx = k >> 1, k & 1
            n = (4*c - 2 - 8*sidx) % 16
            A(f"v_and_b32_dpp v{B(k)+c}, v{32+u}, v{2+c} row_ror:{n} {FULL}")
        expo(0, 0); expo(1, 0); expo(0, 1); expo(1, 1); expo(0, 2); expo(0, 3); expo(1, 2)
        for c in range(4): band(0, c)
        expo(1, 3)
        if s.hook: s.hook(2)
        for c in range(4): band(1, c)
        fill = []
        fill.append("v_lshl_add_u32 v57, v58, 2, v57")
        fill.append("v_bfe_u32 v58, v0, 2, 2")
        fill.append("v_add_u32 v57, v57, v58")
        fill.append(f"v_lshlrev_b32 v57, 2, v57")
        fill.append(f"v_add_u32 v57, {L_SO}, v57")
        fill.append(f"s_lshl_b32 {sT1}, {sW}, 3\ns_add_u32 {sT1}, {sT1}, {L_ST}\nv_mov_b32 v58, {sT1}")
        red = [f"v_add_f32_dpp v63, v63, v63 row_ror:4 {FULL}",
               f"v_add_f32_dpp v63, v63, v63 row_ror:8 {FULL}",
               "v_add_f32_dpp v63, v63, v63 row_bcast:15 row_mask:0xa bank_mask:0xf",
               "v_add_f32_dpp v63, v63, v63 row_bcast:31 row_mask:0xc bank_mask:0xf"]
        for u in range(16):
            if p1:
                p1.issue_upto(4*u + 3 + s.lag)
                if u == s.cpf: p1.code_prefetch()
                if u == 12: s.probe(2, 0, "ds_write_b32", 31, 59)
                if u == 13: s.probe(2, 128, "ds_min_u32", 31, 59)
            if u == 9 and s.opt:
                A(f"v_lshlrev_b32 v31, 7, v0\ns_mov_b64 exec, {m16}")
                A.vm(f"buffer_load_dword v61, v31, {rWS}, {sOg} offen sc1")
                A.vm(f"buffer_load_dword v61, off, {rWS}, {sSTg} sc1")
                A("s_mov_b64 exec, -1")
            for j in range(4):
                f = 4*u + j; k = 2*u + (j >> 1)
                op = operand("v", f, 3)
                o = 48 + 4*(j & 1)
                first = (u == 0 and j < 2)
                A(f"v_mfma_f32_16x16x32_bf16 {q4(o)}, {op}, {q4(B(k))}, {'0' if first else q4(o)}")
                if k + 2 < 32:
                    band(k + 2, 2*(j & 1)); band(k + 2, 2*(j & 1) + 1)
                if u + 2 < 16: expo(u + 2, j)
                elif red and (j % 2 == 0): A(red.pop(0))
                if u >= 14 or (u >= 4 and j == 0):
                    if fill: A(fill.pop(0))
                if vloc(f)[0] == "l":
                    free.append(stg[("v", f)][0])
                    if vq: ldsread("v", vq.pop(0), free.pop(0))
        assert not red and not fill, (red, fill)
    def build(s):
        A = s.A
        s.m0cur = None
        A.raw(HEADER.rstrip())
        A.raw("; @launch grid=(256,1,1) block=(256,1,1) lds=163840")
        A.raw('.amdgcn_target "amdgcn-amd-amdhsa--gfx950"\n.text')
        A.raw(f".globl {NAME}_kernel\n.p2align 8\n.type {NAME}_kernel,@function\n{NAME}_kernel:")
        if s.padbase == 0: A("s_memrealtime s[98:99]")
        if s.ts: A("s_memrealtime s[100:101]")
        A("s_load_dwordx16 s[56:71], s[0:1], 0")
        A("s_load_dwordx8 s[72:79], s[0:1], 64")
        A("s_load_dwordx2 s[80:81], s[0:1], 96")
        A("s_cmp_ge_u32 s2, 256\ns_cbranch_scc1 L_end")
        if s.ts: A("v_mov_b32 v12, 0")
        if s.cpf0:
            A("s_getpc_b64 s[20:21]")
            A.label("L_pc0")
            A.raw(f"    s_mov_b32 s22, L_code_end-{NAME}_kernel")
            A("s_and_b32 s20, s20, 0xffffff00")
            if s.cpfone:
                A("s_mov_b32 s23, 0x20000\nv_lshlrev_b32 v2, 4, v0\ns_lshr_b32 s24, s2, 3\ns_lshl_b32 s24, s24, 12")
                A.vm(f"buffer_load_dwordx4 v[100:103], v2, {rX}, s24 offen")
            else:
                A("s_mov_b32 s23, 0x20000\nv_lshlrev_b32 v2, 4, v0\ns_movk_i32 s24, 0x1000\ns_movk_i32 s25, 0x2000\ns_movk_i32 s26, 0x3000\ns_movk_i32 s27, 0x4000")
                for j, so in enumerate(("0", "s24", "s25", "s26", "s27")):
                    A.vm(f"buffer_load_dwordx4 {q4(100+4*j)}, v2, {rX}, {so} offen")
        A("v_lshrrev_b32 v1, 6, v0")
        A("v_and_b32 v0, 63, v0")
        A(f"v_readfirstlane_b32 {sW}, v1")
        A(f"s_xor_b32 {sB}, s2, {s.xi*8}")
        A(f"s_and_b32 {sG}, s2, 7\ns_lshr_b32 {sI}, {sB}, 3\ns_lshr_b32 {sHH}, {sB}, 6\ns_bfe_u32 {sB}, {sB}, 0x10005")
        A("v_and_b32 v16, 3, v0")
        A("v_bfe_u32 v17, v0, 2, 2")
        A("v_lshrrev_b32 v18, 4, v0")
        A("v_lshlrev_b32 v6, 4, v16\nv_lshl_add_u32 v6, v17, 8, v6\nv_lshl_add_u32 v6, v18, 6, v6")
        A("v_and_b32 v19, 7, v0\nv_bfe_u32 v20, v0, 3, 1")
        A("v_lshlrev_b32 v7, 4, v19\nv_lshl_add_u32 v7, v20, 8, v7\nv_lshl_add_u32 v7, v18, 10, v7")
        A(f"s_lshl_b32 s82, {sB}, 5\ns_lshl_b32 s83, {sG}, 2\ns_add_u32 s82, s82, s83\ns_add_u32 s82, s82, {sHH}\ns_lshl_b32 s82, s82, 20")
        if s.lin: A(f"s_lshl_b32 s82, {sG}, 3\ns_lshr_b32 s83, {sI}, 2\ns_add_u32 s82, s82, s83\ns_lshl_b32 s82, s82, 20")
        A(f"s_and_b32 s83, {sI}, 3\ns_lshl_b32 s83, s83, 18\ns_add_u32 s82, s82, s83\ns_lshl_b32 s83, {sW}, 16\ns_add_u32 s82, s82, s83")
        A(f"s_mul_i32 s84, {sG}, {s.rotm[0]}\ns_mul_i32 s83, {sI}, {s.rotm[1]}\ns_add_u32 s84, s84, s83\ns_mul_i32 s83, {sW}, {s.rotm[2]}\ns_add_u32 s84, s84, s83\ns_and_b32 s84, s84, 15\ns_lshl_b32 s84, s84, 12")
        A(f"s_mul_i32 s85, {sW}, {NLDS*1024}\ns_add_u32 s85, s85, {L_KV}")
        A("s_mov_b32 s10, 0x10000\ns_mov_b32 s11, 0x20000\ns_mov_b32 m0, s85")
        A("s_waitcnt lgkmcnt(0)")
        if s.padbase == 0: A("s_mov_b32 s97, s98")
        if s.padbase == 2: A("s_memrealtime s[98:99]\ns_waitcnt lgkmcnt(0)\ns_mov_b32 s97, s98")
        A("s_add_u32 s8, s58, s82\ns_addc_u32 s9, s59, 0")
        ids = {}
        for f in range(4):
            ids[("k", f)] = A.vm(f"buffer_load_dwordx4 v6, {rK}, s84 offen offset:{f*1024} {s.kvpol} lds")
        for f in range(4, s.k0n):
            u, rem = f // 4, (f % 4) * 1024
            if f % 4 == 0:
                A(f"s_add_u32 s86, s84, {u*4096}\ns_and_b32 s86, s86, 0xffff")
                if f < 12: A(f"s_add_u32 m0, s85, {u*4096}")
            if f < 12: ids[("k", f)] = A.vm(f"buffer_load_dwordx4 v6, {rK}, s86 offen offset:{rem} {s.kvpol} lds")
            else: ids[("k", f)] = A.vm(f"buffer_load_dwordx4 {kloc(f)[1]}, v6, {rK}, s86 offen offset:{rem} {s.kvpol}")
        assert s.k0n % 4 == 0
        s.late = max(s.late, s.k0n)
        A("s_add_u32 s12, s60, s82\ns_addc_u32 s13, s61, 0\ns_mov_b32 s14, 0x10000\ns_mov_b32 s15, 0x20000")
        if s.stouch:
            A(f"s_lshl_b32 s86, {sG}, 19\ns_mul_i32 s87, {sG}, {176*1024}")
            for p, off in ((12, "0"), (80, "0"), (56, "0"), (62, "0"), (62, "0x200000 - 4"), (70, "0"), (74, "0"), (76, "0"), (78, "0"),
                           (64, "s86"), (68, "0"), (72, "s87")):
                if off.startswith("0x2"):
                    A("s_mov_b32 s88, 0x300000"); off = "s88"
                A(f"s_load_dword s99, s[{p}:{p+1}], {off}")
        if s.touch:
            A(f"s_add_u32 m0, s85, {12*1024}")
            ids[("v", 0)] = A.vm(f"buffer_load_dwordx4 v7, {rV}, s84 offen {s.vpol} lds")
        def srd(k, lo, n):
            A(f"s_mov_b32 s{k}, s{lo}\ns_mov_b32 s{k+1}, s{lo+1}\ns_mov_b32 s{k+2}, {n}\ns_mov_b32 s{k+3}, 0x20000")
        s.wsbytes = WS_BYTES if not s.ts else TS_OFF + 0x40000
        srd(16, 80, s.wsbytes)
        srd(20, 56, 2048); srd(24, 62, 4 << 20); srd(28, 64, 4 << 20); srd(32, 68, 512*2752)
        A(f"s_mul_i32 s83, {sG}, {176*1024}\ns_add_u32 s36, s72, s83\ns_addc_u32 s37, s73, 0")
        A(f"s_sub_u32 s38, {1376*1024}, s83\ns_min_u32 s38, s38, {176*1024}\ns_mov_b32 s39, 0x20000")
        srd(40, 70, 2752); srd(44, 74, 1024); srd(48, 76, 2048); srd(52, 78, 256)
        for ch, r in (("q", 26), ("o", 30), ("1", 34), ("2", 38)):
            if ch in str(s.skipt): A(f"s_mov_b32 s{r}, 0")
        if 's' in s.off: A("s_mov_b32 s22, 0\ns_mov_b32 s42, 0\ns_mov_b32 s46, 0")
        A(f"s_mov_b32 {sRot}, s84\ns_mov_b32 {sKVl}, s85")
        A("s_mov_b32 s56, 0x00030003\ns_mov_b32 s57, 0x00030003\ns_mov_b32 s58, 0x00030003\ns_mov_b32 s59, 0")
        A("s_mov_b32 s60, 0xffff\ns_mov_b32 s61, 0\ns_mov_b32 s62, 0xff\ns_mov_b32 s63, 0")
        A("s_mov_b32 s66, 0x33333333\ns_mov_b32 s67, 0xcccccccc")
        A(f"s_mov_b32 {sCnt}, 0\ns_mov_b32 {sMode}, 0\ns_mov_b32 {sLayer}, 0")
        A(f"s_mul_i32 {sTau}, {sG}, 11\ns_add_u32 {sTau}, {sTau}, {sI}")
        if s.ts:
            s.nts = 1; s.tsnames = ["start"]
            A("v_writelane_b32 v12, s100, 0")
        s.m0cur = None
        for f in range(s.k0n, max(4, s.late)): ids[("k", f)] = s.kv_load("k", f)
        if (s.padend or s.padchain) and s.padbase == 1: A("s_memrealtime s[98:99]\ns_waitcnt lgkmcnt(0)\ns_mov_b32 s97, s98")
        A("v_mov_b32 v64, -1\nv_mov_b32 v65, -1\nv_mov_b32 v66, -1\nv_mov_b32 v67, -1")
        A(f"s_lshl_b32 {sT0}, s2, 11\nv_lshlrev_b32 v21, 4, v0")
        A(f"s_cmp_lg_u32 {sW}, {0 if 'c' not in s.off else 9}\ns_cbranch_scc1 L_noclr")
        A.vm(f"buffer_store_dwordx4 v[64:67], v21, {rWS}, {sT0} offen sc1", optional=True)
        A.vm(f"buffer_store_dwordx4 v[64:67], v21, {rWS}, {sT0} offen offset:1024 sc1", optional=True)
        A.label("L_noclr")
        A("v_and_b32 v27, 1, v0")
        A("v_lshrrev_b32 v83, 1, v0\nv_lshlrev_b32 v89, 4, v27")
        A("v_lshl_add_u32 v80, v83, 13, v89\nv_lshl_add_u32 v81, v83, 10, v89\nv_mul_u32_u24 v82, 2752, v83\nv_add_u32 v82, v82, v89")
        A(f"s_lshl_b32 {sT2}, {sI}, 5")
        wq_ids = []
        def tile_wq():
            A(f"s_lshl_b32 {sT2}, {sI}, 5")
            A(f"s_lshl_b32 {sT0}, {sW}, 20\ns_lshl_b32 {sT1}, {sG}, 10\ns_add_u32 {sT0}, {sT0}, {sT1}\ns_add_u32 {sT0}, {sT0}, {sT2}")
            A(f"s_lshl_b32 {sT1}, {sW}, 12")
            for j in range(4):
                A(f"s_add_u32 m0, {sT1}, {L_WQ + j*1024}")
                wq_ids.append(A.vm(f"buffer_load_dwordx4 v80, {rWQ}, {sT0} offen {s.wpol if s.qpol is None else s.qpol} lds"))
                A(f"s_add_u32 {sT0}, {sT0}, {32*8192}")
            s.m0cur = None
        if s.wqat < 4: tile_wq()
        A(f"s_lshl_b32 {sT0}, {sW}, 8")
        A(f"v_and_b32 v9, 0x1f0, v6\nv_and_b32 v28, 0x100, v9\nv_mad_u32_u24 v9, v28, 3, v9\nv_add_u32 v9, {sT0}, v9")
        A("s_mov_b32 s0, 0x00ff00ff\ns_mov_b32 s1, 0x00ff00ff")
        s.ln_pre(None, L_SO)
        A(f"s_mov_b64 exec, {mR8}")
        A.vm(f"buffer_load_dwordx4 v[32:35], v9, {rX}, 0 offen")
        A("s_mov_b64 exec, -1")
        A(f"s_lshl_b32 {sT0}, {sG}, 5\ns_add_u32 {sT0}, {sT0}, {sI}\ns_lshl_b32 {sOown}, {sT0}, 8")
        A(f"s_lshl_b32 {sOg}, {sG}, 13\ns_lshl_b32 {sT0}, {sW}, 11\ns_add_u32 {sOg}, {sOg}, {sT0}")
        A(f"s_lshl_b32 {sT0}, {sG}, 2\ns_add_u32 {sT1}, {sT0}, {sHH}\ns_add_u32 {sT0}, {sT0}, {sW}")
        A(f"s_lshl_b32 {sSTg}, {sT0}, 7\ns_add_u32 {sSTg}, {sSTg}, {ST}")
        A(f"s_and_b32 {sT3}, {sI}, 7\ns_lshl_b32 {sSTown}, {sT3}, 3\ns_lshl_b32 {sT0}, {sT1}, 7\ns_add_u32 {sSTown}, {sSTown}, {sT0}\ns_add_u32 {sSTown}, {sSTown}, {ST}")
        A(f"s_lshl_b32 {sAPg}, {sT3}, 10\ns_lshl_b32 {sT0}, {sHH}, 14\ns_add_u32 {sAPg}, {sAPg}, {sT0}\ns_add_u32 {sAPg}, {sAPg}, {AP}")
        A(f"s_lshl_b32 {sT0}, {sG}, 7\ns_add_u32 {sAPown}, {sAPg}, {sT0}")
        A(f"s_add_u32 {sYPg}, {sAPg}, {YP-AP}\ns_add_u32 {sYPown}, {sAPown}, {YP-AP}")
        A(f"s_lshl_b32 {sT0}, {sT1}, 9\ns_lshl_b32 {sT3}, {sT3}, 5\ns_add_u32 {sQown}, {sT0}, {sT3}\ns_lshl_b32 {sT3}, {sB}, 8\ns_add_u32 {sQg}, {sT0}, {sT3}")
        A(f"s_add_u32 {sQown}, {sQown}, {QB0}\ns_add_u32 {sQg}, {sQg}, {QB0}")
        A(f"s_lshl_b32 {sX1g}, {sG}, 11\ns_add_u32 {sX1g}, {sX1g}, {X1}\ns_add_u32 {sX1own}, {sX1g}, {sT2}")
        A(f"s_add_u32 {sX2g}, {sX1g}, {X2-X1}\ns_add_u32 {sX2own}, {sX1own}, {X2-X1}")
        A(f"s_lshl_b32 {sHg}, {sG}, 10\ns_add_u32 {sHg}, {sHg}, {HB}\ns_lshl_b32 {sHown}, {sI}, 6\ns_add_u32 {sHown}, {sHown}, {sHg}")
        if s.race: A(f"s_lshl_b32 {sCopy}, {sW}, 13")
        elif s.copy < 0: A(f"s_mov_b32 {sCopy}, 0")
        else: A(f"s_getreg_b32 {sCopy}, hwreg(HW_REG_XCC_ID)\ns_bfe_u32 {sCopy}, {sCopy}, 0x10002\ns_xor_b32 {sCopy}, {sCopy}, {s.copy}\ns_lshl_b32 {sCopy}, {sCopy}, 13")
        A("v_lshlrev_b32 v24, 2, v19\nv_lshl_add_u32 v25, v20, 8, v24\nv_lshl_add_u32 v26, v20, 10, v24")
        A(f"s_mov_b64 exec, {m16}")
        A(f"s_cmp_lg_u32 {sW}, {0 if 'c' not in s.off else 9}\ns_cbranch_scc1 L_noclr2")
        A("s_mov_b64 exec, 0x303")
        A("v_lshlrev_b32 v25, 4, v19\nv_lshl_add_u32 v25, v20, 8, v25")
        A.vm(f"buffer_store_dwordx4 v[64:67], v25, {rWS}, {sQown} offen sc1", optional=True)
        A(f"s_mov_b64 exec, {m16}")
        A.label("L_noclr2")
        A.vm(f"buffer_load_dword v13, v26, {rX}, {sT2} offen")
        A.vm(f"buffer_load_dword v15, v24, {rB2}, {sT2} offen")
        A(f"s_lshl_b32 {sT0}, {sTau}, 5")
        last = A.vm(f"buffer_load_dword v14, v24, {rB1}, {sT0} offen")
        A("s_mov_b64 exec, -1")
        def tile_wo():
            A(f"v_lshrrev_b32 v59, 1, v0\nv_lshlrev_b32 v59, 10, v59\nv_and_b32 v31, 1, v0\nv_lshl_add_u32 v59, v31, 4, v59")
            A(f"s_lshl_b32 {sT2}, {sI}, 5")
            A(f"s_lshl_b32 {sT0}, {sG}, 19\ns_lshl_b32 {sT1}, {sW}, 17\ns_add_u32 {sT0}, {sT0}, {sT1}\ns_add_u32 {sT0}, {sT0}, {sT2}")
            A(f"s_lshl_b32 {sT3}, {sW}, 12")
            for j in range(4):
                A(f"s_add_u32 m0, {sT3}, {L_WO + j*1024}")
                A.vm(f"buffer_load_dwordx4 v59, {rWO}, {sT0} offen {s.wpol} lds")
                A(f"s_add_u32 {sT0}, {sT0}, {32*1024}")
            s.m0cur = None
        def tile_w12():
            A(f"v_lshrrev_b32 v59, 1, v0\nv_and_b32 v31, 1, v0\nv_lshlrev_b32 v31, 4, v31\nv_mul_u32_u24 v30, 2752, v59\nv_add_u32 v30, v30, v31\nv_lshl_add_u32 v59, v59, 10, v31")
            A(f"s_lshl_b32 {sT2}, {sI}, 5\ns_lshl_b32 {sT1}, {sW}, 12")
            A(f"s_mul_i32 {sT0}, {sW}, {128*2752}\ns_lshl_b32 s100, {sTau}, 5\ns_add_u32 {sT0}, {sT0}, s100")
            A(f"s_cmp_lt_u32 {sI}, 11\ns_cselect_b32 s34, s34, 0")
            for j in range(4):
                A(f"s_add_u32 m0, {sT1}, {L_W1 + j*1024}")
                A.vm(f"buffer_load_dwordx4 v30, {rW1}, {sT0} offen {s.wpol} lds")
                A(f"s_add_u32 {sT0}, {sT0}, {32*2752}")
            l = A.newlabel("L_w2")
            A(f"s_cmp_eq_u32 {sW}, 3\ns_cbranch_scc1 {l}")
            A(f"s_lshl_b32 {sT0}, {sW}, 16\ns_add_u32 {sT0}, {sT0}, {sT2}\nv_add_u32 v59, {sT0}, v59\nv_add_u32 v31, 0x8000, v59")
            A(f"s_lshl_b32 {sT1}, {sW}, 11")
            for j in range(2):
                A(f"s_add_u32 m0, {sT1}, {L_W2 + j*1024}")
                A.vm(f"buffer_load_dwordx4 v{(59, 31)[j]}, {rW2}, 0 offen {s.wpol} lds", optional=True)
            A.label(l)
            s.m0cur = None
        def tiles():
            if s.wolast < 1: tile_wo()
            if s.wolast < 2: tile_w12()
        def pf_q():
            l = A.newlabel("L_pf")
            A(f"s_lshl_b32 {sT0}, {sI}, 2\ns_add_u32 {sT0}, {sT0}, {sW}\ns_sub_u32 {sT0}, {sT0}, 64\ns_cbranch_scc1 {l}")
            A(f"s_lshl_b32 {sT0}, {sT0}, 16\ns_lshl_b32 {sT1}, {sG}, 10\ns_add_u32 {sT0}, {sT0}, {sT1}")
            A("v_lshrrev_b32 v60, 3, v0\nv_and_b32 v61, 7, v0\nv_lshlrev_b32 v60, 13, v60\nv_lshl_add_u32 v60, v61, 7, v60")
            A.vm(f"buffer_load_dword v61, v60, {rWQ}, {sT0} offen", optional=True)
            A.label(l)
        def pf_o(va=60):
            A(f"s_lshl_b32 {sT0}, {sI}, 2\ns_add_u32 {sT0}, {sT0}, {sW}")
            A(f"s_lshl_b32 {sT0}, {sT0}, 12\ns_lshl_b32 {sT1}, {sG}, 19\ns_add_u32 {sT0}, {sT0}, {sT1}\nv_lshlrev_b32 v{va}, 7, v0\ns_mov_b32 exec_hi, 0")
            A.vm(f"buffer_load_dword v61, v{va}, {rWO}, {sT0} offen")
            A("s_mov_b32 exec_hi, -1")
        def pf_12():
            l = A.newlabel("L_pf"); l1 = A.newlabel("L_pf")
            A(f"s_lshl_b32 {sT0}, {sI}, 2\ns_add_u32 {sT0}, {sT0}, {sW}\ns_cmp_lt_u32 {sT0}, 64\ns_cbranch_scc1 {l}")
            A(f"s_cmp_ge_u32 {sT0}, 96\ns_cbranch_scc1 {l1}")
            A(f"s_sub_u32 {sT0}, {sT0}, 64\ns_lshl_b32 {sT0}, {sT0}, 13\nv_lshlrev_b32 v60, 7, v0\nv_add_u32 v60, {sT0}, v60")
            A.vm(f"buffer_load_dword v61, v60, {rW2}, 0 offen", optional=True)
            A(f"s_branch {l}")
            A.label(l1)
            A(f"s_sub_u32 {sT0}, {sT0}, 96\ns_mul_i32 {sT0}, {sT0}, {16*2752}\ns_mul_i32 {sT1}, {sG}, 352\ns_add_u32 {sT0}, {sT0}, {sT1}")
            A("v_lshrrev_b32 v60, 2, v0\nv_mul_u32_u24 v60, 2752, v60\nv_and_b32 v61, 3, v0\nv_lshlrev_b32 v61, 7, v61\nv_min_u32 v61, 348, v61\nv_add_u32 v60, v60, v61")
            A.vm(f"buffer_load_dword v61, v60, {rW1}, {sT0} offen", optional=True)
            A.label(l)
        if s.wpf & 1: pf_q()
        ev = {}
        def kload(f):
            ids[("k", f)] = s.kv_load("k", f)
            for fn in ev.pop(f, []): fn()
        if s.touch:
            A("s_mov_b64 exec, 1")
            A.vm(f"buffer_load_dword v100, off, {rOUT}, 0")
            if s.touch > 1:
                A(f"s_lshl_b32 {sT0}, {sG}, 19\ns_mov_b32 {sT1}, {511*2752}")
                A.vm(f"buffer_load_dword v101, off, {rWO}, {sT0}")
                A.vm(f"buffer_load_dword v102, off, {rW1}, 0")
                A.vm(f"buffer_load_dword v103, off, {rW1}, {sT1}")
                A.vm(f"buffer_load_dword v104, off, {rW2}, 0")
            A("s_mov_b64 exec, -1")
        s.m0cur = None
        st = {}
        def e_pers():
            A(f"v_lshlrev_b32 v1, 4, v0\nv_add_u32 v1, {sKVl}, v1")
            A(f"s_lshl_b32 {sT0}, {sW}, 12")
            A(f"v_lshlrev_b32 v8, 3, v16\nv_lshl_add_u32 v8, v17, 5, v8\nv_lshl_add_u32 v10, v18, 8, v8\nv_lshl_add_u32 v8, v18, 10, v8\nv_add_u32 v8, {sT0}, v8")
            A("v_add_u32 v28, v16, v18\nv_and_b32 v28, 3, v28\nv_and_b32 v11, 4, v0\nv_lshlrev_b32 v11, 3, v11\nv_lshl_add_u32 v11, v28, 3, v11")
            A("v_mov_b32 v29, 0xffff\nv_mov_b32 v30, 0xffff0000\nv_cmp_eq_u32 vcc, 1, v27\nv_cndmask_b32 v29, v29, v30, vcc")
            for c in range(4):
                A(f"v_cmp_eq_u32 vcc, {c}, v17\nv_cndmask_b32 v{2+c}, 0, v29, vcc")
        def e_s7():
            A.wait_vm(max(last, wq_ids[-1]))
            s.tr_reads(L_WQ, 4, 16)
            s.ln_mma()
            skip = A.newlabel("L_skip")
            A(f"s_cmp_lg_u32 {sW}, 0\ns_cbranch_scc1 {skip}")
            A("v_mov_b32 v90, v80\nv_mov_b32 v91, v81\nv_mov_b32 v92, v82")
            A(f"s_mov_b64 exec, {m16}")
            s.ln_final()
            s.pair_off(68, 69, 8)
            A("v_cvt_pk_bf16_f32 v64, v64, v65\nv_min_u32 v64, -2, v64")
            A.vm(f"buffer_store_dword v64, v68, {rWS}, {sQown} offen sc1", optional=True)
            A("s_mov_b64 exec, -1")
            A("v_mov_b32 v81, v91\nv_mov_b32 v82, v92")
            A.label(skip)
            A.ds_done = A.ds_issued
            s.stamp("q0pub")
        def e_arr():
            A(f"s_cmp_lg_u32 {sW}, 0\ns_cbranch_scc1 L_noarr")
            A(f"s_waitcnt vmcnt({A.vm_issued - 1 - last})")
            A(f"s_getreg_b32 {sT0}, hwreg(HW_REG_XCC_ID)\ns_and_b32 {sT0}, {sT0}, 15\ns_mul_i32 {sT1}, {sT0}, 6\ns_add_u32 {sT1}, {sT1}, 8")
            A(f"s_lshl_b64 s[100:101], 1, {sT1}\ns_cmp_lt_u32 {sT0}, 8\ns_cselect_b64 s[100:101], s[100:101], 0\ns_or_b32 s100, s100, 1")
            A(f"v_mov_b32 v98, s100\nv_mov_b32 v99, s101\ns_lshl_b32 {sT0}, {sG}, 5\nv_mov_b32 v97, {sT0}")
            A("s_mov_b64 exec, 1")
            A.vm(f"buffer_atomic_add_x2 v[98:99], v97, {rDBG}, 0 offen sc1", optional=True)
            A("s_mov_b64 exec, -1")
            A.label("L_noarr")
        def e_chk():
            A("v_lshlrev_b32 v93, 5, v0")
            A(f"s_mov_b64 exec, {m8}")
            st['chk'] = A.vm(f"buffer_load_dwordx2 v[94:95], v93, {rDBG}, 0 offen sc1")
            A("s_mov_b64 exec, -1")
        def e_chk2():
            A.wait_vm(st['chk'])
            ok = A.newlabel("L_arr_ok"); lp = A.newlabel("L_arr")
            A(f"s_mov_b64 exec, {m8}")
            A.label(lp)
            A("v_and_b32 v96, 0xff, v94\nv_cmp_ne_u32 vcc, 32, v96")
            A(f"s_cbranch_vccz {ok}")
            A(f"s_sleep 4")
            A.vm(f"buffer_load_dwordx2 v[94:95], v93, {rDBG}, 0 offen sc1", optional=True)
            A(f"s_add_u32 {sCnt}, {sCnt}, 1\ns_cmp_lt_u32 {sCnt}, {LIMIT}\ns_waitcnt vmcnt(0)\ns_cbranch_scc1 {lp}")
            A.label(ok)
            A("s_mov_b64 exec, -1")
            A(f"v_readlane_b32 s100, v94, {sG}\nv_readlane_b32 s101, v95, {sG}")
            A(f"s_getreg_b32 {sT0}, hwreg(HW_REG_XCC_ID)\ns_and_b32 {sT0}, {sT0}, 15\ns_mul_i32 {sT1}, {sT0}, 6\ns_add_u32 {sT1}, {sT1}, 8")
            A(f"s_lshr_b64 s[100:101], s[100:101], {sT1}\ns_and_b32 s100, s100, 63\ns_cmp_eq_u32 s100, 32\ns_cselect_b32 {sMode}, 1, 0")
            A(f"s_cmp_lt_u32 {sT0}, 8\ns_cselect_b32 {sMode}, {sMode}, 0")
            if s.forceG: A(f"s_mov_b32 {sMode}, 0")
        def slot(fn, k):
            def g():
                l = A.newlabel("L_slot")
                A(f"s_and_b32 {sT0}, {sI}, 3\ns_cmp_lg_u32 {sT0}, {k}\ns_cbranch_scc1 {l}")
                n = A.vm_issued
                fn()
                A.vm_issued = n
                A.label(l)
                s.m0cur = None
                if k == 3 and fn is tile_wq: wq_ids.append(n)
            return g
        def e_dry():
            A(f"s_mov_b64 {sDry}, 0")
            A(f"s_cmp_lg_u32 {sW}, 3\ns_cbranch_scc1 L_dry_ret")
            A(f"s_mov_b64 {sDry}, -1")
            if s.dry > 1:
                if s.ts: A("s_mov_b32 s54, s28\ns_mov_b32 s55, s29")
                A(f"s_mov_b32 s18, 0\ns_mov_b32 {sW}, 0")
            A("s_branch L_att2")
            A.label("L_dry_back")
            if s.dry > 1:
                A(f"s_mov_b32 s18, {s.wsbytes}\ns_mov_b32 {sW}, 3")
                if s.ts: A(f"s_mov_b32 s28, s54\ns_mov_b32 s29, s55\ns_mov_b32 s30, {4<<20}\ns_mov_b32 s31, 0x20000\ns_mov_b32 s23, 0x20000")
            A(f"s_mov_b64 {sDry}, 0\ns_waitcnt lgkmcnt(0)")
            if s.prio: A("s_setprio 3")
            A.label("L_dry_ret")
            s.m0cur = None
        plan = [(max(15, s.late), e_pers), (s.arrat, e_arr), (s.chkat, e_chk), (s.s7at, e_s7), (s.chkat + 12, e_chk2)]
        if s.stag: plan += [(s.wqat + k * s.stag, slot(tile_wq, k)) for k in range(4)]
        else: plan.append((s.wqat, tile_wq))
        if s.stag2: plan += [(s.tilesat + k * s.stag2, slot(tiles, k)) for k in range(4)]
        else: plan.append((s.tilesat, tiles))
        if 'a' in s.off:
            plan = [p for p in plan if p[1] not in (e_arr, e_chk, e_chk2)]
            A(f"s_mov_b32 {sMode}, 1")
        if 'q' in s.off: plan = [p for p in plan if p[1] is not e_s7]
        if s.wpf & 2: plan.append((s.pfb, pf_12))
        if s.wpf & 4 and not s.wolast: plan.append((s.pfb, pf_o))
        if s.dry: plan.append((s.dryat, e_dry))
        if s.early_ts:
            def mkst(f, nm):
                def g():
                    A.wait_vm(ids[("k", f)]); s.stamp(nm); s.m0cur = None
                return g
            plan += [(14, mkst(0, "k0")), (20, mkst(8, "k8")), (30, mkst(18, "k18"))]
        for pos, f in plan:
            if pos >= 4: ev.setdefault(pos, []).append(f)
        for f in range(max(4, s.late), 64): kload(f)
        assert not ev
        class P1: pass
        p1 = P1(); p1.ids = ids; p1.next = 0
        if s.touch:
            p1.next = 1
            A(f"s_mov_b32 {sSV}, {sRot}")
        def issue_upto(n):
            while p1.next <= min(n, 63):
                ids[("v", p1.next)] = s.kv_load("v", p1.next); p1.next += 1
                if s.wpf & 4 and s.wolast and p1.next == s.pfo: pf_o(59)
                if s.prio and p1.next == s.priooff: A("s_setprio 0")
                if p1.next == s.wopos and s.wolast in (1, 2, 4): tile_wo()
                if p1.next == s.w12pos and s.wolast == 2: tile_w12()
        issue_upto(s.qi - 1)
        A("v_and_b32 v62, 0xf0, v6")
        qid = A.vm(f"buffer_load_dwordx4 {q4(QREG)}, v62, {rWS}, {sQg} offen sc1")
        def code_prefetch():
            A("s_getpc_b64 s[20:21]")
            A.label("L_pc")
            A.raw("    s_add_u32 s20, s20, L_chain-L_pc\n    s_addc_u32 s21, s21, 0\n    s_mov_b32 s22, L_code_end-L_chain\n    s_and_b32 s20, s20, 0xffffffc0")
            A(f"s_lshl_b32 {sT0}, {sI}, 2\ns_add_u32 {sT0}, {sT0}, {sW}\ns_lshl_b32 {sT0}, {sT0}, 12\nv_lshlrev_b32 v59, 6, v0")
            A.vm(f"buffer_load_dword v61, v59, {rX}, {sT0} offen")
        s.ncpf = 3
        p1.issue_upto = issue_upto; p1.code_prefetch = code_prefetch
        p1.issue_more = lambda k: issue_upto(p1.next + k - 1)
        issue_upto(s.qv - 1)
        A.wait_vm(qid)
        ok = A.newlabel("L_q_ok"); lp = A.newlabel("L_q")
        A.label(lp)
        A(f"v_max_u32 v63, v{QREG}, v{QREG+1}\nv_max3_u32 v63, v63, v{QREG+2}, v{QREG+3}\nv_cmp_eq_u32 vcc, -1, v63")
        A(f"s_cbranch_vccz {ok}")
        A.vm(f"buffer_load_dwordx4 {q4(QREG)}, v62, {rWS}, {sQg} offen sc1", optional=True)
        A(f"s_add_u32 {sCnt}, {sCnt}, 1\ns_cmp_lt_u32 {sCnt}, {LIMIT}\ns_waitcnt vmcnt(0)\ns_cbranch_scc1 {lp}")
        A.label(ok)
        A(f"s_sub_u32 {sQown}, {sQown}, {QB0 - QB}\ns_sub_u32 {sQg}, {sQg}, {QB0 - QB}")
        if 'x' in s.off:
            issue_upto(63); A.wait_vm0()
        s.stamp("q0got")
        s.att_prefetchK()
        s.attention(p1)
        if s.race:
            A(f"v_mov_b32 v28, -1\nv_mov_b32 v29, {L_RACE}")
            A.ds("ds_write_b32 v29, v28")
        def s1_writes():
            A("s_mov_b32 exec_lo, 0\ns_brev_b32 exec_hi, 1")
            A.ds("ds_write_b64 v58, v[62:63]")
            A(f"v_mov_b32 v26, {L_ST}\ns_mov_b64 exec, {mOV}")
            A.ds("ds_write_b128 v56, v[48:51]")
            A.ds("ds_write_b128 v56, v[52:55] offset:128")
            A("s_mov_b64 exec, -1")
        if not s.wolast: A.wait_vm0()
        if s.wolast >= 3:
            s.inchain = True; s.ts0 = s.nts
            if s.ts: A("s_memrealtime s[98:99]")
            s1_writes()
            if s.wolast == 3: tile_wo()
            tile_w12()
            s.ts_flush(True)
            if s.ts: A("s_waitcnt lgkmcnt(0)\ns_mov_b32 s20, s98")
            A("s_branch L_chain2")
        if s.padchain: s.spin_until(s.padchain)
        if s.busy and s.busyat == 0: s.busyloop()
        s.inchain = True; s.ts0 = s.nts
        s.ts_flush(True)
        A.label("L_chain")
        A.hist = [parse("v_mfma_f32_16x16x32_bf16 v[48:51], v[0:3], v[0:3], v[48:51]"), parse("v_add_f32 v63, v63, v63"),
                  parse("v_mfma_f32_16x16x32_bf16 v[52:55], v[0:3], v[0:3], v[52:55]"), parse("s_branch L_chain")]
        s.stamp("pvdone")
        s1_writes()
        A.label("L_chain2")
        A(f"v_mov_b32 v26, {L_ST}\nv_lshlrev_b32 v27, 2, v0\nv_mov_b32 v29, 0")
        A(f"s_cmp_lg_u32 {sW}, 0")
        A.wait_ds0()
        s.barrier()
        A("s_cbranch_scc1 L_S2w" if s.odelay else "s_cbranch_scc1 L_S2")
        if s.odelay: s.tail.append(f"L_S2w:\n    s_sleep {s.odelay}\n    s_branch L_S2")
        A.ds("ds_read_b128 v[64:67], v26")
        st2 = A.ds("ds_read_b128 v[68:71], v26 offset:16")
        for blk in range(8):
            A.ds(f"ds_read2st64_b32 {q2(72+2*blk)}, v57 offset0:{2*blk} offset1:{2*blk+1}")
        A.wait_ds(st2)
        A("v_max3_f32 v88, v64, v66, v68\nv_max_f32 v88, v88, v70")
        for w in range(4): A(f"v_sub_f32 v{64+2*w}, v{64+2*w}, v88")
        for w in range(4): A(f"v_exp_f32 v{64+2*w}, v{64+2*w}")
        s.mode_test()
        A.wait_ds0()
        for w in range(4): A(f"v_pk_add_f32 {q2(72+4*w)}, {q2(72+4*w)}, {q2(74+4*w)}")
        A("v_pk_mul_f32 v[90:91], v[72:73], v[64:65] op_sel_hi:[1,0]")
        A("v_mul_f32 v89, v64, v65")
        for w in range(1, 4):
            A(f"v_pk_fma_f32 v[90:91], {q2(72+4*w)}, {q2(64+2*w)}, v[90:91] op_sel_hi:[1,0,1]")
            A(f"v_fmac_f32 v89, v{64+2*w}, v{65+2*w}")
        A("v_cvt_pk_bf16_f32 v90, v90, v91\nv_min_u32 v88, -2, v88\nv_min_u32 v90, -2, v90\nv_min_u32 v89, -2, v89")
        s.publish([f"buffer_store_dword v90, v27, {rWS}, {sOown} offen {{pol}}",
                   f"s_mov_b64 exec, 1\nbuffer_store_dwordx2 v[88:89], v29, {rWS}, {sSTown} offen {{pol}}\ns_mov_b64 exec, -1"], tested=True)
        A.label("L_S2")
        A.ds_done = A.ds_issued
        s.stamp("opub")
        A("v_mov_b32 v72, 0\nv_mov_b32 v73, 0")
        A(f"s_lshl_b32 {sT0}, {sW}, 7\ns_add_u32 {sT0}, {sT0}, {RED2}")
        A(f"v_and_b32 v80, 15, v0\nv_lshrrev_b32 v81, 5, v0\nv_lshlrev_b32 v80, 2, v80\nv_lshl_add_u32 v80, v81, 6, v80\nv_add_u32 v80, {sT0}, v80")
        A(f"v_lshlrev_b32 v81, 4, v0\nv_add_u32 v82, {RED2}, v81\nv_mov_b32 v83, {L_RACE}")
        def issue():
            A(f"s_mov_b64 exec, {mR8}")
            A(f"buffer_load_dwordx2 v[72:73], v11, {rWS}, {sSTg} offen sc1")
            A("s_mov_b64 exec, -1")
            A(f"buffer_load_dwordx4 v[32:35], v6, {rWS}, {sOg} offen sc1")
            A(f"buffer_load_dwordx4 v[36:39], v6, {rWS}, {sOg} offen offset:1024 sc1")
        def primed():
            s.tr_reads(L_WO, 4, 16)
        s.poll(issue, 3, list(range(32, 40)) + [72, 73], 74, s.dL, s.gapL, primed)
        s.stamp("ogot")
        A.wait_ds0()
        side = [f"v_max_f32_dpp v74, v72, v72 quad_perm:[1,0,3,2] {FULL}",
                f"v_max_f32_dpp v74, v74, v74 quad_perm:[2,3,0,1] {FULL}",
                "v_sub_f32 v75, v72, v74", "v_exp_f32 v75, v75", "v_mul_f32 v76, v75, v73",
                f"v_add_f32_dpp v76, v76, v76 quad_perm:[1,0,3,2] {FULL}",
                f"v_add_f32_dpp v76, v76, v76 quad_perm:[2,3,0,1] {FULL}",
                "v_rcp_f32 v76, v76"]
        for b in range(2):
            for c in range(4):
                A(f"v_mfma_f32_16x16x32_bf16 {q4(40+16*b+4*c)}, {q4(32+4*b)}, {q4(16+4*c)}, 0")
                A(side.pop(0))
        A("v_mul_f32 v75, v75, v76")
        A("v_add_f32 v40, v40, v45\nv_add_f32 v50, v50, v55\nv_add_f32 v40, v40, v50")
        A(f"v_mul_f32_dpp v78, v75, v40 row_newbcast:0 {FULL}")
        A("v_add_f32 v56, v56, v61\nv_add_f32 v66, v66, v71\nv_add_f32 v56, v56, v66")
        A(f"v_mul_f32_dpp v79, v75, v56 row_newbcast:4 {FULL}")
        A("v_permlane32_swap_b32 v78, v79\nv_add_f32 v78, v78, v79\nv_mov_b32 v79, v78")
        A("v_permlane16_swap_b32 v78, v79\nv_add_f32 v78, v78, v79")
        A.ds("ds_write_b32 v80, v78")
        A(f"s_cmp_lg_u32 {sW}, 0")
        s.drain()
        A.wait_ds0()
        s.barrier()
        A("s_cbranch_scc1 L_S3")
        A(f"s_mov_b64 exec, {m8}")
        for w in range(4): A.ds(f"ds_read_b128 {q4(64+4*w)}, v82 offset:{128*w}")
        base = A.ds_issued
        if s.copy < 0 and not s.race: A.ds(f"ds_read_b64 v[84:85], v83")
        A(f"s_add_u32 {sT0}, {sAPown}, 8192")
        A.wait_ds(base - 3)
        A("v_pk_add_f32 v[64:65], v[64:65], v[68:69]\nv_pk_add_f32 v[66:67], v[66:67], v[70:71]")
        A.wait_ds(base - 1)
        A("v_pk_add_f32 v[72:73], v[72:73], v[76:77]\nv_pk_add_f32 v[74:75], v[74:75], v[78:79]")
        A("v_pk_add_f32 v[64:65], v[64:65], v[72:73]\nv_pk_add_f32 v[66:67], v[66:67], v[74:75]")
        for k in range(64, 68): A(f"v_min_u32 v{k}, -2, v{k}")
        A(f"buffer_store_dwordx4 v[64:67], v81, {rWS}, {sAPown} offen sc1")
        A(f"buffer_store_dwordx4 v[64:67], v81, {rWS}, {sT0} offen sc1")
        A("s_mov_b64 exec, -1")
        s.stamp("appub")
        if s.copy < 0 and not s.race:
            A.wait_ds0()
            s.pick_copy(84)
        A.label("L_S3")
        A.ds_done = A.ds_issued
        s.ln_pre(L_W1, RED4, sX1g)
        s.probe(4, 0, "ds_min_u32", 90, 91)
        if s.race: A(f"s_lshl_b32 {sT0}, {sLayer}, 1\ns_add_u32 {sT0}, {sT0}, {sW}\ns_cmp_lt_u32 {sT0}, 2\ns_cselect_b32 {sT0}, 0, {sW}\ns_cmp_lg_u32 {sT0}, 0")
        else: A(f"s_cmp_lg_u32 {sW}, 0")
        A("s_cbranch_scc1 L_S4")
        def xreduce(sg, addb2):
            A(f"s_mov_b64 exec, {m16}")
            A("v_lshlrev_b32 v82, 3, v0")
            A("v_lshlrev_b32 v80, 16, v13\nv_and_b32 v81, 0xffff0000, v13")
            if addb2:
                A("v_lshlrev_b32 v90, 16, v15\nv_and_b32 v91, 0xffff0000, v15")
                A("v_pk_add_f32 v[80:81], v[80:81], v[90:91]")
            s.pair_off(83, 89, 10)
            A(f"s_add_u32 {sT0}, {sg}, {sCopy}")
            def issue():
                for j in range(8): A(f"buffer_load_dwordx2 {q2(64+2*j)}, v82, {rWS}, {sT0} offen offset:{j*128} sc1")
            if s.gdelay: A(f"s_sleep {s.gdelay}")
            def total():
                A("v_pk_add_f32 v[90:91], v[64:65], v[66:67]\nv_pk_add_f32 v[92:93], v[68:69], v[70:71]")
                A("v_pk_add_f32 v[94:95], v[72:73], v[74:75]\nv_pk_add_f32 v[96:97], v[76:77], v[78:79]")
                A("v_pk_add_f32 v[90:91], v[90:91], v[92:93]\nv_pk_add_f32 v[94:95], v[94:95], v[96:97]")
                A("v_pk_add_f32 v[90:91], v[90:91], v[80:81]")
                A("v_pk_add_f32 v[90:91], v[90:91], v[94:95]")
            if not s.nanchk:
                s.poll(issue, 8, range(64, 80), 89, s.dG, s.gapG)
                total()
                s.mode_test()
            else:
                for p in range(s.dG - 1):
                    issue()
                    A(f"s_sleep {s.gapG}")
                lab = A.newlabel("L_poll"); ok = A.newlabel("L_ok"); slow = A.newlabel("L_exact")
                A.label(lab)
                issue()
                A(f"s_add_u32 {sCnt}, {sCnt}, 1")
                A(f"s_waitcnt vmcnt({(s.dG-1)*8})")
                total()
                s.mode_test()
                A("v_cmp_u_f32 vcc, v90, v91")
                A(f"s_cbranch_vccnz {slow}")
                A.label(ok)
                t = [f"{slow}:", "v_max_u32 v89, v64, v65"] + [f"v_max3_u32 v89, v89, v{k}, v{k+1}" for k in range(66, 80, 2)]
                t += ["v_cmp_eq_u32 vcc, -1, v89", f"s_cmp_lt_u32 {sCnt}, {LIMIT}", f"s_cselect_b64 {sAlive}, -1, 0", f"s_and_b64 vcc, vcc, {sAlive}", f"s_cbranch_scc1 {lab}", "s_waitcnt vmcnt(0)"]
                t += ["v_pk_add_f32 v[90:91], v[64:65], v[66:67]", "v_pk_add_f32 v[92:93], v[68:69], v[70:71]", "v_pk_add_f32 v[94:95], v[72:73], v[74:75]", "v_pk_add_f32 v[96:97], v[76:77], v[78:79]",
                      "v_pk_add_f32 v[90:91], v[90:91], v[92:93]", "v_pk_add_f32 v[94:95], v[94:95], v[96:97]", "v_pk_add_f32 v[90:91], v[90:91], v[80:81]", "v_pk_add_f32 v[90:91], v[90:91], v[94:95]"]
                t += [f"s_cmp_eq_u32 {sMode}, 0", f"s_branch {ok}"]
                s.tail.append("\n".join(l if l.endswith(":") else "    " + l for l in t))
            A("v_cvt_pk_bf16_f32 v13, v90, v91")
        xreduce(sAPg, False)
        A("v_min_u32 v90, -2, v13")
        s.publish(f"buffer_store_dword v90, v83, {rWS}, {sX1own} offen {{pol}}", tested=True)
        A("s_mov_b64 exec, -1")
        s.stamp("x1pub")
        if s.race:
            A(f"s_memtime s[100:101]\ns_cmp_eq_u32 {sW}, 0\ns_cbranch_scc1 L_S4")
            A(f"v_mov_b32 v91, {L_RACE}\ns_waitcnt lgkmcnt(0)\nv_mov_b32 v90, s100")
            A("ds_write_b32 v91, v90")
        A.label("L_S4")
        A(f"s_cmp_ge_u32 {sI}, 11\ns_cbranch_scc1 {'L_S5w' if s.hdelay else 'L_S5'}")
        if s.hdelay: s.tail.append(f"L_S5w:\n    s_sleep {s.hdelay}\n    s_branch L_S5")
        s.ln_poll(sX1g)
        s.stamp("xgot")
        s.ln_mma()
        A(f"s_cmp_lg_u32 {sW}, 0\ns_cbranch_scc1 L_S7")
        A(f"s_mov_b64 exec, {m16}")
        s.drain()
        s.ln_final_pre = None
        A(f"s_cmp_lt_u32 {sTau}, 86\ns_cselect_b32 {sT3}, -1, 0")
        k1 = -2.0 * math.sqrt(2.0 / math.pi) * math.log2(math.e)
        A("v_lshlrev_b32 v92, 16, v14\nv_and_b32 v93, 0xffff0000, v14")
        A(f"v_mov_b32 v94, {f2u(k1 * 0.044715)}\nv_mov_b32 v96, {f2u(k1)}")
        A("v_and_b32 v98, 3, v0\nv_lshlrev_b32 v98, 2, v98\nv_and_b32 v99, 4, v0\nv_lshl_add_u32 v98, v99, 3, v98\nv_and_b32 v99, 8, v0\nv_lshl_add_u32 v98, v99, 1, v98")
        s.ln_final()
        A("v_pk_add_f32 v[64:65], v[64:65], v[92:93]")
        A("v_pk_mul_f32 v[66:67], v[64:65], v[64:65]")
        A("v_pk_fma_f32 v[66:67], v[66:67], v[94:95], v[96:97] op_sel_hi:[1,0,0]")
        A("v_pk_mul_f32 v[66:67], v[66:67], v[64:65]")
        A("v_exp_f32 v66, v66\nv_exp_f32 v67, v67")
        A("v_add_f32 v66, 1.0, v66\nv_add_f32 v67, 1.0, v67")
        A("v_rcp_f32 v66, v66\nv_rcp_f32 v67, v67")
        s.mode_test()
        A("v_pk_mul_f32 v[64:65], v[64:65], v[66:67]")
        A(f"v_cvt_pk_bf16_f32 v64, v64, v65\nv_min_u32 v64, -2, v64\nv_and_b32 v64, {sT3}, v64")
        s.publish(f"buffer_store_dword v64, v98, {rWS}, {sHown} offen {{pol}}", tested=True)
        A("s_mov_b64 exec, -1")
        s.stamp("hpub")
        A.label("L_S5")
        A.ds_done = A.ds_issued
        A(f"s_cmp_lg_u32 {sW}, 0\ns_cbranch_scc1 L_S7")
        s.tr_reads(L_W2, 6, 16, "v10", 1024)
        for k in range(60, 64): A(f"v_mov_b32 v{k}, 0")
        A("v_and_b32 v86, 1, v0\nv_lshrrev_b32 v87, 4, v0\nv_lshlrev_b32 v87, 4, v87\nv_lshl_add_u32 v85, v86, 6, v87\nv_lshlrev_b32 v87, 1, v87\nv_lshl_add_u32 v84, v86, 4, v87")
        if s.race:
            A(f"v_mov_b32 v86, {L_RACE}")
            A.ds("ds_read_b32 v87, v86")
        elif s.copy < 0:
            A(f"v_mov_b32 v86, {L_RACE}")
            A.ds("ds_read_b64 v[98:99], v86")
        def issue():
            A(f"s_mov_b64 exec, {mAlo}")
            A(f"buffer_load_dwordx4 v[60:63], v84, {rWS}, {sHg} offen offset:640 sc1")
            A(f"s_mov_b64 exec, {mA}")
            for kk in range(5): A(f"buffer_load_dwordx4 {q4(40+4*kk)}, v84, {rWS}, {sHg} offen offset:{kk*128} sc1")
        s.poll(issue, 6, range(40, 64), 88, s.dL, s.gapL)
        A("s_mov_b64 exec, -1")
        A.wait_ds0()
        for kk in range(6):
            d = 90 if kk % 2 == 0 else 94
            A(f"v_mfma_f32_16x16x32_bf16 {q4(d)}, {q4(16+4*kk)}, {q4(40+4*kk)}, {'0' if kk < 2 else q4(d)}")
            if s.race and kk == 0: A(f"v_readfirstlane_b32 {sT1}, v87")
        A(f"s_add_u32 {sT0}, {sYPown}, 8192")
        A(f"s_mov_b64 exec, {mA}")
        s.drain()
        A("v_pk_add_f32 v[90:91], v[90:91], v[94:95]\nv_pk_add_f32 v[92:93], v[92:93], v[96:97]")
        for k in range(90, 94): A(f"v_min_u32 v{k}, -2, v{k}")
        A(f"buffer_store_dwordx4 v[90:93], v85, {rWS}, {sYPown} offen sc1")
        A(f"buffer_store_dwordx4 v[90:93], v85, {rWS}, {sT0} offen sc1")
        A("s_mov_b64 exec, -1")
        s.stamp("yppub")
        A(f"s_cmp_eq_u32 {sLayer}, 0\ns_cselect_b32 {sT0}, 0, {sG}\ns_cmp_lg_u32 {sT0}, 0\ns_cbranch_scc1 L_done")
        if s.race:
            A(f"s_cmp_eq_u32 {sT1}, -1\ns_cselect_b32 {sT1}, s100, {sT1}")
            A(f"s_sub_u32 {sT1}, {sT1}, s100\ns_cmp_lt_i32 {sT1}, 0\ns_cselect_b32 {sT1}, 8192, 0")
            A(f"s_cmp_eq_u32 {sLayer}, 0\ns_cselect_b32 {sCopy}, {sT1}, {sCopy}")
        s.pick_copy(98)
        s.ln_pre(L_WQ, RED4, sX2g)
        xreduce(sYPg, True)
        A(f"s_cmp_lg_u32 {sLayer}, 0\ns_cbranch_scc1 L_fin")
        A("v_min_u32 v90, -2, v13")
        s.publish(f"buffer_store_dword v90, v83, {rWS}, {sX2own} offen {{pol}}")
        A("s_mov_b64 exec, -1")
        s.stamp("x2pub")
        A("s_branch L_S7b")
        A.label("L_S7")
        A(f"s_cmp_lg_u32 {sLayer}, 0\ns_cbranch_scc1 L_done")
        s.drain()
        s.ln_pre(L_WQ, RED4, sX2g)
        A.label("L_S7b")
        s.ln_poll(sX2g)
        s.stamp("xgot")
        s.ln_mma()
        A(f"s_cmp_lg_u32 {sW}, 0\ns_cbranch_scc1 {'L_S8w' if s.qdelay else 'L_S8'}")
        if s.qdelay: s.tail.append(f"L_S8w:\n    s_sleep {s.qdelay}\n    s_branch L_S8")
        A(f"s_mov_b64 exec, {m16}")
        s.drain()
        s.pair_off(98, 99, 8)
        s.ln_final()
        s.mode_test()
        A("v_cvt_pk_bf16_f32 v64, v64, v65\nv_min_u32 v64, -2, v64")
        s.publish(f"buffer_store_dword v64, v98, {rWS}, {sQown} offen {{pol}}", tested=True)
        A("s_mov_b64 exec, -1")
        s.stamp("qpub")
        A.label("L_S8")
        A.ds_done = A.ds_issued
        s.ts_flush()
        if s.padq: s.spin_until(s.padq)
        s.att_prefetchK()
        A("v_and_b32 v62, 0xf0, v6")
        if s.dry > 1: A("s_cmp_lg_u32 s46, 0\ns_cbranch_scc1 L_dry_back")
        A(f"s_mov_b32 {sLayer}, 1")
        def issue(): A(f"buffer_load_dwordx4 {q4(QREG)}, v62, {rWS}, {sQg} offen sc1")
        s.poll(issue, 1, range(QREG, QREG + 4), 61, s.dQ, s.gapL)
        s.stamp("qgot")
        A(f"s_add_u32 s16, s16, {LSTRIDE}\ns_addc_u32 s17, s17, 0\ns_sub_u32 s18, s18, {LSTRIDE}")
        A.label("L_att2")
        s.attention(None)
        if s.dry == 1: A("s_cmp_lg_u32 s46, 0\ns_cbranch_scc1 L_dry_back")
        if s.pad2: s.spin_until(s.pad2)
        A("s_branch L_chain")
        A.label("L_fin")
        A(f"s_lshl_b32 {sT0}, {sI}, 5")
        A(f"buffer_store_dword v13, v83, {rOUT}, {sT0} offen")
        A.label("L_done")
        if s.padend: s.spin_until(s.padend)
        if s.busy and s.busyat == 1: s.busyloop()
        if s.padcyc:
            A("s_memtime s[98:99]\ns_waitcnt lgkmcnt(0)\ns_mov_b32 s97, s98")
            s.spin_until(s.padcyc, "s_memtime")
        if s.ts:
            A("s_mov_b64 exec, -1")
            s.stamp("end")
            s.ts_flush()
            A(f"v_writelane_b32 v12, {sCopy}, 63\nv_writelane_b32 v12, {sCnt}, 62")
            A(f"s_mul_i32 {sT0}, {sLayer}, {LSTRIDE}\ns_lshl_b32 {sT1}, s2, 2\ns_add_u32 {sT1}, {sT1}, {sW}\ns_lshl_b32 {sT1}, {sT1}, 8")
            A(f"s_add_u32 {sT1}, {sT1}, {TS_OFF}\ns_sub_u32 {sT1}, {sT1}, {sT0}\nv_lshlrev_b32 v16, 2, v0")
            A(f"buffer_store_dword v12, v16, {rWS}, {sT1} offen")
        A("L_end:\ns_endpgm")
        for t in s.tail: A.raw(t)
        A.raw("L_code_end:")
        A.raw('.section .rodata,"a"\n.p2align 6')
        A.raw(f".amdhsa_kernel {NAME}_kernel")
        A.raw("  .amdhsa_next_free_vgpr 512\n  .amdhsa_next_free_sgpr 102\n  .amdhsa_accum_offset 256\n  .amdhsa_group_segment_fixed_size 0")
        A.raw("  .amdhsa_kernarg_size 104\n  .amdhsa_user_sgpr_count 2\n  .amdhsa_user_sgpr_kernarg_segment_ptr 1\n  .amdhsa_system_sgpr_workgroup_id_x 1")
        A.raw("  .amdhsa_float_denorm_mode_32 3\n.end_amdhsa_kernel")
        return A.text()

if __name__ == "__main__":
    out = sys.argv[1] if len(sys.argv) > 1 else f"cdna_kernels/{NAME}.s"
    kw = {}
    for a in sys.argv[2:]:
        k, v = a.split("=")
        kw[k] = int(v) if v.lstrip("-").isdigit() else v
    g = Gen(**kw)
    open(out, "w").write(g.build())
    if kw.get("ts"): open(out + ".names", "w").write(" ".join(g.tsnames))
    print("wrote", out, "nops", g.A.nops)
```

```python
import sys, math, struct
from asmlib import Asm, parse

NAME = "interleave_layers__gqa_block_cached__dense_activation_gelu__decode"
HEADER = open("cdna_kernels/%s.s.ref" % NAME).read().split("; Override launch")[0]

L_WQ, L_WO, L_W1, L_W2 = 0, 16384, 32768, 49152
L_ACC = 55296
L_SO = 57344
L_KV = 61440
NLDS = 25
RED2 = L_ACC
RED4 = L_ACC + 512
L_ST = L_ACC + 1536
L_RACE = L_ACC + 1600
OB, AP, YP, ST, HB, X1, X2, QB = 0x0, 0x10000, 0x20000, 0x30000, 0x32000, 0x34000, 0x38000, 0x3c000
LSTRIDE = 0x40000
QB0 = 0x80000
WS_BYTES = 0x84000
TS_OFF = 0x100000

sW, sG, sI, sHH, sB = "s3", "s4", "s5", "s6", "s7"
rK, rV, rWS, rX, rWQ, rWO, rW1, rW2, rB1, rB2, rOUT, rDBG = [f"s[{k}:{k+3}]" for k in range(8, 56, 4)]
mA, mAlo, m16, m8, sAlive, mOV = [f"s[{k}:{k+1}]" for k in range(56, 68, 2)]
sCnt, sMode, sLayer, sRot, sKVl, sSK, sSV, sT0, sT1, sT2 = [f"s{k}" for k in range(68, 78)]
sOown, sSTown, sOg, sSTg, sAPown, sAPg, sX1own, sX1g, sHown, sHg, sYPown, sYPg, sX2own, sX2g, sQown, sQg = [f"s{k}" for k in range(78, 94)]
sCopy, sT3, sTau = "s94", "s95", "s96"
sDry = "s[46:47]"
mR8 = "s[0:1]"
sTS = "s[98:99]"
LIMIT = 100000
QREG = 96

C_SCALE = math.log2(math.e) / math.sqrt(128.0)
def f2u(x): return "0x%08x" % struct.unpack("<I", struct.pack("<f", x))[0]

def kloc(f):
    return ("l", f) if f < 12 else ("r", f"a[{4*(f-12)}:{4*(f-12)+3}]")
def vloc(f):
    if f < 13: return ("l", 12 + f)
    if f < 25: return ("r", f"a[{208+4*(f-13)}:{208+4*(f-13)+3}]")
    return ("r", f"v[{100+4*(f-25)}:{100+4*(f-25)+3}]")
def q4(b): return f"v[{b}:{b+3}]"
def q2(b): return f"v[{b}:{b+1}]"
FULL = "row_mask:0xf bank_mask:0xf"

class Gen:
    def __init__(s, kvpol="nt", wpol="", ts=False, lag=16, forceG=False, padend=0, padchain=0, padcyc=0,
                 dL=2, dG=3, gapL=1, gapG=2, race=0, copy=-1, cpf=6, bar=1, dQ=2, cpf0=1, padbase=1, padq=0, pad2=0, vpol=None, early=0, touch=1, s7at=41, tilesat=56, chkv=12, qv=24, wolast=1, gdelay=4, opt=1, rotm=(8, 1, 4), vrot=0, spread=0, sp0=8, sched=0, ssp=10, cpfone=1, skipt='', wqat=30, arrat=20, chkat=48, qi=12, stag=0, stag2=0, qpol=None, wopos=64, w12pos=64, stouch=0, late=0, dry=1, dryat=42, nanchk=1, odelay=4, q96=1, hdelay=0, qdelay=0, xdelay=0, busy=0, busyat=0, early_ts=0, prio=0, priooff=12, win=0, off='', lin=0, k0n=8, xi=0, wpf=3, pfb=36, pfo=44):
        s.A = Asm(); s.kvpol = kvpol; s.wpol = wpol; s.ts = ts; s.lag = lag; s.forceG = forceG
        s.padend = padend; s.padchain = padchain; s.padcyc = padcyc
        s.dL = dL; s.dG = dG; s.gapL = gapL; s.gapG = gapG; s.race = race; s.copy = copy; s.cpf = cpf; s.bar = bar; s.dQ = dQ; s.cpf0 = cpf0; s.padbase = padbase; s.padq = padq; s.pad2 = pad2; s.early = early; s.touch = touch; s.s7at = s7at; s.tilesat = tilesat; s.chkv = chkv; s.qv = qv; s.wolast = wolast; s.gdelay = gdelay; s.opt = opt; s.rotm = eval(rotm.replace('_', ',')) if isinstance(rotm, str) else rotm; s.vrot = vrot; s.spread = spread; s.sp0 = sp0; s.sched = sched; s.ssp = ssp; s.cpfone = cpfone; s.skipt = skipt; s.wqat = wqat; s.arrat = arrat; s.chkat = chkat; s.qi = qi; s.stag = stag; s.stag2 = stag2; s.qpol = qpol; s.wopos = wopos; s.w12pos = w12pos; s.stouch = stouch; s.late = late; s.dry = dry; s.dryat = dryat; s.nanchk = nanchk; s.odelay = odelay; s.q96 = q96; s.hdelay = hdelay; s.qdelay = qdelay; s.xdelay = xdelay; s.busy = busy; s.busyat = busyat; s.early_ts = early_ts; s.prio = prio; s.priooff = priooff; s.win = win; s.off = str(off); s.lin = lin; s.k0n = k0n; s.xi = xi; s.wpf = wpf; s.pfb = pfb; s.pfo = pfo; s.kvpol = s.kvpol.replace('+', ' '); s.wpol = s.wpol.replace('+', ' '); s.vpol = s.kvpol if vpol is None else vpol.replace('+', ' ')
        s.tail = []
        s.hook = None
        s.nts = 0; s.inchain = False; s.ts0 = 0
    def stamp(s, name):
        if not s.ts: return
        A = s.A
        k = s.nts; s.nts += 1
        s.tsnames = getattr(s, "tsnames", []) + [name]
        if s.inchain:
            j = k - s.ts0
            assert j < 14
            A(f"s_memrealtime s[{20+2*j}:{21+2*j}]")
            return
        A(f"s_memrealtime {sTS}")
        A(f"s_lshl_b32 s97, {sLayer}, 5\ns_add_u32 m0, s97, {k}")
        A("s_waitcnt lgkmcnt(0)")
        A.ds_done = A.ds_issued
        A(f"v_writelane_b32 v12, s98, m0")
    def ts_flush(s, zero_only=False):
        if not s.ts: return
        A = s.A
        if not zero_only:
            A("s_waitcnt lgkmcnt(0)")
            A.ds_done = A.ds_issued
            A(f"s_lshl_b32 s97, {sLayer}, 5")
            for j in range(14):
                A(f"s_add_u32 m0, s97, {s.ts0 + j}\nv_writelane_b32 v12, s{20+2*j}, m0")
        for j in range(14): A(f"s_mov_b32 s{20+2*j}, 0")
    def spin_until(s, n, clock="s_memrealtime", base="s97"):
        A = s.A; l = A.newlabel("L_spin")
        A.label(l)
        A(f"{clock} s[98:99]\ns_waitcnt lgkmcnt(0)\ns_sub_u32 s98, s98, {base}\ns_cmp_lt_u32 s98, {n}\ns_cbranch_scc1 {l}")
    def busyloop(s):
        A = s.A; l = A.newlabel("L_busy")
        A(f"s_mov_b32 s97, {s.busy}")
        A.label(l)
        for k in range(16): A("v_fma_f32 v61, v61, v61, v61")
        A(f"s_sub_u32 s97, s97, 1\ns_cmp_lg_u32 s97, 0\ns_cbranch_scc1 {l}")
    def mode_test(s):
        s.A(f"s_cmp_eq_u32 {sMode}, 0")
    def publish(s, stores, tested=False):
        A = s.A
        if isinstance(stores, str): stores = [stores]
        slow = A.newlabel("L_slow"); back = A.newlabel("L_back")
        if not tested: s.mode_test()
        A(f"s_cbranch_scc1 {slow}")
        for t in stores: A(t.format(pol=""))
        A.label(back)
        s.tail.append(f"{slow}:\n" + "".join("    " + l + "\n" for t in stores for l in t.format(pol="sc1").split("\n")) + f"    s_branch {back}")
    def poll(s, issue, nld, regs, tmp, depth, gap, primed=None):
        A = s.A
        for p in range(depth - 1):
            issue()
            if gap and not primed: A(f"s_sleep {gap}")
        if primed:
            A(f"s_waitcnt vmcnt({(depth-1)*nld})")
            primed()
        lab = A.newlabel("L_poll"); A.label(lab)
        issue()
        A(f"s_add_u32 {sCnt}, {sCnt}, 1")
        A(f"s_cmp_lt_u32 {sCnt}, {LIMIT}")
        A(f"s_cselect_b64 {sAlive}, -1, 0")
        A(f"s_waitcnt vmcnt({(depth-1)*nld})")
        regs = list(regs)
        if len(regs) % 2 == 0:
            A(f"v_max_u32 v{tmp}, v{regs[0]}, v{regs[1]}"); rest = regs[2:]
        else:
            A(f"v_max3_u32 v{tmp}, v{regs[0]}, v{regs[1]}, v{regs[2]}"); rest = regs[3:]
        for k in range(0, len(rest), 2):
            A(f"v_max3_u32 v{tmp}, v{tmp}, v{rest[k]}, v{rest[k+1]}")
        A(f"v_cmp_eq_u32 vcc, -1, v{tmp}")
        A(f"s_and_b64 vcc, vcc, {sAlive}")
        A(f"s_cbranch_scc1 {lab}")
    def probe(s, gx, add, op, va, vd):
        if s.copy >= 0 or s.race or 'p' in s.off: return
        A = s.A
        l = A.newlabel("L_np")
        A(f"s_sub_u32 {sT0}, {sW}, 1\ns_cmp_gt_u32 {sT0}, 1\ns_cbranch_scc1 {l}")
        A(f"s_xor_b32 {sT1}, {sG}, {gx}\ns_and_b32 {sT1}, {sT1}, 6\ns_add_u32 {sT1}, {sT1}, {sT0}\ns_lshl_b32 {sT1}, {sT1}, 13\ns_lshl_b32 {sT2}, {sI}, 8\ns_add_u32 {sT1}, {sT1}, {sT2}\ns_add_u32 {sT1}, {sT1}, {add}")
        A(f"s_waitcnt lgkmcnt(0)\ns_memtime s[100:101]\ns_load_dword {sT2}, s[16:17], {sT1}\ns_waitcnt lgkmcnt(0)\ns_memtime s[98:99]")
        A(f"s_lshl_b32 {sT0}, {sT0}, 2\ns_add_u32 {sT0}, {sT0}, {L_RACE}\nv_mov_b32 v{va}, {sT0}\ns_waitcnt lgkmcnt(0)\ns_sub_u32 s100, s98, s100\nv_mov_b32 v{vd}, s100")
        A(f"{op} v{va}, v{vd}")
        A.label(l)
    def pick_copy(s, r):
        if s.copy >= 0 or s.race: return
        s.A(f"v_readfirstlane_b32 {sT2}, v{r}\nv_readfirstlane_b32 {sT1}, v{r+1}\ns_nop 0\ns_cmp_lt_u32 {sT1}, {sT2}\ns_cselect_b32 {sCopy}, 8192, 0")
    def barrier(s):
        A = s.A
        if s.dry > 1 and s.inchain:
            l = A.newlabel("L_nb")
            A(f"s_mov_b64 vcc, {sDry}\ns_cbranch_vccnz {l}\ns_barrier")
            A.label(l)
        else: A("s_barrier")
    def drain(s):
        s.A("s_waitcnt vmcnt(0)")
    def tr_reads(s, tile, nsteps, base, addr="v8", step=256):
        for kk in range(nsteps):
            for hf in range(2):
                s.A.ds(f"ds_read_b64_tr_b16 {q2(base + 4*kk + 2*hf)}, {addr} offset:{tile + kk*step + hf*128}")
    def kv_load(s, kind, f):
        A = s.A
        if kind == "k":
            u, rem = f // 4, (f % 4) * 1024; loc = kloc(f); srd, vo, so = rK, "v6", sSK
        else:
            u, rem = f // 4, ((f % 4) >> 1) * 512 + (f & 1) * 128; loc = vloc(f); srd, vo, so = rV, "v7", sSV
        m0 = None
        if s.win and A.vm_issued - s.win >= 0: A.wait_vm(A.vm_issued - s.win)
        pol = s.kvpol if kind == "k" else s.vpol
        if loc[0] == "l":
            m0 = loc[1]*1024 - rem
            if s.m0cur != m0: A(f"s_add_u32 m0, {sKVl}, {m0}")
        if f % 4 == 0:
            A(f"s_add_u32 {so}, {sRot}, {u*4096}")
            A(f"s_and_b32 {so}, {so}, 0xffff")
        if loc[0] == "r":
            return A.vm(f"buffer_load_dwordx4 {loc[1]}, {vo}, {srd}, {so} offen offset:{rem} {pol}")
        s.m0cur = m0 if not s.ts else None
        return A.vm(f"buffer_load_dwordx4 {vo}, {srd}, {so} offen offset:{rem} {pol} lds")
    def ln_pre(s, tile, red, sg=None):
        A = s.A
        if tile is not None: s.tr_reads(tile, 4, 16)
        A("v_bfe_u32 v84, v0, 2, 2")
        A("v_cmp_eq_u32 vcc, 2, v84")
        A("v_mov_b32 v85, 0x3f803f80")
        A(f"s_mul_i32 {sT0}, {sW}, 192\ns_add_u32 {sT0}, {sT0}, {red}")
        A("v_cndmask_b32 v32, 0, v85, vcc")
        for k in range(33, 36): A(f"v_mov_b32 v{k}, v32")
        if sg is not None:
            A(f"s_mov_b64 exec, {mR8}")
            A(f"buffer_load_dwordx4 v[32:35], v9, {rWS}, {sg} offen sc1")
            A("s_mov_b64 exec, -1")
        A(f"v_lshlrev_b32 v84, 2, v0\nv_add_u32 v84, {sT0}, v84")
        A(f"s_lshl_b32 {sT0}, {sW}, 4\ns_add_u32 {sT0}, {sT0}, {red + 768}")
        A("v_bfe_u32 v85, v0, 2, 1\nv_lshrrev_b32 v86, 5, v0\nv_lshlrev_b32 v85, 3, v85\nv_lshl_add_u32 v85, v86, 2, v85")
        A(f"v_add_u32 v85, {sT0}, v85")
        A(f"v_lshlrev_b32 v86, 3, v0\nv_and_b32 v87, 56, v86\nv_add_u32 v86, {red}, v86\nv_add_u32 v87, {red + 128}, v87")
        A(f"v_and_b32 v88, 8, v0\nv_add_u32 v88, {red + 768}, v88")
    def ln_mma(s):
        A = s.A
        A.wait_ds0()
        A("v_mfma_f32_16x16x32_bf16 v[52:55], v[32:35], v[32:35], 0")
        for c in range(4):
            A(f"v_mfma_f32_16x16x32_bf16 {q4(36+4*c)}, v[32:35], {q4(16+4*c)}, 0")
        A("s_mov_b32 s100, 0x00100001\ns_mov_b32 s101, 0x11") if False else None
        A(f"v_mov_b32_dpp v56, v52 quad_perm:[0,0,0,0] {FULL}")
        for c in range(1, 4): A(f"v_add_f32_dpp v56, v{52+c}, v56 quad_perm:[{c},{c},{c},{c}] {FULL}")
        A("s_mov_b32 exec_lo, 0x00100001\ns_mov_b32 exec_hi, 0x11")
        A.ds("ds_write_b32 v85, v56")
        A("s_mov_b32 exec_lo, -1\ns_mov_b32 exec_hi, 0xffff")
        A("v_add_f32 v36, v36, v41\nv_add_f32 v46, v46, v51\nv_add_f32 v36, v36, v46")
        A.ds("ds_write_b32 v84, v36")
        A("s_mov_b64 exec, -1")
        A.wait_ds0()
        s.barrier()
    def ln_final(s):
        A = s.A
        A.ds("ds_read2_b64 v[72:75], v88 offset0:0 offset1:2")
        st = A.ds("ds_read2_b64 v[76:79], v88 offset0:4 offset1:6")
        A.ds("ds_read2_b64 v[64:67], v86 offset0:0 offset1:24")
        A.ds("ds_read2_b64 v[68:71], v86 offset0:48 offset1:72")
        A.ds("ds_read2_b64 v[80:83], v87 offset0:0 offset1:24")
        A.ds("ds_read2_b64 v[84:87], v87 offset0:48 offset1:72")
        A.wait_ds(st)
        A("v_pk_add_f32 v[72:73], v[72:73], v[74:75]\nv_pk_add_f32 v[76:77], v[76:77], v[78:79]")
        A("v_pk_add_f32 v[72:73], v[72:73], v[76:77]")
        A(f"v_mul_f32 v74, {f2u(1/512)}, v73")
        A(f"v_mul_f32 v72, {f2u(1/512)}, v72")
        A("v_fma_f32 v72, -v74, v74, v72")
        A("v_max_f32 v72, 0, v72")
        A(f"v_add_f32 v72, {f2u(1e-5)}, v72")
        A("v_rsq_f32 v76, v72")
        A.wait_ds0()
        A("v_pk_add_f32 v[64:65], v[64:65], v[66:67]\nv_pk_add_f32 v[68:69], v[68:69], v[70:71]")
        A("v_pk_add_f32 v[80:81], v[80:81], v[82:83]\nv_pk_add_f32 v[84:85], v[84:85], v[86:87]")
        A("v_pk_add_f32 v[64:65], v[64:65], v[68:69]\nv_pk_add_f32 v[80:81], v[80:81], v[84:85]")
        A("v_pk_fma_f32 v[64:65], v[80:81], v[74:75], v[64:65] op_sel_hi:[1,0,1] neg_lo:[1,0,0] neg_hi:[1,0,0]")
        A("v_pk_mul_f32 v[64:65], v[64:65], v[76:77] op_sel_hi:[1,0]")
    def ln_poll(s, sg):
        A = s.A
        if s.bar: s.barrier()
        if s.xdelay: A(f"s_sleep {s.xdelay}")
        A(f"s_mov_b64 exec, {mR8}")
        def issue(): A(f"buffer_load_dwordx4 v[32:35], v9, {rWS}, {sg} offen sc1")
        s.poll(issue, 1, range(32, 36), 63, s.dL, s.gapL)
        A("s_mov_b64 exec, -1")
    def pair_off(s, dst, tmp, shift):
        s.A(f"v_lshlrev_b32 v{dst}, 2, v0\nv_and_b32 v{dst}, 28, v{dst}\nv_bfe_u32 v{tmp}, v0, 3, 1\nv_lshl_add_u32 v{dst}, v{tmp}, {shift}, v{dst}")
    def att_prefetchK(s):
        A = s.A
        s.stg = {}
        for f in range(8):
            s.stg[("k", f)] = (64 + 4*f, A.ds(f"ds_read_b128 {q4(64+4*f)}, v1 offset:{f*1024}"))
        for k in range(16, 32): A(f"v_mov_b32 v{k}, 0")
        A(f"v_mov_b32 v63, {f2u(C_SCALE)}")
    def attention(s, p1=None):
        A = s.A
        stg = s.stg
        free = []
        def ldsread(kind, f, slotreg):
            slot = kloc(f)[1] if kind == "k" else vloc(f)[1]
            if p1: A.wait_vm(p1.ids[(kind, f)])
            stg[(kind, f)] = (slotreg, A.ds(f"ds_read_b128 {q4(slotreg)}, v1 offset:{slot*1024}"))
        def operand(kind, f, ahead=0):
            loc = kloc(f) if kind == "k" else vloc(f)
            if loc[0] == "r":
                if p1: A.wait_vm(p1.ids[(kind, f)])
                return loc[1]
            reg, did = stg[(kind, f)]
            if did >= A.ds_done:
                last = max([d for (k2, f2), (r2, d) in stg.items() if k2 == kind and f <= f2 <= f + ahead] )
                A.wait_ds(last)
            return q4(reg)
        def build_aq(t):
            for k in range(4):
                A(f"v_mov_b32_dpp v{16+4*t+k}, v{QREG+k} quad_perm:[0,1,2,3] row_mask:0xf bank_mask:{1<<t:#x}")
        order = [0, 1, 3, 4, 5, 2] + list(range(6, 16))
        D = lambda n: 48 + 4 * (n % 3)
        vq = list(range(13))
        def dppsum(n, c):
            u = order[n]
            if c == 0: A(f"v_mul_f32_dpp v{32+u}, v{D(n)}, v63 quad_perm:[0,0,0,0] {FULL}")
            else: A(f"v_fmac_f32_dpp v{32+u}, v{D(n)+c}, v63 quad_perm:[{c},{c},{c},{c}] {FULL}")
        build_aq(0); build_aq(1)
        extra = []
        for n, u in enumerate(order):
            for t in range(4):
                op = operand("k", 4*u + t, 7 if u == 0 else 3)
                A(f"v_mfma_f32_16x16x32_bf16 {q4(D(n))}, {q4(16+4*t)}, {op}, {'0' if t == 0 else q4(D(n))}")
                if n == 0 and t < 2: build_aq(t + 2)
                if n >= 2: dppsum(n - 2, t)
                if extra: extra.pop(0)()
            if n == 0:
                for k in range(4): extra.append(lambda k=k: ldsread("k", 8 + k, 64 + 4*k))
            if n == 1: free += [80, 84, 88, 92]
            if n == 5: free += [64, 68, 72, 76]
            if n >= 1 and free and vq:
                extra.append(lambda f=vq.pop(0), r=free.pop(0): ldsread("v", f, r))
            if n >= 3 and n % 2 == 1:
                a, b = order[n-3], order[n-2]
                if n == 3: extra.append(lambda a=a, b=b: A(f"v_max_f32 v60, v{32+a}, v{32+b}"))
                else: extra.append(lambda a=a, b=b: A(f"v_max3_f32 v60, v60, v{32+a}, v{32+b}"))
            if p1: p1.issue_more(1)
        if s.hook: s.hook(1)
        for c in range(4): dppsum(14, c)
        while extra: extra.pop(0)()
        A(f"v_max_f32 v60, v60, v{32+order[14]}")
        for c in range(4): dppsum(15, c)
        A(f"v_max_f32 v60, v60, v{32+order[15]}")
        A("v_lshrrev_b32 v56, 5, v0\nv_and_b32 v57, 1, v0")
        A(f"v_max_f32_dpp v60, v60, v60 row_ror:4 {FULL}")
        A("v_lshlrev_b32 v56, 9, v56\nv_lshl_add_u32 v56, v57, 8, v56")
        A(f"v_max_f32_dpp v60, v60, v60 row_ror:8 {FULL}")
        A("v_and_b32 v57, 28, v0\nv_lshl_add_u32 v56, v57, 2, v56")
        A("v_max_f32_dpp v60, v60, v60 row_bcast:15 row_mask:0xa bank_mask:0xf")
        A(f"s_lshl_b32 {sT1}, {sW}, 10\ns_add_u32 {sT1}, {sT1}, {L_SO}")
        A("v_max_f32_dpp v60, v60, v60 row_bcast:31 row_mask:0xc bank_mask:0xf")
        A(f"v_add_u32 v56, {sT1}, v56")
        A(f"v_readlane_b32 {sT0}, v60, 63")
        A("v_and_b32 v57, 48, v0\nv_and_b32 v58, 3, v0")
        A(f"v_mov_b32 v62, {sT0}")
        def expo(u, part):
            t = 28 + (u & 1)
            if part == 0: A(f"v_sub_f32 v{t}, v{32+u}, v62")
            elif part == 1: A(f"v_exp_f32 v{t}, v{t}")
            elif part == 2: A(f"v_cvt_pk_bf16_f32 v{32+u}, v{t}, v{t}")
            elif u == 0: A(f"v_mov_b32 v63, v{t}")
            else: A(f"v_add_f32 v63, v63, v{t}")
        B = lambda k: 16 + 4 * (k % 3)
        def band(k, c):
            u, sidx = k >> 1, k & 1
            n = (4*c - 2 - 8*sidx) % 16
            A(f"v_and_b32_dpp v{B(k)+c}, v{32+u}, v{2+c} row_ror:{n} {FULL}")
        expo(0, 0); expo(1, 0); expo(0, 1); expo(1, 1); expo(0, 2); expo(0, 3); expo(1, 2)
        for c in range(4): band(0, c)
        expo(1, 3)
        if s.hook: s.hook(2)
        for c in range(4): band(1, c)
        fill = []
        fill.append("v_lshl_add_u32 v57, v58, 2, v57")
        fill.append("v_bfe_u32 v58, v0, 2, 2")
        fill.append("v_add_u32 v57, v57, v58")
        fill.append(f"v_lshlrev_b32 v57, 2, v57")
        fill.append(f"v_add_u32 v57, {L_SO}, v57")
        fill.append(f"s_lshl_b32 {sT1}, {sW}, 3\ns_add_u32 {sT1}, {sT1}, {L_ST}\nv_mov_b32 v58, {sT1}")
        red = [f"v_add_f32_dpp v63, v63, v63 row_ror:4 {FULL}",
               f"v_add_f32_dpp v63, v63, v63 row_ror:8 {FULL}",
               "v_add_f32_dpp v63, v63, v63 row_bcast:15 row_mask:0xa bank_mask:0xf",
               "v_add_f32_dpp v63, v63, v63 row_bcast:31 row_mask:0xc bank_mask:0xf"]
        for u in range(16):
            if p1:
                p1.issue_upto(4*u + 3 + s.lag)
                if u == s.cpf: p1.code_prefetch()
                if u == 7 and 'a' not in s.off: p1.all_issue()
                if u == 14 and 'a' not in s.off: p1.all_eval()
                if u == 12: s.probe(2, 0, "ds_write_b32", 31, 59)
                if u == 13: s.probe(2, 128, "ds_min_u32", 31, 59)
            if u == (15 if p1 else 9) and s.opt:
                A(f"v_lshlrev_b32 v31, 7, v0\ns_mov_b64 exec, {m16}")
                A.vm(f"buffer_load_dword v61, v31, {rWS}, {sOg} offen sc1")
                A.vm(f"buffer_load_dword v61, off, {rWS}, {sSTg} sc1")
                A("s_mov_b64 exec, -1")
            for j in range(4):
                f = 4*u + j; k = 2*u + (j >> 1)
                op = operand("v", f, 3)
                o = 48 + 4*(j & 1)
                first = (u == 0 and j < 2)
                A(f"v_mfma_f32_16x16x32_bf16 {q4(o)}, {op}, {q4(B(k))}, {'0' if first else q4(o)}")
                if k + 2 < 32:
                    band(k + 2, 2*(j & 1)); band(k + 2, 2*(j & 1) + 1)
                if u + 2 < 16: expo(u + 2, j)
                elif red and (j % 2 == 0): A(red.pop(0))
                if u >= 14 or (u >= 4 and j == 0):
                    if fill: A(fill.pop(0))
                if vloc(f)[0] == "l":
                    free.append(stg[("v", f)][0])
                    if vq: ldsread("v", vq.pop(0), free.pop(0))
        assert not red and not fill, (red, fill)
    def build(s):
        A = s.A
        s.m0cur = None
        A.raw(HEADER.rstrip())
        A.raw("; @launch grid=(256,1,1) block=(256,1,1) lds=163840")
        A.raw('.amdgcn_target "amdgcn-amd-amdhsa--gfx950"\n.text')
        A.raw(f".globl {NAME}_kernel\n.p2align 8\n.type {NAME}_kernel,@function\n{NAME}_kernel:")
        if s.padbase == 0: A("s_memrealtime s[98:99]")
        if s.ts: A("s_memrealtime s[100:101]")
        A("s_load_dwordx16 s[56:71], s[0:1], 0")
        A("s_load_dwordx8 s[72:79], s[0:1], 64")
        A("s_load_dwordx2 s[80:81], s[0:1], 96")
        A("s_cmp_ge_u32 s2, 256\ns_cbranch_scc1 L_end")
        if s.ts: A("v_mov_b32 v12, 0")
        if s.cpf0:
            A("s_getpc_b64 s[20:21]")
            A.label("L_pc0")
            A.raw(f"    s_mov_b32 s22, L_code_end-{NAME}_kernel")
            A("s_and_b32 s20, s20, 0xffffff00")
            if s.cpfone:
                A("s_mov_b32 s23, 0x20000\nv_lshlrev_b32 v2, 4, v0\ns_lshr_b32 s24, s2, 3\ns_lshl_b32 s24, s24, 12")
                A.vm(f"buffer_load_dwordx4 v[100:103], v2, {rX}, s24 offen")
            else:
                A("s_mov_b32 s23, 0x20000\nv_lshlrev_b32 v2, 4, v0\ns_movk_i32 s24, 0x1000\ns_movk_i32 s25, 0x2000\ns_movk_i32 s26, 0x3000\ns_movk_i32 s27, 0x4000")
                for j, so in enumerate(("0", "s24", "s25", "s26", "s27")):
                    A.vm(f"buffer_load_dwordx4 {q4(100+4*j)}, v2, {rX}, {so} offen")
        A("v_lshrrev_b32 v1, 6, v0")
        A("v_and_b32 v0, 63, v0")
        A(f"v_readfirstlane_b32 {sW}, v1")
        A(f"s_xor_b32 {sB}, s2, {s.xi*8}")
        A(f"s_and_b32 {sG}, s2, 7\ns_lshr_b32 {sI}, {sB}, 3\ns_lshr_b32 {sHH}, {sB}, 6\ns_bfe_u32 {sB}, {sB}, 0x10005")
        A("v_and_b32 v16, 3, v0")
        A("v_bfe_u32 v17, v0, 2, 2")
        A("v_lshrrev_b32 v18, 4, v0")
        A("v_lshlrev_b32 v6, 4, v16\nv_lshl_add_u32 v6, v17, 8, v6\nv_lshl_add_u32 v6, v18, 6, v6")
        A("v_and_b32 v19, 7, v0\nv_bfe_u32 v20, v0, 3, 1")
        A("v_lshlrev_b32 v7, 4, v19\nv_lshl_add_u32 v7, v20, 8, v7\nv_lshl_add_u32 v7, v18, 10, v7")
        A(f"s_lshl_b32 s82, {sB}, 5\ns_lshl_b32 s83, {sG}, 2\ns_add_u32 s82, s82, s83\ns_add_u32 s82, s82, {sHH}\ns_lshl_b32 s82, s82, 20")
        if s.lin: A(f"s_lshl_b32 s82, {sG}, 3\ns_lshr_b32 s83, {sI}, 2\ns_add_u32 s82, s82, s83\ns_lshl_b32 s82, s82, 20")
        A(f"s_and_b32 s83, {sI}, 3\ns_lshl_b32 s83, s83, 18\ns_add_u32 s82, s82, s83\ns_lshl_b32 s83, {sW}, 16\ns_add_u32 s82, s82, s83")
        A(f"s_mul_i32 s84, {sG}, {s.rotm[0]}\ns_mul_i32 s83, {sI}, {s.rotm[1]}\ns_add_u32 s84, s84, s83\ns_mul_i32 s83, {sW}, {s.rotm[2]}\ns_add_u32 s84, s84, s83\ns_and_b32 s84, s84, 15\ns_lshl_b32 s84, s84, 12")
        A(f"s_mul_i32 s85, {sW}, {NLDS*1024}\ns_add_u32 s85, s85, {L_KV}")
        A("s_mov_b32 s10, 0x10000\ns_mov_b32 s11, 0x20000\ns_mov_b32 m0, s85")
        A("s_waitcnt lgkmcnt(0)")
        if s.padbase == 0: A("s_mov_b32 s97, s98")
        if s.padbase == 2: A("s_memrealtime s[98:99]\ns_waitcnt lgkmcnt(0)\ns_mov_b32 s97, s98")
        A("s_add_u32 s8, s58, s82\ns_addc_u32 s9, s59, 0")
        ids = {}
        for f in range(4):
            ids[("k", f)] = A.vm(f"buffer_load_dwordx4 v6, {rK}, s84 offen offset:{f*1024} {s.kvpol} lds")
        for f in range(4, s.k0n):
            u, rem = f // 4, (f % 4) * 1024
            if f % 4 == 0:
                A(f"s_add_u32 s86, s84, {u*4096}\ns_and_b32 s86, s86, 0xffff")
                if f < 12: A(f"s_add_u32 m0, s85, {u*4096}")
            if f < 12: ids[("k", f)] = A.vm(f"buffer_load_dwordx4 v6, {rK}, s86 offen offset:{rem} {s.kvpol} lds")
            else: ids[("k", f)] = A.vm(f"buffer_load_dwordx4 {kloc(f)[1]}, v6, {rK}, s86 offen offset:{rem} {s.kvpol}")
        assert s.k0n % 4 == 0
        s.late = max(s.late, s.k0n)
        A("s_add_u32 s12, s60, s82\ns_addc_u32 s13, s61, 0\ns_mov_b32 s14, 0x10000\ns_mov_b32 s15, 0x20000")
        if s.stouch:
            A(f"s_lshl_b32 s86, {sG}, 19\ns_mul_i32 s87, {sG}, {176*1024}")
            for p, off in ((12, "0"), (80, "0"), (56, "0"), (62, "0"), (62, "0x200000 - 4"), (70, "0"), (74, "0"), (76, "0"), (78, "0"),
                           (64, "s86"), (68, "0"), (72, "s87")):
                if off.startswith("0x2"):
                    A("s_mov_b32 s88, 0x300000"); off = "s88"
                A(f"s_load_dword s99, s[{p}:{p+1}], {off}")
        if s.touch:
            A(f"s_add_u32 m0, s85, {12*1024}")
            ids[("v", 0)] = A.vm(f"buffer_load_dwordx4 v7, {rV}, s84 offen {s.vpol} lds")
        def srd(k, lo, n):
            A(f"s_mov_b32 s{k}, s{lo}\ns_mov_b32 s{k+1}, s{lo+1}\ns_mov_b32 s{k+2}, {n}\ns_mov_b32 s{k+3}, 0x20000")
        s.wsbytes = WS_BYTES if not s.ts else TS_OFF + 0x40000
        srd(16, 80, s.wsbytes)
        srd(20, 56, 2048); srd(24, 62, 4 << 20); srd(28, 64, 4 << 20); srd(32, 68, 512*2752)
        A(f"s_mul_i32 s83, {sG}, {176*1024}\ns_add_u32 s36, s72, s83\ns_addc_u32 s37, s73, 0")
        A(f"s_sub_u32 s38, {1376*1024}, s83\ns_min_u32 s38, s38, {176*1024}\ns_mov_b32 s39, 0x20000")
        srd(40, 70, 2752); srd(44, 74, 1024); srd(48, 76, 2048); srd(52, 78, 256)
        for ch, r in (("q", 26), ("o", 30), ("1", 34), ("2", 38)):
            if ch in str(s.skipt): A(f"s_mov_b32 s{r}, 0")
        if 's' in s.off: A("s_mov_b32 s22, 0\ns_mov_b32 s42, 0\ns_mov_b32 s46, 0")
        A(f"s_mov_b32 {sRot}, s84\ns_mov_b32 {sKVl}, s85")
        A("s_mov_b32 s56, 0x00030003\ns_mov_b32 s57, 0x00030003\ns_mov_b32 s58, 0x00030003\ns_mov_b32 s59, 0")
        A("s_mov_b32 s60, 0xffff\ns_mov_b32 s61, 0\ns_mov_b32 s62, 0xff\ns_mov_b32 s63, 0")
        A("s_mov_b32 s66, 0x33333333\ns_mov_b32 s67, 0xcccccccc")
        A(f"s_mov_b32 {sCnt}, 0\ns_mov_b32 {sMode}, 0\ns_mov_b32 {sLayer}, 0")
        A(f"s_mul_i32 {sTau}, {sG}, 11\ns_add_u32 {sTau}, {sTau}, {sI}")
        if s.ts:
            s.nts = 1; s.tsnames = ["start"]
            A("v_writelane_b32 v12, s100, 0")
        s.m0cur = None
        for f in range(s.k0n, max(4, s.late)): ids[("k", f)] = s.kv_load("k", f)
        if (s.padend or s.padchain) and s.padbase == 1: A("s_memrealtime s[98:99]\ns_waitcnt lgkmcnt(0)\ns_mov_b32 s97, s98")
        A("v_mov_b32 v64, -1\nv_mov_b32 v65, -1\nv_mov_b32 v66, -1\nv_mov_b32 v67, -1")
        A(f"s_lshl_b32 {sT0}, s2, 11\nv_lshlrev_b32 v21, 4, v0")
        A(f"s_cmp_lg_u32 {sW}, {0 if 'c' not in s.off else 9}\ns_cbranch_scc1 L_noclr")
        A.vm(f"buffer_store_dwordx4 v[64:67], v21, {rWS}, {sT0} offen sc1", optional=True)
        A.vm(f"buffer_store_dwordx4 v[64:67], v21, {rWS}, {sT0} offen offset:1024 sc1", optional=True)
        A.label("L_noclr")
        A("v_and_b32 v27, 1, v0")
        A("v_lshrrev_b32 v83, 1, v0\nv_lshlrev_b32 v89, 4, v27")
        A("v_lshl_add_u32 v80, v83, 13, v89\nv_lshl_add_u32 v81, v83, 10, v89\nv_mul_u32_u24 v82, 2752, v83\nv_add_u32 v82, v82, v89")
        A(f"s_lshl_b32 {sT2}, {sI}, 5")
        wq_ids = []
        def tile_wq():
            A(f"s_lshl_b32 {sT2}, {sI}, 5")
            A(f"s_lshl_b32 {sT0}, {sW}, 20\ns_lshl_b32 {sT1}, {sG}, 10\ns_add_u32 {sT0}, {sT0}, {sT1}\ns_add_u32 {sT0}, {sT0}, {sT2}")
            A(f"s_lshl_b32 {sT1}, {sW}, 12")
            for j in range(4):
                A(f"s_add_u32 m0, {sT1}, {L_WQ + j*1024}")
                wq_ids.append(A.vm(f"buffer_load_dwordx4 v80, {rWQ}, {sT0} offen {s.wpol if s.qpol is None else s.qpol} lds"))
                A(f"s_add_u32 {sT0}, {sT0}, {32*8192}")
            s.m0cur = None
        if s.wqat < 4: tile_wq()
        A(f"s_lshl_b32 {sT0}, {sW}, 8")
        A(f"v_and_b32 v9, 0x1f0, v6\nv_and_b32 v28, 0x100, v9\nv_mad_u32_u24 v9, v28, 3, v9\nv_add_u32 v9, {sT0}, v9")
        A("s_mov_b32 s0, 0x00ff00ff\ns_mov_b32 s1, 0x00ff00ff")
        s.ln_pre(None, L_SO)
        A(f"s_mov_b64 exec, {mR8}")
        A.vm(f"buffer_load_dwordx4 v[32:35], v9, {rX}, 0 offen")
        A("s_mov_b64 exec, -1")
        A(f"s_lshl_b32 {sT0}, {sG}, 5\ns_add_u32 {sT0}, {sT0}, {sI}\ns_lshl_b32 {sOown}, {sT0}, 8")
        A(f"s_lshl_b32 {sOg}, {sG}, 13\ns_lshl_b32 {sT0}, {sW}, 11\ns_add_u32 {sOg}, {sOg}, {sT0}")
        A(f"s_lshl_b32 {sT0}, {sG}, 2\ns_add_u32 {sT1}, {sT0}, {sHH}\ns_add_u32 {sT0}, {sT0}, {sW}")
        A(f"s_lshl_b32 {sSTg}, {sT0}, 7\ns_add_u32 {sSTg}, {sSTg}, {ST}")
        A(f"s_and_b32 {sT3}, {sI}, 7\ns_lshl_b32 {sSTown}, {sT3}, 3\ns_lshl_b32 {sT0}, {sT1}, 7\ns_add_u32 {sSTown}, {sSTown}, {sT0}\ns_add_u32 {sSTown}, {sSTown}, {ST}")
        A(f"s_lshl_b32 {sAPg}, {sT3}, 10\ns_lshl_b32 {sT0}, {sHH}, 14\ns_add_u32 {sAPg}, {sAPg}, {sT0}\ns_add_u32 {sAPg}, {sAPg}, {AP}")
        A(f"s_lshl_b32 {sT0}, {sG}, 7\ns_add_u32 {sAPown}, {sAPg}, {sT0}")
        A(f"s_add_u32 {sYPg}, {sAPg}, {YP-AP}\ns_add_u32 {sYPown}, {sAPown}, {YP-AP}")
        A(f"s_lshl_b32 {sT0}, {sT1}, 9\ns_lshl_b32 {sT3}, {sT3}, 5\ns_add_u32 {sQown}, {sT0}, {sT3}\ns_lshl_b32 {sT3}, {sB}, 8\ns_add_u32 {sQg}, {sT0}, {sT3}")
        A(f"s_add_u32 {sQown}, {sQown}, {QB0}\ns_add_u32 {sQg}, {sQg}, {QB0}")
        A(f"s_lshl_b32 {sX1g}, {sG}, 11\ns_add_u32 {sX1g}, {sX1g}, {X1}\ns_add_u32 {sX1own}, {sX1g}, {sT2}")
        A(f"s_add_u32 {sX2g}, {sX1g}, {X2-X1}\ns_add_u32 {sX2own}, {sX1own}, {X2-X1}")
        A(f"s_lshl_b32 {sHg}, {sG}, 10\ns_add_u32 {sHg}, {sHg}, {HB}\ns_lshl_b32 {sHown}, {sI}, 6\ns_add_u32 {sHown}, {sHown}, {sHg}")
        if s.race: A(f"s_lshl_b32 {sCopy}, {sW}, 13")
        elif s.copy < 0: A(f"s_mov_b32 {sCopy}, 0")
        else: A(f"s_getreg_b32 {sCopy}, hwreg(HW_REG_XCC_ID)\ns_bfe_u32 {sCopy}, {sCopy}, 0x10002\ns_xor_b32 {sCopy}, {sCopy}, {s.copy}\ns_lshl_b32 {sCopy}, {sCopy}, 13")
        A("v_lshlrev_b32 v24, 2, v19\nv_lshl_add_u32 v25, v20, 8, v24\nv_lshl_add_u32 v26, v20, 10, v24")
        A(f"s_mov_b64 exec, {m16}")
        A(f"s_cmp_lg_u32 {sW}, {0 if 'c' not in s.off else 9}\ns_cbranch_scc1 L_noclr2")
        A("s_mov_b64 exec, 0x303")
        A("v_lshlrev_b32 v25, 4, v19\nv_lshl_add_u32 v25, v20, 8, v25")
        A.vm(f"buffer_store_dwordx4 v[64:67], v25, {rWS}, {sQown} offen sc1", optional=True)
        A(f"s_mov_b64 exec, {m16}")
        A.label("L_noclr2")
        A.vm(f"buffer_load_dword v13, v26, {rX}, {sT2} offen")
        A.vm(f"buffer_load_dword v15, v24, {rB2}, {sT2} offen")
        A(f"s_lshl_b32 {sT0}, {sTau}, 5")
        last = A.vm(f"buffer_load_dword v14, v24, {rB1}, {sT0} offen")
        A("s_mov_b64 exec, -1")
        def tile_wo():
            A(f"v_lshrrev_b32 v59, 1, v0\nv_lshlrev_b32 v59, 10, v59\nv_and_b32 v31, 1, v0\nv_lshl_add_u32 v59, v31, 4, v59")
            A(f"s_lshl_b32 {sT2}, {sI}, 5")
            A(f"s_lshl_b32 {sT0}, {sG}, 19\ns_lshl_b32 {sT1}, {sW}, 17\ns_add_u32 {sT0}, {sT0}, {sT1}\ns_add_u32 {sT0}, {sT0}, {sT2}")
            A(f"s_lshl_b32 {sT3}, {sW}, 12")
            for j in range(4):
                A(f"s_add_u32 m0, {sT3}, {L_WO + j*1024}")
                A.vm(f"buffer_load_dwordx4 v59, {rWO}, {sT0} offen {s.wpol} lds")
                A(f"s_add_u32 {sT0}, {sT0}, {32*1024}")
            s.m0cur = None
        def tile_w12():
            A(f"v_lshrrev_b32 v59, 1, v0\nv_and_b32 v31, 1, v0\nv_lshlrev_b32 v31, 4, v31\nv_mul_u32_u24 v30, 2752, v59\nv_add_u32 v30, v30, v31\nv_lshl_add_u32 v59, v59, 10, v31")
            A(f"s_lshl_b32 {sT2}, {sI}, 5\ns_lshl_b32 {sT1}, {sW}, 12")
            A(f"s_mul_i32 {sT0}, {sW}, {128*2752}\ns_lshl_b32 s100, {sTau}, 5\ns_add_u32 {sT0}, {sT0}, s100")
            A(f"s_cmp_lt_u32 {sI}, 11\ns_cselect_b32 s34, s34, 0")
            for j in range(4):
                A(f"s_add_u32 m0, {sT1}, {L_W1 + j*1024}")
                A.vm(f"buffer_load_dwordx4 v30, {rW1}, {sT0} offen {s.wpol} lds")
                A(f"s_add_u32 {sT0}, {sT0}, {32*2752}")
            l = A.newlabel("L_w2")
            A(f"s_cmp_eq_u32 {sW}, 3\ns_cbranch_scc1 {l}")
            A(f"s_lshl_b32 {sT0}, {sW}, 16\ns_add_u32 {sT0}, {sT0}, {sT2}\nv_add_u32 v59, {sT0}, v59\nv_add_u32 v31, 0x8000, v59")
            A(f"s_lshl_b32 {sT1}, {sW}, 11")
            for j in range(2):
                A(f"s_add_u32 m0, {sT1}, {L_W2 + j*1024}")
                A.vm(f"buffer_load_dwordx4 v{(59, 31)[j]}, {rW2}, 0 offen {s.wpol} lds", optional=True)
            A.label(l)
            s.m0cur = None
        def tiles():
            if s.wolast < 1: tile_wo()
            if s.wolast < 2: tile_w12()
        def pf_q():
            l = A.newlabel("L_pf")
            A(f"s_lshl_b32 {sT0}, {sI}, 2\ns_add_u32 {sT0}, {sT0}, {sW}\ns_sub_u32 {sT0}, {sT0}, 64\ns_cbranch_scc1 {l}")
            A(f"s_lshl_b32 {sT0}, {sT0}, 16\ns_lshl_b32 {sT1}, {sG}, 10\ns_add_u32 {sT0}, {sT0}, {sT1}")
            A("v_lshrrev_b32 v60, 3, v0\nv_and_b32 v61, 7, v0\nv_lshlrev_b32 v60, 13, v60\nv_lshl_add_u32 v60, v61, 7, v60")
            A.vm(f"buffer_load_dword v61, v60, {rWQ}, {sT0} offen", optional=True)
            A.label(l)
        def pf_o(va=60):
            A(f"s_lshl_b32 {sT0}, {sI}, 2\ns_add_u32 {sT0}, {sT0}, {sW}")
            A(f"s_lshl_b32 {sT0}, {sT0}, 12\ns_lshl_b32 {sT1}, {sG}, 19\ns_add_u32 {sT0}, {sT0}, {sT1}\nv_lshlrev_b32 v{va}, 7, v0\ns_mov_b32 exec_hi, 0")
            A.vm(f"buffer_load_dword v61, v{va}, {rWO}, {sT0} offen")
            A("s_mov_b32 exec_hi, -1")
        def pf_12():
            l = A.newlabel("L_pf"); l1 = A.newlabel("L_pf")
            A(f"s_lshl_b32 {sT0}, {sI}, 2\ns_add_u32 {sT0}, {sT0}, {sW}\ns_cmp_lt_u32 {sT0}, 64\ns_cbranch_scc1 {l}")
            A(f"s_cmp_ge_u32 {sT0}, 96\ns_cbranch_scc1 {l1}")
            A(f"s_sub_u32 {sT0}, {sT0}, 64\ns_lshl_b32 {sT0}, {sT0}, 13\nv_lshlrev_b32 v60, 7, v0\nv_add_u32 v60, {sT0}, v60")
            A.vm(f"buffer_load_dword v61, v60, {rW2}, 0 offen", optional=True)
            A(f"s_branch {l}")
            A.label(l1)
            A(f"s_sub_u32 {sT0}, {sT0}, 96\ns_mul_i32 {sT0}, {sT0}, {16*2752}\ns_mul_i32 {sT1}, {sG}, 352\ns_add_u32 {sT0}, {sT0}, {sT1}")
            A("v_lshrrev_b32 v60, 2, v0\nv_mul_u32_u24 v60, 2752, v60\nv_and_b32 v61, 3, v0\nv_lshlrev_b32 v61, 7, v61\nv_min_u32 v61, 348, v61\nv_add_u32 v60, v60, v61")
            A.vm(f"buffer_load_dword v61, v60, {rW1}, {sT0} offen", optional=True)
            A.label(l)
        if s.wpf & 1: pf_q()
        ev = {}
        def kload(f):
            ids[("k", f)] = s.kv_load("k", f)
            for fn in ev.pop(f, []): fn()
        if s.touch:
            A("s_mov_b64 exec, 1")
            A.vm(f"buffer_load_dword v100, off, {rOUT}, 0")
            if s.touch > 1:
                A(f"s_lshl_b32 {sT0}, {sG}, 19\ns_mov_b32 {sT1}, {511*2752}")
                A.vm(f"buffer_load_dword v101, off, {rWO}, {sT0}")
                A.vm(f"buffer_load_dword v102, off, {rW1}, 0")
                A.vm(f"buffer_load_dword v103, off, {rW1}, {sT1}")
                A.vm(f"buffer_load_dword v104, off, {rW2}, 0")
            A("s_mov_b64 exec, -1")
        s.m0cur = None
        st = {}
        def e_pers():
            A(f"v_lshlrev_b32 v1, 4, v0\nv_add_u32 v1, {sKVl}, v1")
            A(f"s_lshl_b32 {sT0}, {sW}, 12")
            A(f"v_lshlrev_b32 v8, 3, v16\nv_lshl_add_u32 v8, v17, 5, v8\nv_lshl_add_u32 v10, v18, 8, v8\nv_lshl_add_u32 v8, v18, 10, v8\nv_add_u32 v8, {sT0}, v8")
            A("v_add_u32 v28, v16, v18\nv_and_b32 v28, 3, v28\nv_and_b32 v11, 4, v0\nv_lshlrev_b32 v11, 3, v11\nv_lshl_add_u32 v11, v28, 3, v11")
            A("v_mov_b32 v29, 0xffff\nv_mov_b32 v30, 0xffff0000\nv_cmp_eq_u32 vcc, 1, v27\nv_cndmask_b32 v29, v29, v30, vcc")
            for c in range(4):
                A(f"v_cmp_eq_u32 vcc, {c}, v17\nv_cndmask_b32 v{2+c}, 0, v29, vcc")
        def e_s7():
            A.wait_vm(max(last, wq_ids[-1]))
            s.tr_reads(L_WQ, 4, 16)
            s.ln_mma()
            skip = A.newlabel("L_skip")
            A(f"s_cmp_lg_u32 {sW}, 0\ns_cbranch_scc1 {skip}")
            A("v_mov_b32 v90, v80\nv_mov_b32 v91, v81\nv_mov_b32 v92, v82")
            A(f"s_mov_b64 exec, {m16}")
            s.ln_final()
            s.pair_off(68, 69, 8)
            A("v_cvt_pk_bf16_f32 v64, v64, v65\nv_min_u32 v64, -2, v64")
            A.vm(f"buffer_store_dword v64, v68, {rWS}, {sQown} offen sc1", optional=True)
            A("s_mov_b64 exec, -1")
            A("v_mov_b32 v81, v91\nv_mov_b32 v82, v92")
            A.label(skip)
            A.ds_done = A.ds_issued
            s.stamp("q0pub")
        def e_arr():
            A(f"s_cmp_lg_u32 {sW}, 0\ns_cbranch_scc1 L_noarr")
            A(f"s_waitcnt vmcnt({A.vm_issued - 1 - last})")
            A(f"s_getreg_b32 {sT0}, hwreg(HW_REG_XCC_ID)\ns_and_b32 {sT0}, {sT0}, 15\ns_mul_i32 {sT1}, {sT0}, 6\ns_add_u32 {sT1}, {sT1}, 8")
            A(f"s_lshl_b64 s[100:101], 1, {sT1}\ns_cmp_lt_u32 {sT0}, 8\ns_cselect_b64 s[100:101], s[100:101], 0\ns_or_b32 s100, s100, 1")
            A(f"v_mov_b32 v98, s100\nv_mov_b32 v99, s101\ns_lshl_b32 {sT0}, {sG}, 5\nv_mov_b32 v97, {sT0}")
            A("s_mov_b64 exec, 1")
            A.vm(f"buffer_atomic_add_x2 v[98:99], v97, {rDBG}, 0 offen sc1", optional=True)
            A("s_mov_b64 exec, -1")
            A.label("L_noarr")
        def e_chk():
            A(f"s_lshl_b32 {sT0}, {sG}, 5\ns_mov_b64 exec, 1")
            st['chk'] = A.vm(f"buffer_load_dwordx2 v[94:95], off, {rDBG}, {sT0} sc1")
            A("s_mov_b64 exec, -1")
        def e_chk2():
            A.wait_vm(st['chk'])
            ok = A.newlabel("L_arr_ok"); lp = A.newlabel("L_arr")
            A.label(lp)
            A(f"v_readfirstlane_b32 s100, v94\nv_readfirstlane_b32 s101, v95\ns_nop 0\ns_and_b32 {sT0}, s100, 0xff\ns_cmp_eq_u32 {sT0}, 32")
            A(f"s_cbranch_scc1 {ok}")
            A(f"s_sleep 16\ns_lshl_b32 {sT0}, {sG}, 5\ns_mov_b64 exec, 1")
            A.vm(f"buffer_load_dwordx2 v[94:95], off, {rDBG}, {sT0} sc1", optional=True)
            A(f"s_mov_b64 exec, -1\ns_add_u32 {sCnt}, {sCnt}, 8\ns_cmp_lt_u32 {sCnt}, {LIMIT}\ns_waitcnt vmcnt(0)\ns_cbranch_scc1 {lp}")
            A.label(ok)
            A(f"s_getreg_b32 {sT0}, hwreg(HW_REG_XCC_ID)\ns_and_b32 {sT0}, {sT0}, 15\ns_mul_i32 {sT1}, {sT0}, 6\ns_add_u32 {sT1}, {sT1}, 8")
            A(f"s_lshr_b64 s[100:101], s[100:101], {sT1}\ns_and_b32 s100, s100, 63\ns_cmp_eq_u32 s100, 32\ns_cselect_b32 {sMode}, 1, 0")
            A(f"s_cmp_lt_u32 {sT0}, 8\ns_cselect_b32 {sMode}, {sMode}, 0")
            if s.forceG: A(f"s_mov_b32 {sMode}, 0")
        def all_issue():
            A(f"v_lshlrev_b32 v97, 5, v0\ns_mov_b64 exec, {m8}")
            st['all'] = A.vm(f"buffer_load_dword v98, v97, {rDBG}, 0 offen sc1")
            A("s_mov_b64 exec, -1")
        def all_eval():
            A.wait_vm(st['all'])
            ok = A.newlabel("L_all_ok"); lp = A.newlabel("L_all")
            A(f"s_mov_b64 exec, {m8}")
            A.label(lp)
            A("v_and_b32 v99, 0xff, v98\nv_cmp_ne_u32 vcc, 32, v99")
            A(f"s_cbranch_vccz {ok}")
            A(f"s_sleep 16")
            A.vm(f"buffer_load_dword v98, v97, {rDBG}, 0 offen sc1", optional=True)
            A(f"s_add_u32 {sCnt}, {sCnt}, 8\ns_cmp_lt_u32 {sCnt}, {LIMIT}\ns_waitcnt vmcnt(0)\ns_cbranch_scc1 {lp}")
            A.label(ok)
            A("s_mov_b64 exec, -1")
        def slot(fn, k):
            def g():
                l = A.newlabel("L_slot")
                A(f"s_and_b32 {sT0}, {sI}, 3\ns_cmp_lg_u32 {sT0}, {k}\ns_cbranch_scc1 {l}")
                n = A.vm_issued
                fn()
                A.vm_issued = n
                A.label(l)
                s.m0cur = None
                if k == 3 and fn is tile_wq: wq_ids.append(n)
            return g
        def e_dry():
            A(f"s_mov_b64 {sDry}, 0")
            A(f"s_cmp_lg_u32 {sW}, 3\ns_cbranch_scc1 L_dry_ret")
            A(f"s_mov_b64 {sDry}, -1")
            if s.dry > 1:
                if s.ts: A("s_mov_b32 s54, s28\ns_mov_b32 s55, s29")
                A(f"s_mov_b32 s18, 0\ns_mov_b32 {sW}, 0")
            A("s_branch L_att2")
            A.label("L_dry_back")
            if s.dry > 1:
                A(f"s_mov_b32 s18, {s.wsbytes}\ns_mov_b32 {sW}, 3")
                if s.ts: A(f"s_mov_b32 s28, s54\ns_mov_b32 s29, s55\ns_mov_b32 s30, {4<<20}\ns_mov_b32 s31, 0x20000\ns_mov_b32 s23, 0x20000")
            A(f"s_mov_b64 {sDry}, 0\ns_waitcnt lgkmcnt(0)")
            if s.prio: A("s_setprio 3")
            A.label("L_dry_ret")
            s.m0cur = None
        plan = [(max(15, s.late), e_pers), (s.arrat, e_arr), (s.chkat, e_chk), (s.s7at, e_s7), (s.chkat + 12, e_chk2)]
        if s.stag: plan += [(s.wqat + k * s.stag, slot(tile_wq, k)) for k in range(4)]
        else: plan.append((s.wqat, tile_wq))
        if s.stag2: plan += [(s.tilesat + k * s.stag2, slot(tiles, k)) for k in range(4)]
        else: plan.append((s.tilesat, tiles))
        if 'a' in s.off:
            plan = [p for p in plan if p[1] not in (e_arr, e_chk, e_chk2)]
            A(f"s_mov_b32 {sMode}, 1")
        if 'q' in s.off: plan = [p for p in plan if p[1] is not e_s7]
        if s.wpf & 2: plan.append((s.pfb, pf_12))
        if s.wpf & 4 and not s.wolast: plan.append((s.pfb, pf_o))
        if s.dry: plan.append((s.dryat, e_dry))
        if s.early_ts:
            def mkst(f, nm):
                def g():
                    A.wait_vm(ids[("k", f)]); s.stamp(nm); s.m0cur = None
                return g
            plan += [(14, mkst(0, "k0")), (20, mkst(8, "k8")), (30, mkst(18, "k18"))]
        for pos, f in plan:
            if pos >= 4: ev.setdefault(pos, []).append(f)
        for f in range(max(4, s.late), 64): kload(f)
        assert not ev
        class P1: pass
        p1 = P1(); p1.ids = ids; p1.next = 0
        if s.touch:
            p1.next = 1
            A(f"s_mov_b32 {sSV}, {sRot}")
        def issue_upto(n):
            while p1.next <= min(n, 63):
                ids[("v", p1.next)] = s.kv_load("v", p1.next); p1.next += 1
                if s.wpf & 4 and s.wolast and p1.next == s.pfo: pf_o(59)
                if s.prio and p1.next == s.priooff: A("s_setprio 0")
                if p1.next == s.wopos and s.wolast in (1, 2, 4): tile_wo()
                if p1.next == s.w12pos and s.wolast == 2: tile_w12()
        issue_upto(s.qi - 1)
        A("v_and_b32 v62, 0xf0, v6")
        qid = A.vm(f"buffer_load_dwordx4 {q4(QREG)}, v62, {rWS}, {sQg} offen sc1")
        def code_prefetch():
            A("s_getpc_b64 s[20:21]")
            A.label("L_pc")
            A.raw("    s_add_u32 s20, s20, L_chain-L_pc\n    s_addc_u32 s21, s21, 0\n    s_mov_b32 s22, L_code_end-L_chain\n    s_and_b32 s20, s20, 0xffffffc0")
            A(f"s_lshl_b32 {sT0}, {sI}, 2\ns_add_u32 {sT0}, {sT0}, {sW}\ns_lshl_b32 {sT0}, {sT0}, 12\nv_lshlrev_b32 v59, 6, v0")
            A.vm(f"buffer_load_dword v61, v59, {rX}, {sT0} offen")
        s.ncpf = 3
        p1.issue_upto = issue_upto; p1.code_prefetch = code_prefetch; p1.all_issue = all_issue; p1.all_eval = all_eval
        p1.issue_more = lambda k: issue_upto(p1.next + k - 1)
        issue_upto(s.qv - 1)
        A.wait_vm(qid)
        ok = A.newlabel("L_q_ok"); lp = A.newlabel("L_q")
        A.label(lp)
        A(f"v_max_u32 v63, v{QREG}, v{QREG+1}\nv_max3_u32 v63, v63, v{QREG+2}, v{QREG+3}\nv_cmp_eq_u32 vcc, -1, v63")
        A(f"s_cbranch_vccz {ok}")
        A.vm(f"buffer_load_dwordx4 {q4(QREG)}, v62, {rWS}, {sQg} offen sc1", optional=True)
        A(f"s_add_u32 {sCnt}, {sCnt}, 1\ns_cmp_lt_u32 {sCnt}, {LIMIT}\ns_waitcnt vmcnt(0)\ns_cbranch_scc1 {lp}")
        A.label(ok)
        A(f"s_sub_u32 {sQown}, {sQown}, {QB0 - QB}\ns_sub_u32 {sQg}, {sQg}, {QB0 - QB}")
        if 'x' in s.off:
            issue_upto(63); A.wait_vm0()
        s.stamp("q0got")
        s.att_prefetchK()
        s.attention(p1)
        if s.race:
            A(f"v_mov_b32 v28, -1\nv_mov_b32 v29, {L_RACE}")
            A.ds("ds_write_b32 v29, v28")
        def s1_writes():
            A("s_mov_b32 exec_lo, 0\ns_brev_b32 exec_hi, 1")
            A.ds("ds_write_b64 v58, v[62:63]")
            A(f"v_mov_b32 v26, {L_ST}\ns_mov_b64 exec, {mOV}")
            A.ds("ds_write_b128 v56, v[48:51]")
            A.ds("ds_write_b128 v56, v[52:55] offset:128")
            A("s_mov_b64 exec, -1")
        if not s.wolast: A.wait_vm0()
        if s.wolast >= 3:
            s.inchain = True; s.ts0 = s.nts
            if s.ts: A("s_memrealtime s[98:99]")
            s1_writes()
            if s.wolast == 3: tile_wo()
            tile_w12()
            s.ts_flush(True)
            if s.ts: A("s_waitcnt lgkmcnt(0)\ns_mov_b32 s20, s98")
            A("s_branch L_chain2")
        if s.padchain: s.spin_until(s.padchain)
        if s.busy and s.busyat == 0: s.busyloop()
        s.inchain = True; s.ts0 = s.nts
        s.ts_flush(True)
        A.label("L_chain")
        A.hist = [parse("v_mfma_f32_16x16x32_bf16 v[48:51], v[0:3], v[0:3], v[48:51]"), parse("v_add_f32 v63, v63, v63"),
                  parse("v_mfma_f32_16x16x32_bf16 v[52:55], v[0:3], v[0:3], v[52:55]"), parse("s_branch L_chain")]
        s.stamp("pvdone")
        s1_writes()
        A.label("L_chain2")
        A(f"v_mov_b32 v26, {L_ST}\nv_lshlrev_b32 v27, 2, v0\nv_mov_b32 v29, 0")
        A(f"s_cmp_lg_u32 {sW}, 0")
        A.wait_ds0()
        s.barrier()
        A("s_cbranch_scc1 L_S2w" if s.odelay else "s_cbranch_scc1 L_S2")
        if s.odelay: s.tail.append(f"L_S2w:\n    s_sleep {s.odelay}\n    s_branch L_S2")
        A.ds("ds_read_b128 v[64:67], v26")
        st2 = A.ds("ds_read_b128 v[68:71], v26 offset:16")
        for blk in range(8):
            A.ds(f"ds_read2st64_b32 {q2(72+2*blk)}, v57 offset0:{2*blk} offset1:{2*blk+1}")
        A.wait_ds(st2)
        A("v_max3_f32 v88, v64, v66, v68\nv_max_f32 v88, v88, v70")
        for w in range(4): A(f"v_sub_f32 v{64+2*w}, v{64+2*w}, v88")
        for w in range(4): A(f"v_exp_f32 v{64+2*w}, v{64+2*w}")
        s.mode_test()
        A.wait_ds0()
        for w in range(4): A(f"v_pk_add_f32 {q2(72+4*w)}, {q2(72+4*w)}, {q2(74+4*w)}")
        A("v_pk_mul_f32 v[90:91], v[72:73], v[64:65] op_sel_hi:[1,0]")
        A("v_mul_f32 v89, v64, v65")
        for w in range(1, 4):
            A(f"v_pk_fma_f32 v[90:91], {q2(72+4*w)}, {q2(64+2*w)}, v[90:91] op_sel_hi:[1,0,1]")
            A(f"v_fmac_f32 v89, v{64+2*w}, v{65+2*w}")
        A("v_cvt_pk_bf16_f32 v90, v90, v91\nv_min_u32 v88, -2, v88\nv_min_u32 v90, -2, v90\nv_min_u32 v89, -2, v89")
        s.publish([f"buffer_store_dword v90, v27, {rWS}, {sOown} offen {{pol}}",
                   f"s_mov_b64 exec, 1\nbuffer_store_dwordx2 v[88:89], v29, {rWS}, {sSTown} offen {{pol}}\ns_mov_b64 exec, -1"], tested=True)
        A.label("L_S2")
        A.ds_done = A.ds_issued
        s.stamp("opub")
        A("v_mov_b32 v72, 0\nv_mov_b32 v73, 0")
        A(f"s_lshl_b32 {sT0}, {sW}, 7\ns_add_u32 {sT0}, {sT0}, {RED2}")
        A(f"v_and_b32 v80, 15, v0\nv_lshrrev_b32 v81, 5, v0\nv_lshlrev_b32 v80, 2, v80\nv_lshl_add_u32 v80, v81, 6, v80\nv_add_u32 v80, {sT0}, v80")
        A(f"v_lshlrev_b32 v81, 4, v0\nv_add_u32 v82, {RED2}, v81\nv_mov_b32 v83, {L_RACE}")
        def issue():
            A(f"s_mov_b64 exec, {mR8}")
            A(f"buffer_load_dwordx2 v[72:73], v11, {rWS}, {sSTg} offen sc1")
            A("s_mov_b64 exec, -1")
            A(f"buffer_load_dwordx4 v[32:35], v6, {rWS}, {sOg} offen sc1")
            A(f"buffer_load_dwordx4 v[36:39], v6, {rWS}, {sOg} offen offset:1024 sc1")
        def primed():
            s.tr_reads(L_WO, 4, 16)
        s.poll(issue, 3, list(range(32, 40)) + [72, 73], 74, s.dL, s.gapL, primed)
        s.stamp("ogot")
        A.wait_ds0()
        side = [f"v_max_f32_dpp v74, v72, v72 quad_perm:[1,0,3,2] {FULL}",
                f"v_max_f32_dpp v74, v74, v74 quad_perm:[2,3,0,1] {FULL}",
                "v_sub_f32 v75, v72, v74", "v_exp_f32 v75, v75", "v_mul_f32 v76, v75, v73",
                f"v_add_f32_dpp v76, v76, v76 quad_perm:[1,0,3,2] {FULL}",
                f"v_add_f32_dpp v76, v76, v76 quad_perm:[2,3,0,1] {FULL}",
                "v_rcp_f32 v76, v76"]
        for b in range(2):
            for c in range(4):
                A(f"v_mfma_f32_16x16x32_bf16 {q4(40+16*b+4*c)}, {q4(32+4*b)}, {q4(16+4*c)}, 0")
                A(side.pop(0))
        A("v_mul_f32 v75, v75, v76")
        A("v_add_f32 v40, v40, v45\nv_add_f32 v50, v50, v55\nv_add_f32 v40, v40, v50")
        A(f"v_mul_f32_dpp v78, v75, v40 row_newbcast:0 {FULL}")
        A("v_add_f32 v56, v56, v61\nv_add_f32 v66, v66, v71\nv_add_f32 v56, v56, v66")
        A(f"v_mul_f32_dpp v79, v75, v56 row_newbcast:4 {FULL}")
        A("v_permlane32_swap_b32 v78, v79\nv_add_f32 v78, v78, v79\nv_mov_b32 v79, v78")
        A("v_permlane16_swap_b32 v78, v79\nv_add_f32 v78, v78, v79")
        A.ds("ds_write_b32 v80, v78")
        A(f"s_cmp_lg_u32 {sW}, 0")
        s.drain()
        A.wait_ds0()
        s.barrier()
        A("s_cbranch_scc1 L_S3")
        A(f"s_mov_b64 exec, {m8}")
        for w in range(4): A.ds(f"ds_read_b128 {q4(64+4*w)}, v82 offset:{128*w}")
        base = A.ds_issued
        if s.copy < 0 and not s.race: A.ds(f"ds_read_b64 v[84:85], v83")
        A(f"s_add_u32 {sT0}, {sAPown}, 8192")
        A.wait_ds(base - 3)
        A("v_pk_add_f32 v[64:65], v[64:65], v[68:69]\nv_pk_add_f32 v[66:67], v[66:67], v[70:71]")
        A.wait_ds(base - 1)
        A("v_pk_add_f32 v[72:73], v[72:73], v[76:77]\nv_pk_add_f32 v[74:75], v[74:75], v[78:79]")
        A("v_pk_add_f32 v[64:65], v[64:65], v[72:73]\nv_pk_add_f32 v[66:67], v[66:67], v[74:75]")
        for k in range(64, 68): A(f"v_min_u32 v{k}, -2, v{k}")
        A(f"buffer_store_dwordx4 v[64:67], v81, {rWS}, {sAPown} offen sc1")
        A(f"buffer_store_dwordx4 v[64:67], v81, {rWS}, {sT0} offen sc1")
        A("s_mov_b64 exec, -1")
        s.stamp("appub")
        if s.copy < 0 and not s.race:
            A.wait_ds0()
            s.pick_copy(84)
        A.label("L_S3")
        A.ds_done = A.ds_issued
        s.ln_pre(L_W1, RED4, sX1g)
        s.probe(4, 0, "ds_min_u32", 90, 91)
        if s.race: A(f"s_lshl_b32 {sT0}, {sLayer}, 1\ns_add_u32 {sT0}, {sT0}, {sW}\ns_cmp_lt_u32 {sT0}, 2\ns_cselect_b32 {sT0}, 0, {sW}\ns_cmp_lg_u32 {sT0}, 0")
        else: A(f"s_cmp_lg_u32 {sW}, 0")
        A("s_cbranch_scc1 L_S4")
        def xreduce(sg, addb2):
            A(f"s_mov_b64 exec, {m16}")
            A("v_lshlrev_b32 v82, 3, v0")
            A("v_lshlrev_b32 v80, 16, v13\nv_and_b32 v81, 0xffff0000, v13")
            if addb2:
                A("v_lshlrev_b32 v90, 16, v15\nv_and_b32 v91, 0xffff0000, v15")
                A("v_pk_add_f32 v[80:81], v[80:81], v[90:91]")
            s.pair_off(83, 89, 10)
            A(f"s_add_u32 {sT0}, {sg}, {sCopy}")
            def issue():
                for j in range(8): A(f"buffer_load_dwordx2 {q2(64+2*j)}, v82, {rWS}, {sT0} offen offset:{j*128} sc1")
            if s.gdelay: A(f"s_sleep {s.gdelay}")
            def total():
                A("v_pk_add_f32 v[90:91], v[64:65], v[66:67]\nv_pk_add_f32 v[92:93], v[68:69], v[70:71]")
                A("v_pk_add_f32 v[94:95], v[72:73], v[74:75]\nv_pk_add_f32 v[96:97], v[76:77], v[78:79]")
                A("v_pk_add_f32 v[90:91], v[90:91], v[92:93]\nv_pk_add_f32 v[94:95], v[94:95], v[96:97]")
                A("v_pk_add_f32 v[90:91], v[90:91], v[80:81]")
                A("v_pk_add_f32 v[90:91], v[90:91], v[94:95]")
            if not s.nanchk:
                s.poll(issue, 8, range(64, 80), 89, s.dG, s.gapG)
                total()
                s.mode_test()
            else:
                for p in range(s.dG - 1):
                    issue()
                    A(f"s_sleep {s.gapG}")
                lab = A.newlabel("L_poll"); ok = A.newlabel("L_ok"); slow = A.newlabel("L_exact")
                A.label(lab)
                issue()
                A(f"s_add_u32 {sCnt}, {sCnt}, 1")
                A(f"s_waitcnt vmcnt({(s.dG-1)*8})")
                total()
                s.mode_test()
                A("v_cmp_u_f32 vcc, v90, v91")
                A(f"s_cbranch_vccnz {slow}")
                A.label(ok)
                t = [f"{slow}:", "v_max_u32 v89, v64, v65"] + [f"v_max3_u32 v89, v89, v{k}, v{k+1}" for k in range(66, 80, 2)]
                t += ["v_cmp_eq_u32 vcc, -1, v89", f"s_cmp_lt_u32 {sCnt}, {LIMIT}", f"s_cselect_b64 {sAlive}, -1, 0", f"s_and_b64 vcc, vcc, {sAlive}", f"s_cbranch_scc1 {lab}", "s_waitcnt vmcnt(0)"]
                t += ["v_pk_add_f32 v[90:91], v[64:65], v[66:67]", "v_pk_add_f32 v[92:93], v[68:69], v[70:71]", "v_pk_add_f32 v[94:95], v[72:73], v[74:75]", "v_pk_add_f32 v[96:97], v[76:77], v[78:79]",
                      "v_pk_add_f32 v[90:91], v[90:91], v[92:93]", "v_pk_add_f32 v[94:95], v[94:95], v[96:97]", "v_pk_add_f32 v[90:91], v[90:91], v[80:81]", "v_pk_add_f32 v[90:91], v[90:91], v[94:95]"]
                t += [f"s_cmp_eq_u32 {sMode}, 0", f"s_branch {ok}"]
                s.tail.append("\n".join(l if l.endswith(":") else "    " + l for l in t))
            A("v_cvt_pk_bf16_f32 v13, v90, v91")
        xreduce(sAPg, False)
        A("v_min_u32 v90, -2, v13")
        s.publish(f"buffer_store_dword v90, v83, {rWS}, {sX1own} offen {{pol}}", tested=True)
        A("s_mov_b64 exec, -1")
        s.stamp("x1pub")
        if s.race:
            A(f"s_memtime s[100:101]\ns_cmp_eq_u32 {sW}, 0\ns_cbranch_scc1 L_S4")
            A(f"v_mov_b32 v91, {L_RACE}\ns_waitcnt lgkmcnt(0)\nv_mov_b32 v90, s100")
            A("ds_write_b32 v91, v90")
        A.label("L_S4")
        A(f"s_cmp_ge_u32 {sI}, 11\ns_cbranch_scc1 {'L_S5w' if s.hdelay else 'L_S5'}")
        if s.hdelay: s.tail.append(f"L_S5w:\n    s_sleep {s.hdelay}\n    s_branch L_S5")
        s.ln_poll(sX1g)
        s.stamp("xgot")
        s.ln_mma()
        A(f"s_cmp_lg_u32 {sW}, 0\ns_cbranch_scc1 L_S7")
        A(f"s_mov_b64 exec, {m16}")
        s.drain()
        s.ln_final_pre = None
        A(f"s_cmp_lt_u32 {sTau}, 86\ns_cselect_b32 {sT3}, -1, 0")
        k1 = -2.0 * math.sqrt(2.0 / math.pi) * math.log2(math.e)
        A("v_lshlrev_b32 v92, 16, v14\nv_and_b32 v93, 0xffff0000, v14")
        A(f"v_mov_b32 v94, {f2u(k1 * 0.044715)}\nv_mov_b32 v96, {f2u(k1)}")
        A("v_and_b32 v98, 3, v0\nv_lshlrev_b32 v98, 2, v98\nv_and_b32 v99, 4, v0\nv_lshl_add_u32 v98, v99, 3, v98\nv_and_b32 v99, 8, v0\nv_lshl_add_u32 v98, v99, 1, v98")
        s.ln_final()
        A("v_pk_add_f32 v[64:65], v[64:65], v[92:93]")
        A("v_pk_mul_f32 v[66:67], v[64:65], v[64:65]")
        A("v_pk_fma_f32 v[66:67], v[66:67], v[94:95], v[96:97] op_sel_hi:[1,0,0]")
        A("v_pk_mul_f32 v[66:67], v[66:67], v[64:65]")
        A("v_exp_f32 v66, v66\nv_exp_f32 v67, v67")
        A("v_add_f32 v66, 1.0, v66\nv_add_f32 v67, 1.0, v67")
        A("v_rcp_f32 v66, v66\nv_rcp_f32 v67, v67")
        s.mode_test()
        A("v_pk_mul_f32 v[64:65], v[64:65], v[66:67]")
        A(f"v_cvt_pk_bf16_f32 v64, v64, v65\nv_min_u32 v64, -2, v64\nv_and_b32 v64, {sT3}, v64")
        s.publish(f"buffer_store_dword v64, v98, {rWS}, {sHown} offen {{pol}}", tested=True)
        A("s_mov_b64 exec, -1")
        s.stamp("hpub")
        A.label("L_S5")
        A.ds_done = A.ds_issued
        A(f"s_cmp_lg_u32 {sW}, 0\ns_cbranch_scc1 L_S7")
        s.tr_reads(L_W2, 6, 16, "v10", 1024)
        for k in range(60, 64): A(f"v_mov_b32 v{k}, 0")
        A("v_and_b32 v86, 1, v0\nv_lshrrev_b32 v87, 4, v0\nv_lshlrev_b32 v87, 4, v87\nv_lshl_add_u32 v85, v86, 6, v87\nv_lshlrev_b32 v87, 1, v87\nv_lshl_add_u32 v84, v86, 4, v87")
        if s.race:
            A(f"v_mov_b32 v86, {L_RACE}")
            A.ds("ds_read_b32 v87, v86")
        elif s.copy < 0:
            A(f"v_mov_b32 v86, {L_RACE}")
            A.ds("ds_read_b64 v[98:99], v86")
        def issue():
            A(f"s_mov_b64 exec, {mAlo}")
            A(f"buffer_load_dwordx4 v[60:63], v84, {rWS}, {sHg} offen offset:640 sc1")
            A(f"s_mov_b64 exec, {mA}")
            for kk in range(5): A(f"buffer_load_dwordx4 {q4(40+4*kk)}, v84, {rWS}, {sHg} offen offset:{kk*128} sc1")
        s.poll(issue, 6, range(40, 64), 88, s.dL, s.gapL)
        A("s_mov_b64 exec, -1")
        A.wait_ds0()
        for kk in range(6):
            d = 90 if kk % 2 == 0 else 94
            A(f"v_mfma_f32_16x16x32_bf16 {q4(d)}, {q4(16+4*kk)}, {q4(40+4*kk)}, {'0' if kk < 2 else q4(d)}")
            if s.race and kk == 0: A(f"v_readfirstlane_b32 {sT1}, v87")
        A(f"s_add_u32 {sT0}, {sYPown}, 8192")
        A(f"s_mov_b64 exec, {mA}")
        s.drain()
        A("v_pk_add_f32 v[90:91], v[90:91], v[94:95]\nv_pk_add_f32 v[92:93], v[92:93], v[96:97]")
        for k in range(90, 94): A(f"v_min_u32 v{k}, -2, v{k}")
        A(f"buffer_store_dwordx4 v[90:93], v85, {rWS}, {sYPown} offen sc1")
        A(f"buffer_store_dwordx4 v[90:93], v85, {rWS}, {sT0} offen sc1")
        A("s_mov_b64 exec, -1")
        s.stamp("yppub")
        A(f"s_cmp_eq_u32 {sLayer}, 0\ns_cselect_b32 {sT0}, 0, {sG}\ns_cmp_lg_u32 {sT0}, 0\ns_cbranch_scc1 L_done")
        if s.race:
            A(f"s_cmp_eq_u32 {sT1}, -1\ns_cselect_b32 {sT1}, s100, {sT1}")
            A(f"s_sub_u32 {sT1}, {sT1}, s100\ns_cmp_lt_i32 {sT1}, 0\ns_cselect_b32 {sT1}, 8192, 0")
            A(f"s_cmp_eq_u32 {sLayer}, 0\ns_cselect_b32 {sCopy}, {sT1}, {sCopy}")
        s.pick_copy(98)
        s.ln_pre(L_WQ, RED4, sX2g)
        xreduce(sYPg, True)
        A(f"s_cmp_lg_u32 {sLayer}, 0\ns_cbranch_scc1 L_fin")
        A("v_min_u32 v90, -2, v13")
        s.publish(f"buffer_store_dword v90, v83, {rWS}, {sX2own} offen {{pol}}")
        A("s_mov_b64 exec, -1")
        s.stamp("x2pub")
        A("s_branch L_S7b")
        A.label("L_S7")
        A(f"s_cmp_lg_u32 {sLayer}, 0\ns_cbranch_scc1 L_done")
        s.drain()
        s.ln_pre(L_WQ, RED4, sX2g)
        A.label("L_S7b")
        s.ln_poll(sX2g)
        s.stamp("xgot")
        s.ln_mma()
        A(f"s_cmp_lg_u32 {sW}, 0\ns_cbranch_scc1 {'L_S8w' if s.qdelay else 'L_S8'}")
        if s.qdelay: s.tail.append(f"L_S8w:\n    s_sleep {s.qdelay}\n    s_branch L_S8")
        A(f"s_mov_b64 exec, {m16}")
        s.drain()
        s.pair_off(98, 99, 8)
        s.ln_final()
        s.mode_test()
        A("v_cvt_pk_bf16_f32 v64, v64, v65\nv_min_u32 v64, -2, v64")
        s.publish(f"buffer_store_dword v64, v98, {rWS}, {sQown} offen {{pol}}", tested=True)
        A("s_mov_b64 exec, -1")
        s.stamp("qpub")
        A.label("L_S8")
        A.ds_done = A.ds_issued
        s.ts_flush()
        if s.padq: s.spin_until(s.padq)
        s.att_prefetchK()
        A("v_and_b32 v62, 0xf0, v6")
        if s.dry > 1: A("s_cmp_lg_u32 s46, 0\ns_cbranch_scc1 L_dry_back")
        A(f"s_mov_b32 {sLayer}, 1")
        def issue(): A(f"buffer_load_dwordx4 {q4(QREG)}, v62, {rWS}, {sQg} offen sc1")
        s.poll(issue, 1, range(QREG, QREG + 4), 61, s.dQ, s.gapL)
        s.stamp("qgot")
        A(f"s_add_u32 s16, s16, {LSTRIDE}\ns_addc_u32 s17, s17, 0\ns_sub_u32 s18, s18, {LSTRIDE}")
        A.label("L_att2")
        s.attention(None)
        if s.dry == 1: A("s_cmp_lg_u32 s46, 0\ns_cbranch_scc1 L_dry_back")
        if s.pad2: s.spin_until(s.pad2)
        A("s_branch L_chain")
        A.label("L_fin")
        A(f"s_lshl_b32 {sT0}, {sI}, 5")
        A(f"buffer_store_dword v13, v83, {rOUT}, {sT0} offen")
        A.label("L_done")
        if s.padend: s.spin_until(s.padend)
        if s.busy and s.busyat == 1: s.busyloop()
        if s.padcyc:
            A("s_memtime s[98:99]\ns_waitcnt lgkmcnt(0)\ns_mov_b32 s97, s98")
            s.spin_until(s.padcyc, "s_memtime")
        if s.ts:
            A("s_mov_b64 exec, -1")
            s.stamp("end")
            s.ts_flush()
            A(f"v_writelane_b32 v12, {sCopy}, 63\nv_writelane_b32 v12, {sCnt}, 62")
            A(f"s_mul_i32 {sT0}, {sLayer}, {LSTRIDE}\ns_lshl_b32 {sT1}, s2, 2\ns_add_u32 {sT1}, {sT1}, {sW}\ns_lshl_b32 {sT1}, {sT1}, 8")
            A(f"s_add_u32 {sT1}, {sT1}, {TS_OFF}\ns_sub_u32 {sT1}, {sT1}, {sT0}\nv_lshlrev_b32 v16, 2, v0")
            A(f"buffer_store_dword v12, v16, {rWS}, {sT1} offen")
        A("L_end:\ns_endpgm")
        for t in s.tail: A.raw(t)
        A.raw("L_code_end:")
        A.raw('.section .rodata,"a"\n.p2align 6')
        A.raw(f".amdhsa_kernel {NAME}_kernel")
        A.raw("  .amdhsa_next_free_vgpr 512\n  .amdhsa_next_free_sgpr 102\n  .amdhsa_accum_offset 256\n  .amdhsa_group_segment_fixed_size 0")
        A.raw("  .amdhsa_kernarg_size 104\n  .amdhsa_user_sgpr_count 2\n  .amdhsa_user_sgpr_kernarg_segment_ptr 1\n  .amdhsa_system_sgpr_workgroup_id_x 1")
        A.raw("  .amdhsa_float_denorm_mode_32 3\n.end_amdhsa_kernel")
        return A.text()

if __name__ == "__main__":
    out = sys.argv[1] if len(sys.argv) > 1 else f"cdna_kernels/{NAME}.s"
    kw = {}
    for a in sys.argv[2:]:
        k, v = a.split("=")
        kw[k] = int(v) if v.lstrip("-").isdigit() else v
    g = Gen(**kw)
    open(out, "w").write(g.build())
    if kw.get("ts"): open(out + ".names", "w").write(" ".join(g.tsnames))
    print("wrote", out, "nops", g.A.nops)
```

```python
import sys, math, struct
from asmlib import Asm, parse

NAME = "interleave_layers__gqa_block_cached__dense_activation_gelu__decode"
HEADER = open("cdna_kernels/%s.s.ref" % NAME).read().split("; Override launch")[0]

L_WQ, L_WO, L_W1, L_W2 = 0, 16384, 32768, 49152
L_ACC = 55296
L_SO = 57344
L_KV = 61440
NLDS = 25
RED2 = L_ACC
RED4 = L_ACC + 512
L_ST = L_ACC + 1536
L_RACE = L_ACC + 1600
OB, AP, YP, ST, HB, X1, X2, QB = 0x0, 0x10000, 0x20000, 0x30000, 0x32000, 0x34000, 0x38000, 0x3c000
LSTRIDE = 0x40000
QB0 = 0x80000
WS_BYTES = 0x84000
TS_OFF = 0x100000

sW, sG, sI, sHH, sB = "s3", "s4", "s5", "s6", "s7"
rK, rV, rWS, rX, rWQ, rWO, rW1, rW2, rB1, rB2, rOUT, rDBG = [f"s[{k}:{k+3}]" for k in range(8, 56, 4)]
mA, mAlo, m16, m8, sAlive, mOV = [f"s[{k}:{k+1}]" for k in range(56, 68, 2)]
sCnt, sMode, sLayer, sRot, sKVl, sSK, sSV, sT0, sT1, sT2 = [f"s{k}" for k in range(68, 78)]
sOown, sSTown, sOg, sSTg, sAPown, sAPg, sX1own, sX1g, sHown, sHg, sYPown, sYPg, sX2own, sX2g, sQown, sQg = [f"s{k}" for k in range(78, 94)]
sCopy, sT3, sTau = "s94", "s95", "s96"
sDry = "s[46:47]"
mR8 = "s[0:1]"
sTS = "s[98:99]"
LIMIT = 100000
QREG = 96

C_SCALE = math.log2(math.e) / math.sqrt(128.0)
def f2u(x): return "0x%08x" % struct.unpack("<I", struct.pack("<f", x))[0]

def kloc(f):
    return ("l", f) if f < 12 else ("r", f"a[{4*(f-12)}:{4*(f-12)+3}]")
def vloc(f):
    if f < 13: return ("l", 12 + f)
    if f < 25: return ("r", f"a[{208+4*(f-13)}:{208+4*(f-13)+3}]")
    return ("r", f"v[{100+4*(f-25)}:{100+4*(f-25)+3}]")
def q4(b): return f"v[{b}:{b+3}]"
def q2(b): return f"v[{b}:{b+1}]"
FULL = "row_mask:0xf bank_mask:0xf"

class Gen:
    def __init__(s, kvpol="nt", wpol="", ts=False, lag=16, forceG=False, padend=0, padchain=0, padcyc=0,
                 dL=2, dG=3, gapL=1, gapG=2, race=0, copy=-1, cpf=6, bar=1, dQ=2, cpf0=1, padbase=1, padq=0, pad2=0, vpol=None, early=0, touch=1, s7at=41, tilesat=56, chkv=12, qv=24, wolast=1, gdelay=4, opt=1, rotm=(8, 1, 4), vrot=0, spread=0, sp0=8, sched=0, ssp=10, cpfone=1, skipt='', wqat=30, arrat=20, chkat=48, qi=12, stag=0, stag2=0, qpol=None, wopos=64, w12pos=64, stouch=0, late=0, dry=1, dryat=42, nanchk=1, odelay=4, q96=1, hdelay=0, qdelay=0, xdelay=0, busy=0, busyat=0, early_ts=0, prio=0, priooff=12, win=0, off='', lin=0, k0n=8, xi=0, wpf=3, pfb=36, pfo=44, ord8=0, sync=0, sync0=0, wobar=0, wou=14):
        s.A = Asm(); s.kvpol = kvpol; s.wpol = wpol; s.ts = ts; s.lag = lag; s.forceG = forceG
        s.padend = padend; s.padchain = padchain; s.padcyc = padcyc
        s.dL = dL; s.dG = dG; s.gapL = gapL; s.gapG = gapG; s.race = race; s.copy = copy; s.cpf = cpf; s.bar = bar; s.dQ = dQ; s.cpf0 = cpf0; s.padbase = padbase; s.padq = padq; s.pad2 = pad2; s.early = early; s.touch = touch; s.s7at = s7at; s.tilesat = tilesat; s.chkv = chkv; s.qv = qv; s.wolast = wolast; s.gdelay = gdelay; s.opt = opt; s.rotm = eval(rotm.replace('_', ',')) if isinstance(rotm, str) else rotm; s.vrot = vrot; s.spread = spread; s.sp0 = sp0; s.sched = sched; s.ssp = ssp; s.cpfone = cpfone; s.skipt = skipt; s.wqat = wqat; s.arrat = arrat; s.chkat = chkat; s.qi = qi; s.stag = stag; s.stag2 = stag2; s.qpol = qpol; s.wopos = wopos; s.w12pos = w12pos; s.stouch = stouch; s.late = late; s.dry = dry; s.dryat = dryat; s.nanchk = nanchk; s.odelay = odelay; s.q96 = q96; s.hdelay = hdelay; s.qdelay = qdelay; s.xdelay = xdelay; s.busy = busy; s.busyat = busyat; s.early_ts = early_ts; s.prio = prio; s.priooff = priooff; s.win = win; s.off = str(off); s.lin = lin; s.k0n = k0n; s.xi = xi; s.wpf = wpf; s.pfb = pfb; s.pfo = pfo; s.ord8 = ord8; s.sync = sync; s.sync0 = sync0; s.wobar = wobar; s.wou = wou; s.kvpol = s.kvpol.replace('+', ' '); s.wpol = s.wpol.replace('+', ' '); s.vpol = s.kvpol if vpol is None else vpol.replace('+', ' ')
        s.tail = []
        s.hook = None
        s.nts = 0; s.inchain = False; s.ts0 = 0
    def stamp(s, name):
        if not s.ts: return
        A = s.A
        k = s.nts; s.nts += 1
        s.tsnames = getattr(s, "tsnames", []) + [name]
        if s.inchain:
            j = k - s.ts0
            assert j < 14
            A(f"s_memrealtime s[{20+2*j}:{21+2*j}]")
            return
        A(f"s_memrealtime {sTS}")
        A(f"s_lshl_b32 s97, {sLayer}, 5\ns_add_u32 m0, s97, {k}")
        A("s_waitcnt lgkmcnt(0)")
        A.ds_done = A.ds_issued
        A(f"v_writelane_b32 v12, s98, m0")
    def ts_flush(s, zero_only=False):
        if not s.ts: return
        A = s.A
        if not zero_only:
            A("s_waitcnt lgkmcnt(0)")
            A.ds_done = A.ds_issued
            A(f"s_lshl_b32 s97, {sLayer}, 5")
            for j in range(14):
                A(f"s_add_u32 m0, s97, {s.ts0 + j}\nv_writelane_b32 v12, s{20+2*j}, m0")
        for j in range(14): A(f"s_mov_b32 s{20+2*j}, 0")
    def spin_until(s, n, clock="s_memrealtime", base="s97"):
        A = s.A; l = A.newlabel("L_spin")
        A.label(l)
        A(f"{clock} s[98:99]\ns_waitcnt lgkmcnt(0)\ns_sub_u32 s98, s98, {base}\ns_cmp_lt_u32 s98, {n}\ns_cbranch_scc1 {l}")
    def busyloop(s):
        A = s.A; l = A.newlabel("L_busy")
        A(f"s_mov_b32 s97, {s.busy}")
        A.label(l)
        for k in range(16): A("v_fma_f32 v61, v61, v61, v61")
        A(f"s_sub_u32 s97, s97, 1\ns_cmp_lg_u32 s97, 0\ns_cbranch_scc1 {l}")
    def mode_test(s):
        s.A(f"s_cmp_eq_u32 {sMode}, 0")
    def publish(s, stores, tested=False):
        A = s.A
        if isinstance(stores, str): stores = [stores]
        slow = A.newlabel("L_slow"); back = A.newlabel("L_back")
        if not tested: s.mode_test()
        A(f"s_cbranch_scc1 {slow}")
        for t in stores: A(t.format(pol=""))
        A.label(back)
        s.tail.append(f"{slow}:\n" + "".join("    " + l + "\n" for t in stores for l in t.format(pol="sc1").split("\n")) + f"    s_branch {back}")
    def poll(s, issue, nld, regs, tmp, depth, gap, primed=None):
        A = s.A
        for p in range(depth - 1):
            issue()
            if gap and not primed: A(f"s_sleep {gap}")
        if primed:
            A(f"s_waitcnt vmcnt({(depth-1)*nld})")
            primed()
        lab = A.newlabel("L_poll"); A.label(lab)
        issue()
        A(f"s_add_u32 {sCnt}, {sCnt}, 1")
        A(f"s_cmp_lt_u32 {sCnt}, {LIMIT}")
        A(f"s_cselect_b64 {sAlive}, -1, 0")
        A(f"s_waitcnt vmcnt({(depth-1)*nld})")
        regs = list(regs)
        if len(regs) % 2 == 0:
            A(f"v_max_u32 v{tmp}, v{regs[0]}, v{regs[1]}"); rest = regs[2:]
        else:
            A(f"v_max3_u32 v{tmp}, v{regs[0]}, v{regs[1]}, v{regs[2]}"); rest = regs[3:]
        for k in range(0, len(rest), 2):
            A(f"v_max3_u32 v{tmp}, v{tmp}, v{rest[k]}, v{rest[k+1]}")
        A(f"v_cmp_eq_u32 vcc, -1, v{tmp}")
        A(f"s_and_b64 vcc, vcc, {sAlive}")
        A(f"s_cbranch_scc1 {lab}")
    def probe(s, gx, add, op, va, vd):
        if s.copy >= 0 or s.race or 'p' in s.off: return
        A = s.A
        l = A.newlabel("L_np")
        A(f"s_sub_u32 {sT0}, {sW}, 1\ns_cmp_gt_u32 {sT0}, 1\ns_cbranch_scc1 {l}")
        A(f"s_xor_b32 {sT1}, {sG}, {gx}\ns_and_b32 {sT1}, {sT1}, 6\ns_add_u32 {sT1}, {sT1}, {sT0}\ns_lshl_b32 {sT1}, {sT1}, 13\ns_lshl_b32 {sT2}, {sI}, 8\ns_add_u32 {sT1}, {sT1}, {sT2}\ns_add_u32 {sT1}, {sT1}, {add}")
        A(f"s_waitcnt lgkmcnt(0)\ns_memtime s[100:101]\ns_load_dword {sT2}, s[16:17], {sT1}\ns_waitcnt lgkmcnt(0)\ns_memtime s[98:99]")
        A(f"s_lshl_b32 {sT0}, {sT0}, 2\ns_add_u32 {sT0}, {sT0}, {L_RACE}\nv_mov_b32 v{va}, {sT0}\ns_waitcnt lgkmcnt(0)\ns_sub_u32 s100, s98, s100\nv_mov_b32 v{vd}, s100")
        A(f"{op} v{va}, v{vd}")
        A.label(l)
    def pick_copy(s, r):
        if s.copy >= 0 or s.race: return
        s.A(f"v_readfirstlane_b32 {sT2}, v{r}\nv_readfirstlane_b32 {sT1}, v{r+1}\ns_nop 0\ns_cmp_lt_u32 {sT1}, {sT2}\ns_cselect_b32 {sCopy}, 8192, 0")
    def barrier(s):
        A = s.A
        if s.dry > 1 and s.inchain:
            l = A.newlabel("L_nb")
            A(f"s_mov_b64 vcc, {sDry}\ns_cbranch_vccnz {l}\ns_barrier")
            A.label(l)
        else: A("s_barrier")
    def drain(s):
        s.A("s_waitcnt vmcnt(0)")
    def tr_reads(s, tile, nsteps, base, addr="v8", step=256):
        for kk in range(nsteps):
            for hf in range(2):
                s.A.ds(f"ds_read_b64_tr_b16 {q2(base + 4*kk + 2*hf)}, {addr} offset:{tile + kk*step + hf*128}")
    def blk(s, u):
        return ((u >> 1) + 8 * (u & 1)) if s.ord8 else u
    def kv_load(s, kind, f):
        A = s.A
        if kind == "k":
            u, rem = f // 4, (f % 4) * 1024; loc = kloc(f); srd, vo, so = rK, "v6", sSK
        else:
            u, rem = f // 4, ((f % 4) >> 1) * 512 + (f & 1) * 128; loc = vloc(f); srd, vo, so = rV, "v7", sSV
        m0 = None
        pos = f if kind == "k" else 64 + f
        if s.sync and pos >= s.sync0 and pos % s.sync == 0: A("s_barrier")
        if s.win and A.vm_issued - s.win >= 0: A.wait_vm(A.vm_issued - s.win)
        pol = s.kvpol if kind == "k" else s.vpol
        if loc[0] == "l":
            m0 = loc[1]*1024 - rem
            if s.m0cur != m0: A(f"s_add_u32 m0, {sKVl}, {m0}")
        if f % 4 == 0:
            A(f"s_add_u32 {so}, {sRot}, {s.blk(u)*4096}")
            A(f"s_and_b32 {so}, {so}, 0xffff")
        if loc[0] == "r":
            return A.vm(f"buffer_load_dwordx4 {loc[1]}, {vo}, {srd}, {so} offen offset:{rem} {pol}")
        s.m0cur = m0 if not s.ts else None
        return A.vm(f"buffer_load_dwordx4 {vo}, {srd}, {so} offen offset:{rem} {pol} lds")
    def ln_pre(s, tile, red, sg=None):
        A = s.A
        if tile is not None: s.tr_reads(tile, 4, 16)
        A("v_bfe_u32 v84, v0, 2, 2")
        A("v_cmp_eq_u32 vcc, 2, v84")
        A("v_mov_b32 v85, 0x3f803f80")
        A(f"s_mul_i32 {sT0}, {sW}, 192\ns_add_u32 {sT0}, {sT0}, {red}")
        A("v_cndmask_b32 v32, 0, v85, vcc")
        for k in range(33, 36): A(f"v_mov_b32 v{k}, v32")
        if sg is not None:
            A(f"s_mov_b64 exec, {mR8}")
            A(f"buffer_load_dwordx4 v[32:35], v9, {rWS}, {sg} offen sc1")
            A("s_mov_b64 exec, -1")
        A(f"v_lshlrev_b32 v84, 2, v0\nv_add_u32 v84, {sT0}, v84")
        A(f"s_lshl_b32 {sT0}, {sW}, 4\ns_add_u32 {sT0}, {sT0}, {red + 768}")
        A("v_bfe_u32 v85, v0, 2, 1\nv_lshrrev_b32 v86, 5, v0\nv_lshlrev_b32 v85, 3, v85\nv_lshl_add_u32 v85, v86, 2, v85")
        A(f"v_add_u32 v85, {sT0}, v85")
        A(f"v_lshlrev_b32 v86, 3, v0\nv_and_b32 v87, 56, v86\nv_add_u32 v86, {red}, v86\nv_add_u32 v87, {red + 128}, v87")
        A(f"v_and_b32 v88, 8, v0\nv_add_u32 v88, {red + 768}, v88")
    def ln_mma(s):
        A = s.A
        A.wait_ds0()
        A("v_mfma_f32_16x16x32_bf16 v[52:55], v[32:35], v[32:35], 0")
        for c in range(4):
            A(f"v_mfma_f32_16x16x32_bf16 {q4(36+4*c)}, v[32:35], {q4(16+4*c)}, 0")
        A("s_mov_b32 s100, 0x00100001\ns_mov_b32 s101, 0x11") if False else None
        A(f"v_mov_b32_dpp v56, v52 quad_perm:[0,0,0,0] {FULL}")
        for c in range(1, 4): A(f"v_add_f32_dpp v56, v{52+c}, v56 quad_perm:[{c},{c},{c},{c}] {FULL}")
        A("s_mov_b32 exec_lo, 0x00100001\ns_mov_b32 exec_hi, 0x11")
        A.ds("ds_write_b32 v85, v56")
        A("s_mov_b32 exec_lo, -1\ns_mov_b32 exec_hi, 0xffff")
        A("v_add_f32 v36, v36, v41\nv_add_f32 v46, v46, v51\nv_add_f32 v36, v36, v46")
        A.ds("ds_write_b32 v84, v36")
        A("s_mov_b64 exec, -1")
        A.wait_ds0()
        s.barrier()
    def ln_final(s):
        A = s.A
        A.ds("ds_read2_b64 v[72:75], v88 offset0:0 offset1:2")
        st = A.ds("ds_read2_b64 v[76:79], v88 offset0:4 offset1:6")
        A.ds("ds_read2_b64 v[64:67], v86 offset0:0 offset1:24")
        A.ds("ds_read2_b64 v[68:71], v86 offset0:48 offset1:72")
        A.ds("ds_read2_b64 v[80:83], v87 offset0:0 offset1:24")
        A.ds("ds_read2_b64 v[84:87], v87 offset0:48 offset1:72")
        A.wait_ds(st)
        A("v_pk_add_f32 v[72:73], v[72:73], v[74:75]\nv_pk_add_f32 v[76:77], v[76:77], v[78:79]")
        A("v_pk_add_f32 v[72:73], v[72:73], v[76:77]")
        A(f"v_mul_f32 v74, {f2u(1/512)}, v73")
        A(f"v_mul_f32 v72, {f2u(1/512)}, v72")
        A("v_fma_f32 v72, -v74, v74, v72")
        A("v_max_f32 v72, 0, v72")
        A(f"v_add_f32 v72, {f2u(1e-5)}, v72")
        A("v_rsq_f32 v76, v72")
        A.wait_ds0()
        A("v_pk_add_f32 v[64:65], v[64:65], v[66:67]\nv_pk_add_f32 v[68:69], v[68:69], v[70:71]")
        A("v_pk_add_f32 v[80:81], v[80:81], v[82:83]\nv_pk_add_f32 v[84:85], v[84:85], v[86:87]")
        A("v_pk_add_f32 v[64:65], v[64:65], v[68:69]\nv_pk_add_f32 v[80:81], v[80:81], v[84:85]")
        A("v_pk_fma_f32 v[64:65], v[80:81], v[74:75], v[64:65] op_sel_hi:[1,0,1] neg_lo:[1,0,0] neg_hi:[1,0,0]")
        A("v_pk_mul_f32 v[64:65], v[64:65], v[76:77] op_sel_hi:[1,0]")
    def ln_poll(s, sg):
        A = s.A
        if s.bar: s.barrier()
        if s.xdelay: A(f"s_sleep {s.xdelay}")
        A(f"s_mov_b64 exec, {mR8}")
        def issue(): A(f"buffer_load_dwordx4 v[32:35], v9, {rWS}, {sg} offen sc1")
        s.poll(issue, 1, range(32, 36), 63, s.dL, s.gapL)
        A("s_mov_b64 exec, -1")
    def pair_off(s, dst, tmp, shift):
        s.A(f"v_lshlrev_b32 v{dst}, 2, v0\nv_and_b32 v{dst}, 28, v{dst}\nv_bfe_u32 v{tmp}, v0, 3, 1\nv_lshl_add_u32 v{dst}, v{tmp}, {shift}, v{dst}")
    def att_prefetchK(s):
        A = s.A
        s.stg = {}
        for f in range(8):
            s.stg[("k", f)] = (64 + 4*f, A.ds(f"ds_read_b128 {q4(64+4*f)}, v1 offset:{f*1024}"))
        for k in range(16, 32): A(f"v_mov_b32 v{k}, 0")
        A(f"v_mov_b32 v63, {f2u(C_SCALE)}")
    def attention(s, p1=None):
        A = s.A
        stg = s.stg
        free = []
        def ldsread(kind, f, slotreg):
            slot = kloc(f)[1] if kind == "k" else vloc(f)[1]
            if p1: A.wait_vm(p1.ids[(kind, f)])
            stg[(kind, f)] = (slotreg, A.ds(f"ds_read_b128 {q4(slotreg)}, v1 offset:{slot*1024}"))
        def operand(kind, f, ahead=0):
            loc = kloc(f) if kind == "k" else vloc(f)
            if loc[0] == "r":
                if p1: A.wait_vm(p1.ids[(kind, f)])
                return loc[1]
            reg, did = stg[(kind, f)]
            if did >= A.ds_done:
                last = max([d for (k2, f2), (r2, d) in stg.items() if k2 == kind and f <= f2 <= f + ahead] )
                A.wait_ds(last)
            return q4(reg)
        def build_aq(t):
            for k in range(4):
                A(f"v_mov_b32_dpp v{16+4*t+k}, v{QREG+k} quad_perm:[0,1,2,3] row_mask:0xf bank_mask:{1<<t:#x}")
        order = [0, 1, 3, 4, 5, 2] + list(range(6, 16))
        D = lambda n: 48 + 4 * (n % 3)
        vq = list(range(13))
        def dppsum(n, c):
            u = order[n]
            if c == 0: A(f"v_mul_f32_dpp v{32+u}, v{D(n)}, v63 quad_perm:[0,0,0,0] {FULL}")
            else: A(f"v_fmac_f32_dpp v{32+u}, v{D(n)+c}, v63 quad_perm:[{c},{c},{c},{c}] {FULL}")
        build_aq(0); build_aq(1)
        extra = []
        for n, u in enumerate(order):
            for t in range(4):
                op = operand("k", 4*u + t, 7 if u == 0 else 3)
                A(f"v_mfma_f32_16x16x32_bf16 {q4(D(n))}, {q4(16+4*t)}, {op}, {'0' if t == 0 else q4(D(n))}")
                if n == 0 and t < 2: build_aq(t + 2)
                if n >= 2: dppsum(n - 2, t)
                if extra: extra.pop(0)()
            if n == 0:
                for k in range(4): extra.append(lambda k=k: ldsread("k", 8 + k, 64 + 4*k))
            if n == 1: free += [80, 84, 88, 92]
            if n == 5: free += [64, 68, 72, 76]
            if n >= 1 and free and vq:
                extra.append(lambda f=vq.pop(0), r=free.pop(0): ldsread("v", f, r))
            if n >= 3 and n % 2 == 1:
                a, b = order[n-3], order[n-2]
                if n == 3: extra.append(lambda a=a, b=b: A(f"v_max_f32 v60, v{32+a}, v{32+b}"))
                else: extra.append(lambda a=a, b=b: A(f"v_max3_f32 v60, v60, v{32+a}, v{32+b}"))
            if p1: p1.issue_more(1)
        if s.hook: s.hook(1)
        for c in range(4): dppsum(14, c)
        while extra: extra.pop(0)()
        A(f"v_max_f32 v60, v60, v{32+order[14]}")
        for c in range(4): dppsum(15, c)
        A(f"v_max_f32 v60, v60, v{32+order[15]}")
        A("v_lshrrev_b32 v56, 5, v0\nv_and_b32 v57, 1, v0")
        A(f"v_max_f32_dpp v60, v60, v60 row_ror:4 {FULL}")
        A("v_lshlrev_b32 v56, 9, v56\nv_lshl_add_u32 v56, v57, 8, v56")
        A(f"v_max_f32_dpp v60, v60, v60 row_ror:8 {FULL}")
        A("v_and_b32 v57, 28, v0\nv_lshl_add_u32 v56, v57, 2, v56")
        A("v_max_f32_dpp v60, v60, v60 row_bcast:15 row_mask:0xa bank_mask:0xf")
        A(f"s_lshl_b32 {sT1}, {sW}, 10\ns_add_u32 {sT1}, {sT1}, {L_SO}")
        A("v_max_f32_dpp v60, v60, v60 row_bcast:31 row_mask:0xc bank_mask:0xf")
        A(f"v_add_u32 v56, {sT1}, v56")
        A(f"v_readlane_b32 {sT0}, v60, 63")
        A("v_and_b32 v57, 48, v0\nv_and_b32 v58, 3, v0")
        A(f"v_mov_b32 v62, {sT0}")
        def expo(u, part):
            t = 28 + (u & 1)
            if part == 0: A(f"v_sub_f32 v{t}, v{32+u}, v62")
            elif part == 1: A(f"v_exp_f32 v{t}, v{t}")
            elif part == 2: A(f"v_cvt_pk_bf16_f32 v{32+u}, v{t}, v{t}")
            elif u == 0: A(f"v_mov_b32 v63, v{t}")
            else: A(f"v_add_f32 v63, v63, v{t}")
        B = lambda k: 16 + 4 * (k % 3)
        def band(k, c):
            u, sidx = k >> 1, k & 1
            n = (4*c - 2 - 8*sidx) % 16
            A(f"v_and_b32_dpp v{B(k)+c}, v{32+u}, v{2+c} row_ror:{n} {FULL}")
        expo(0, 0); expo(1, 0); expo(0, 1); expo(1, 1); expo(0, 2); expo(0, 3); expo(1, 2)
        for c in range(4): band(0, c)
        expo(1, 3)
        if s.hook: s.hook(2)
        for c in range(4): band(1, c)
        fill = []
        fill.append("v_lshl_add_u32 v57, v58, 2, v57")
        fill.append("v_bfe_u32 v58, v0, 2, 2")
        fill.append("v_add_u32 v57, v57, v58")
        fill.append(f"v_lshlrev_b32 v57, 2, v57")
        fill.append(f"v_add_u32 v57, {L_SO}, v57")
        fill.append(f"s_lshl_b32 {sT1}, {sW}, 3\ns_add_u32 {sT1}, {sT1}, {L_ST}\nv_mov_b32 v58, {sT1}")
        red = [f"v_add_f32_dpp v63, v63, v63 row_ror:4 {FULL}",
               f"v_add_f32_dpp v63, v63, v63 row_ror:8 {FULL}",
               "v_add_f32_dpp v63, v63, v63 row_bcast:15 row_mask:0xa bank_mask:0xf",
               "v_add_f32_dpp v63, v63, v63 row_bcast:31 row_mask:0xc bank_mask:0xf"]
        for u in range(16):
            if p1:
                p1.issue_upto(4*u + 3 + s.lag)
                if u == s.cpf: p1.code_prefetch()
                if u == 7 and 'a' not in s.off: p1.all_issue()
                if u == 14 and 'a' not in s.off: p1.all_eval()
                if s.wolast == 6 and u == s.wou: p1.tile_wo()
                if u == 12: s.probe(2, 0, "ds_write_b32", 31, 59)
                if u == 13: s.probe(2, 128, "ds_min_u32", 31, 59)
            if u == (15 if p1 else 9) and s.opt:
                A(f"v_lshlrev_b32 v31, 7, v0\ns_mov_b64 exec, {m16}")
                A.vm(f"buffer_load_dword v61, v31, {rWS}, {sOg} offen sc1")
                A.vm(f"buffer_load_dword v61, off, {rWS}, {sSTg} sc1")
                A("s_mov_b64 exec, -1")
            for j in range(4):
                f = 4*u + j; k = 2*u + (j >> 1)
                op = operand("v", f, 3)
                o = 48 + 4*(j & 1)
                first = (u == 0 and j < 2)
                A(f"v_mfma_f32_16x16x32_bf16 {q4(o)}, {op}, {q4(B(k))}, {'0' if first else q4(o)}")
                if k + 2 < 32:
                    band(k + 2, 2*(j & 1)); band(k + 2, 2*(j & 1) + 1)
                if u + 2 < 16: expo(u + 2, j)
                elif red and (j % 2 == 0): A(red.pop(0))
                if u >= 14 or (u >= 4 and j == 0):
                    if fill: A(fill.pop(0))
                if vloc(f)[0] == "l":
                    free.append(stg[("v", f)][0])
                    if vq: ldsread("v", vq.pop(0), free.pop(0))
        assert not red and not fill, (red, fill)
    def build(s):
        A = s.A
        s.m0cur = None
        A.raw(HEADER.rstrip())
        A.raw("; @launch grid=(256,1,1) block=(256,1,1) lds=163840")
        A.raw('.amdgcn_target "amdgcn-amd-amdhsa--gfx950"\n.text')
        A.raw(f".globl {NAME}_kernel\n.p2align 8\n.type {NAME}_kernel,@function\n{NAME}_kernel:")
        if s.padbase == 0: A("s_memrealtime s[98:99]")
        if s.ts: A("s_memrealtime s[100:101]")
        A("s_load_dwordx16 s[56:71], s[0:1], 0")
        A("s_load_dwordx8 s[72:79], s[0:1], 64")
        A("s_load_dwordx2 s[80:81], s[0:1], 96")
        A("s_cmp_ge_u32 s2, 256\ns_cbranch_scc1 L_end")
        if s.ts: A("v_mov_b32 v12, 0")
        if s.cpf0:
            A("s_getpc_b64 s[20:21]")
            A.label("L_pc0")
            A.raw(f"    s_mov_b32 s22, L_code_end-{NAME}_kernel")
            A("s_and_b32 s20, s20, 0xffffff00")
            if s.cpfone:
                A("s_mov_b32 s23, 0x20000\nv_lshlrev_b32 v2, 4, v0\ns_lshr_b32 s24, s2, 3\ns_lshl_b32 s24, s24, 12")
                A.vm(f"buffer_load_dwordx4 v[100:103], v2, {rX}, s24 offen")
            else:
                A("s_mov_b32 s23, 0x20000\nv_lshlrev_b32 v2, 4, v0\ns_movk_i32 s24, 0x1000\ns_movk_i32 s25, 0x2000\ns_movk_i32 s26, 0x3000\ns_movk_i32 s27, 0x4000")
                for j, so in enumerate(("0", "s24", "s25", "s26", "s27")):
                    A.vm(f"buffer_load_dwordx4 {q4(100+4*j)}, v2, {rX}, {so} offen")
        A("v_lshrrev_b32 v1, 6, v0")
        A("v_and_b32 v0, 63, v0")
        A(f"v_readfirstlane_b32 {sW}, v1")
        A(f"s_xor_b32 {sB}, s2, {s.xi*8}")
        A(f"s_and_b32 {sG}, s2, 7\ns_lshr_b32 {sI}, {sB}, 3\ns_lshr_b32 {sHH}, {sB}, 6\ns_bfe_u32 {sB}, {sB}, 0x10005")
        A("v_and_b32 v16, 3, v0")
        A("v_bfe_u32 v17, v0, 2, 2")
        A("v_lshrrev_b32 v18, 4, v0")
        A("v_lshlrev_b32 v6, 4, v16\nv_lshl_add_u32 v6, v17, 8, v6\nv_lshl_add_u32 v6, v18, 6, v6")
        A("v_and_b32 v19, 7, v0\nv_bfe_u32 v20, v0, 3, 1")
        A("v_lshlrev_b32 v7, 4, v19\nv_lshl_add_u32 v7, v20, 8, v7\nv_lshl_add_u32 v7, v18, 10, v7")
        A(f"s_lshl_b32 s82, {sB}, 5\ns_lshl_b32 s83, {sG}, 2\ns_add_u32 s82, s82, s83\ns_add_u32 s82, s82, {sHH}\ns_lshl_b32 s82, s82, 20")
        if s.lin: A(f"s_lshl_b32 s82, {sG}, 3\ns_lshr_b32 s83, {sI}, 2\ns_add_u32 s82, s82, s83\ns_lshl_b32 s82, s82, 20")
        A(f"s_and_b32 s83, {sI}, 3\ns_lshl_b32 s83, s83, 18\ns_add_u32 s82, s82, s83\ns_lshl_b32 s83, {sW}, 16\ns_add_u32 s82, s82, s83")
        A(f"s_mul_i32 s84, {sG}, {s.rotm[0]}\ns_mul_i32 s83, {sI}, {s.rotm[1]}\ns_add_u32 s84, s84, s83\ns_mul_i32 s83, {sW}, {s.rotm[2]}\ns_add_u32 s84, s84, s83\ns_and_b32 s84, s84, 15\ns_lshl_b32 s84, s84, 12")
        A(f"s_mul_i32 s85, {sW}, {NLDS*1024}\ns_add_u32 s85, s85, {L_KV}")
        A("s_mov_b32 s10, 0x10000\ns_mov_b32 s11, 0x20000\ns_mov_b32 m0, s85")
        A("s_waitcnt lgkmcnt(0)")
        if s.padbase == 0: A("s_mov_b32 s97, s98")
        if s.padbase == 2: A("s_memrealtime s[98:99]\ns_waitcnt lgkmcnt(0)\ns_mov_b32 s97, s98")
        A("s_add_u32 s8, s58, s82\ns_addc_u32 s9, s59, 0")
        ids = {}
        for f in range(4):
            ids[("k", f)] = A.vm(f"buffer_load_dwordx4 v6, {rK}, s84 offen offset:{f*1024} {s.kvpol} lds")
        for f in range(4, s.k0n):
            u, rem = f // 4, (f % 4) * 1024
            if f % 4 == 0:
                A(f"s_add_u32 s86, s84, {s.blk(u)*4096}\ns_and_b32 s86, s86, 0xffff")
                if f < 12: A(f"s_add_u32 m0, s85, {u*4096}")
            if f < 12: ids[("k", f)] = A.vm(f"buffer_load_dwordx4 v6, {rK}, s86 offen offset:{rem} {s.kvpol} lds")
            else: ids[("k", f)] = A.vm(f"buffer_load_dwordx4 {kloc(f)[1]}, v6, {rK}, s86 offen offset:{rem} {s.kvpol}")
        assert s.k0n % 4 == 0
        s.late = max(s.late, s.k0n)
        A("s_add_u32 s12, s60, s82\ns_addc_u32 s13, s61, 0\ns_mov_b32 s14, 0x10000\ns_mov_b32 s15, 0x20000")
        if s.stouch:
            A(f"s_lshl_b32 s86, {sG}, 19\ns_mul_i32 s87, {sG}, {176*1024}")
            for p, off in ((12, "0"), (80, "0"), (56, "0"), (62, "0"), (62, "0x200000 - 4"), (70, "0"), (74, "0"), (76, "0"), (78, "0"),
                           (64, "s86"), (68, "0"), (72, "s87")):
                if off.startswith("0x2"):
                    A("s_mov_b32 s88, 0x300000"); off = "s88"
                A(f"s_load_dword s99, s[{p}:{p+1}], {off}")
        if s.touch:
            A(f"s_add_u32 m0, s85, {12*1024}")
            ids[("v", 0)] = A.vm(f"buffer_load_dwordx4 v7, {rV}, s84 offen {s.vpol} lds")
        def srd(k, lo, n):
            A(f"s_mov_b32 s{k}, s{lo}\ns_mov_b32 s{k+1}, s{lo+1}\ns_mov_b32 s{k+2}, {n}\ns_mov_b32 s{k+3}, 0x20000")
        s.wsbytes = WS_BYTES if not s.ts else TS_OFF + 0x40000
        srd(16, 80, s.wsbytes)
        srd(20, 56, 2048); srd(24, 62, 4 << 20); srd(28, 64, 4 << 20); srd(32, 68, 512*2752)
        A(f"s_mul_i32 s83, {sG}, {176*1024}\ns_add_u32 s36, s72, s83\ns_addc_u32 s37, s73, 0")
        A(f"s_sub_u32 s38, {1376*1024}, s83\ns_min_u32 s38, s38, {176*1024}\ns_mov_b32 s39, 0x20000")
        srd(40, 70, 2752); srd(44, 74, 1024); srd(48, 76, 2048); srd(52, 78, 256)
        for ch, r in (("q", 26), ("o", 30), ("1", 34), ("2", 38)):
            if ch in str(s.skipt): A(f"s_mov_b32 s{r}, 0")
        if 's' in s.off: A("s_mov_b32 s22, 0\ns_mov_b32 s42, 0\ns_mov_b32 s46, 0")
        A(f"s_mov_b32 {sRot}, s84\ns_mov_b32 {sKVl}, s85")
        A("s_mov_b32 s56, 0x00030003\ns_mov_b32 s57, 0x00030003\ns_mov_b32 s58, 0x00030003\ns_mov_b32 s59, 0")
        A("s_mov_b32 s60, 0xffff\ns_mov_b32 s61, 0\ns_mov_b32 s62, 0xff\ns_mov_b32 s63, 0")
        A("s_mov_b32 s66, 0x33333333\ns_mov_b32 s67, 0xcccccccc")
        A(f"s_mov_b32 {sCnt}, 0\ns_mov_b32 {sMode}, 0\ns_mov_b32 {sLayer}, 0")
        A(f"s_mul_i32 {sTau}, {sG}, 11\ns_add_u32 {sTau}, {sTau}, {sI}")
        if s.ts:
            s.nts = 1; s.tsnames = ["start"]
            A("v_writelane_b32 v12, s100, 0")
        s.m0cur = None
        for f in range(s.k0n, max(4, s.late)): ids[("k", f)] = s.kv_load("k", f)
        if (s.padend or s.padchain) and s.padbase == 1: A("s_memrealtime s[98:99]\ns_waitcnt lgkmcnt(0)\ns_mov_b32 s97, s98")
        A("v_mov_b32 v64, -1\nv_mov_b32 v65, -1\nv_mov_b32 v66, -1\nv_mov_b32 v67, -1")
        A(f"s_lshl_b32 {sT0}, s2, 11\nv_lshlrev_b32 v21, 4, v0")
        A(f"s_cmp_lg_u32 {sW}, {0 if 'c' not in s.off else 9}\ns_cbranch_scc1 L_noclr")
        A.vm(f"buffer_store_dwordx4 v[64:67], v21, {rWS}, {sT0} offen sc1", optional=True)
        A.vm(f"buffer_store_dwordx4 v[64:67], v21, {rWS}, {sT0} offen offset:1024 sc1", optional=True)
        A.label("L_noclr")
        A("v_and_b32 v27, 1, v0")
        A("v_lshrrev_b32 v83, 1, v0\nv_lshlrev_b32 v89, 4, v27")
        A("v_lshl_add_u32 v80, v83, 13, v89\nv_lshl_add_u32 v81, v83, 10, v89\nv_mul_u32_u24 v82, 2752, v83\nv_add_u32 v82, v82, v89")
        A(f"s_lshl_b32 {sT2}, {sI}, 5")
        wq_ids = []
        def tile_wq():
            A(f"s_lshl_b32 {sT2}, {sI}, 5")
            A(f"s_lshl_b32 {sT0}, {sW}, 20\ns_lshl_b32 {sT1}, {sG}, 10\ns_add_u32 {sT0}, {sT0}, {sT1}\ns_add_u32 {sT0}, {sT0}, {sT2}")
            A(f"s_lshl_b32 {sT1}, {sW}, 12")
            for j in range(4):
                A(f"s_add_u32 m0, {sT1}, {L_WQ + j*1024}")
                wq_ids.append(A.vm(f"buffer_load_dwordx4 v80, {rWQ}, {sT0} offen {s.wpol if s.qpol is None else s.qpol} lds"))
                A(f"s_add_u32 {sT0}, {sT0}, {32*8192}")
            s.m0cur = None
        if s.wqat < 4: tile_wq()
        A(f"s_lshl_b32 {sT0}, {sW}, 8")
        A(f"v_and_b32 v9, 0x1f0, v6\nv_and_b32 v28, 0x100, v9\nv_mad_u32_u24 v9, v28, 3, v9\nv_add_u32 v9, {sT0}, v9")
        A("s_mov_b32 s0, 0x00ff00ff\ns_mov_b32 s1, 0x00ff00ff")
        s.ln_pre(None, L_SO)
        A(f"s_mov_b64 exec, {mR8}")
        A.vm(f"buffer_load_dwordx4 v[32:35], v9, {rX}, 0 offen")
        A("s_mov_b64 exec, -1")
        A(f"s_lshl_b32 {sT0}, {sG}, 5\ns_add_u32 {sT0}, {sT0}, {sI}\ns_lshl_b32 {sOown}, {sT0}, 8")
        A(f"s_lshl_b32 {sOg}, {sG}, 13\ns_lshl_b32 {sT0}, {sW}, 11\ns_add_u32 {sOg}, {sOg}, {sT0}")
        A(f"s_lshl_b32 {sT0}, {sG}, 2\ns_add_u32 {sT1}, {sT0}, {sHH}\ns_add_u32 {sT0}, {sT0}, {sW}")
        A(f"s_lshl_b32 {sSTg}, {sT0}, 7\ns_add_u32 {sSTg}, {sSTg}, {ST}")
        A(f"s_and_b32 {sT3}, {sI}, 7\ns_lshl_b32 {sSTown}, {sT3}, 3\ns_lshl_b32 {sT0}, {sT1}, 7\ns_add_u32 {sSTown}, {sSTown}, {sT0}\ns_add_u32 {sSTown}, {sSTown}, {ST}")
        A(f"s_lshl_b32 {sAPg}, {sT3}, 10\ns_lshl_b32 {sT0}, {sHH}, 14\ns_add_u32 {sAPg}, {sAPg}, {sT0}\ns_add_u32 {sAPg}, {sAPg}, {AP}")
        A(f"s_lshl_b32 {sT0}, {sG}, 7\ns_add_u32 {sAPown}, {sAPg}, {sT0}")
        A(f"s_add_u32 {sYPg}, {sAPg}, {YP-AP}\ns_add_u32 {sYPown}, {sAPown}, {YP-AP}")
        A(f"s_lshl_b32 {sT0}, {sT1}, 9\ns_lshl_b32 {sT3}, {sT3}, 5\ns_add_u32 {sQown}, {sT0}, {sT3}\ns_lshl_b32 {sT3}, {sB}, 8\ns_add_u32 {sQg}, {sT0}, {sT3}")
        A(f"s_add_u32 {sQown}, {sQown}, {QB0}\ns_add_u32 {sQg}, {sQg}, {QB0}")
        A(f"s_lshl_b32 {sX1g}, {sG}, 11\ns_add_u32 {sX1g}, {sX1g}, {X1}\ns_add_u32 {sX1own}, {sX1g}, {sT2}")
        A(f"s_add_u32 {sX2g}, {sX1g}, {X2-X1}\ns_add_u32 {sX2own}, {sX1own}, {X2-X1}")
        A(f"s_lshl_b32 {sHg}, {sG}, 10\ns_add_u32 {sHg}, {sHg}, {HB}\ns_lshl_b32 {sHown}, {sI}, 6\ns_add_u32 {sHown}, {sHown}, {sHg}")
        if s.race: A(f"s_lshl_b32 {sCopy}, {sW}, 13")
        elif s.copy < 0: A(f"s_mov_b32 {sCopy}, 0")
        else: A(f"s_getreg_b32 {sCopy}, hwreg(HW_REG_XCC_ID)\ns_bfe_u32 {sCopy}, {sCopy}, 0x10002\ns_xor_b32 {sCopy}, {sCopy}, {s.copy}\ns_lshl_b32 {sCopy}, {sCopy}, 13")
        A("v_lshlrev_b32 v24, 2, v19\nv_lshl_add_u32 v25, v20, 8, v24\nv_lshl_add_u32 v26, v20, 10, v24")
        A(f"s_mov_b64 exec, {m16}")
        A(f"s_cmp_lg_u32 {sW}, {0 if 'c' not in s.off else 9}\ns_cbranch_scc1 L_noclr2")
        A("s_mov_b64 exec, 0x303")
        A("v_lshlrev_b32 v25, 4, v19\nv_lshl_add_u32 v25, v20, 8, v25")
        A.vm(f"buffer_store_dwordx4 v[64:67], v25, {rWS}, {sQown} offen sc1", optional=True)
        A(f"s_mov_b64 exec, {m16}")
        A.label("L_noclr2")
        A.vm(f"buffer_load_dword v13, v26, {rX}, {sT2} offen")
        A.vm(f"buffer_load_dword v15, v24, {rB2}, {sT2} offen")
        A(f"s_lshl_b32 {sT0}, {sTau}, 5")
        last = A.vm(f"buffer_load_dword v14, v24, {rB1}, {sT0} offen")
        A("s_mov_b64 exec, -1")
        def tile_wo():
            A(f"v_lshrrev_b32 v59, 1, v0\nv_lshlrev_b32 v59, 10, v59\nv_and_b32 v31, 1, v0\nv_lshl_add_u32 v59, v31, 4, v59")
            A(f"s_lshl_b32 {sT2}, {sI}, 5")
            A(f"s_lshl_b32 {sT0}, {sG}, 19\ns_lshl_b32 {sT1}, {sW}, 17\ns_add_u32 {sT0}, {sT0}, {sT1}\ns_add_u32 {sT0}, {sT0}, {sT2}")
            A(f"s_lshl_b32 {sT3}, {sW}, 12")
            for j in range(4):
                A(f"s_add_u32 m0, {sT3}, {L_WO + j*1024}")
                A.vm(f"buffer_load_dwordx4 v59, {rWO}, {sT0} offen {s.wpol} lds")
                A(f"s_add_u32 {sT0}, {sT0}, {32*1024}")
            s.m0cur = None
        def tile_w12():
            A(f"v_lshrrev_b32 v59, 1, v0\nv_and_b32 v31, 1, v0\nv_lshlrev_b32 v31, 4, v31\nv_mul_u32_u24 v30, 2752, v59\nv_add_u32 v30, v30, v31\nv_lshl_add_u32 v59, v59, 10, v31")
            A(f"s_lshl_b32 {sT2}, {sI}, 5\ns_lshl_b32 {sT1}, {sW}, 12")
            A(f"s_mul_i32 {sT0}, {sW}, {128*2752}\ns_lshl_b32 s100, {sTau}, 5\ns_add_u32 {sT0}, {sT0}, s100")
            A(f"s_cmp_lt_u32 {sI}, 11\ns_cselect_b32 s34, s34, 0")
            for j in range(4):
                A(f"s_add_u32 m0, {sT1}, {L_W1 + j*1024}")
                A.vm(f"buffer_load_dwordx4 v30, {rW1}, {sT0} offen {s.wpol} lds")
                A(f"s_add_u32 {sT0}, {sT0}, {32*2752}")
            l = A.newlabel("L_w2")
            A(f"s_cmp_eq_u32 {sW}, 3\ns_cbranch_scc1 {l}")
            A(f"s_lshl_b32 {sT0}, {sW}, 16\ns_add_u32 {sT0}, {sT0}, {sT2}\nv_add_u32 v59, {sT0}, v59\nv_add_u32 v31, 0x8000, v59")
            A(f"s_lshl_b32 {sT1}, {sW}, 11")
            for j in range(2):
                A(f"s_add_u32 m0, {sT1}, {L_W2 + j*1024}")
                A.vm(f"buffer_load_dwordx4 v{(59, 31)[j]}, {rW2}, 0 offen {s.wpol} lds", optional=True)
            A.label(l)
            s.m0cur = None
        def tiles():
            if s.wolast < 1: tile_wo()
            if s.wolast < 2 or s.wolast >= 5: tile_w12()
        def pf_q():
            l = A.newlabel("L_pf")
            A(f"s_lshl_b32 {sT0}, {sI}, 2\ns_add_u32 {sT0}, {sT0}, {sW}\ns_sub_u32 {sT0}, {sT0}, 64\ns_cbranch_scc1 {l}")
            A(f"s_lshl_b32 {sT0}, {sT0}, 16\ns_lshl_b32 {sT1}, {sG}, 10\ns_add_u32 {sT0}, {sT0}, {sT1}")
            A("v_lshrrev_b32 v60, 3, v0\nv_and_b32 v61, 7, v0\nv_lshlrev_b32 v60, 13, v60\nv_lshl_add_u32 v60, v61, 7, v60")
            A.vm(f"buffer_load_dword v61, v60, {rWQ}, {sT0} offen", optional=True)
            A.label(l)
        def pf_o(va=60):
            A(f"s_lshl_b32 {sT0}, {sI}, 2\ns_add_u32 {sT0}, {sT0}, {sW}")
            A(f"s_lshl_b32 {sT0}, {sT0}, 12\ns_lshl_b32 {sT1}, {sG}, 19\ns_add_u32 {sT0}, {sT0}, {sT1}\nv_lshlrev_b32 v{va}, 7, v0\ns_mov_b32 exec_hi, 0")
            A.vm(f"buffer_load_dword v61, v{va}, {rWO}, {sT0} offen")
            A("s_mov_b32 exec_hi, -1")
        def pf_12():
            l = A.newlabel("L_pf"); l1 = A.newlabel("L_pf")
            A(f"s_lshl_b32 {sT0}, {sI}, 2\ns_add_u32 {sT0}, {sT0}, {sW}\ns_cmp_lt_u32 {sT0}, 64\ns_cbranch_scc1 {l}")
            A(f"s_cmp_ge_u32 {sT0}, 96\ns_cbranch_scc1 {l1}")
            A(f"s_sub_u32 {sT0}, {sT0}, 64\ns_lshl_b32 {sT0}, {sT0}, 13\nv_lshlrev_b32 v60, 7, v0\nv_add_u32 v60, {sT0}, v60")
            A.vm(f"buffer_load_dword v61, v60, {rW2}, 0 offen", optional=True)
            A(f"s_branch {l}")
            A.label(l1)
            A(f"s_sub_u32 {sT0}, {sT0}, 96\ns_mul_i32 {sT0}, {sT0}, {16*2752}\ns_mul_i32 {sT1}, {sG}, 352\ns_add_u32 {sT0}, {sT0}, {sT1}")
            A("v_lshrrev_b32 v60, 2, v0\nv_mul_u32_u24 v60, 2752, v60\nv_and_b32 v61, 3, v0\nv_lshlrev_b32 v61, 7, v61\nv_min_u32 v61, 348, v61\nv_add_u32 v60, v60, v61")
            A.vm(f"buffer_load_dword v61, v60, {rW1}, {sT0} offen", optional=True)
            A.label(l)
        if s.wpf & 1: pf_q()
        if s.padbase == 0 and s.padend and s.padend % 10 == 1:
            A("s_not_b32 s98, s97\nv_mov_b32 v64, s98\ns_mov_b64 exec, 1")
            A.vm(f"buffer_atomic_umax v64, off, {rDBG}, 0 offset:16 sc1")
            A("s_mov_b64 exec, -1")
        ev = {}
        def kload(f):
            ids[("k", f)] = s.kv_load("k", f)
            for fn in ev.pop(f, []): fn()
        if s.touch:
            A("s_mov_b64 exec, 1")
            A.vm(f"buffer_load_dword v100, off, {rOUT}, 0")
            if s.touch > 1:
                A(f"s_lshl_b32 {sT0}, {sG}, 19\ns_mov_b32 {sT1}, {511*2752}")
                A.vm(f"buffer_load_dword v101, off, {rWO}, {sT0}")
                A.vm(f"buffer_load_dword v102, off, {rW1}, 0")
                A.vm(f"buffer_load_dword v103, off, {rW1}, {sT1}")
                A.vm(f"buffer_load_dword v104, off, {rW2}, 0")
            A("s_mov_b64 exec, -1")
        s.m0cur = None
        st = {}
        def e_pers():
            A(f"v_lshlrev_b32 v1, 4, v0\nv_add_u32 v1, {sKVl}, v1")
            A(f"s_lshl_b32 {sT0}, {sW}, 12")
            A(f"v_lshlrev_b32 v8, 3, v16\nv_lshl_add_u32 v8, v17, 5, v8\nv_lshl_add_u32 v10, v18, 8, v8\nv_lshl_add_u32 v8, v18, 10, v8\nv_add_u32 v8, {sT0}, v8")
            A("v_add_u32 v28, v16, v18\nv_and_b32 v28, 3, v28\nv_and_b32 v11, 4, v0\nv_lshlrev_b32 v11, 3, v11\nv_lshl_add_u32 v11, v28, 3, v11")
            A("v_mov_b32 v29, 0xffff\nv_mov_b32 v30, 0xffff0000\nv_cmp_eq_u32 vcc, 1, v27\nv_cndmask_b32 v29, v29, v30, vcc")
            for c in range(4):
                A(f"v_cmp_eq_u32 vcc, {c}, v17\nv_cndmask_b32 v{2+c}, 0, v29, vcc")
        def e_s7():
            A.wait_vm(max(last, wq_ids[-1]))
            s.tr_reads(L_WQ, 4, 16)
            s.ln_mma()
            skip = A.newlabel("L_skip")
            A(f"s_cmp_lg_u32 {sW}, 0\ns_cbranch_scc1 {skip}")
            A("v_mov_b32 v90, v80\nv_mov_b32 v91, v81\nv_mov_b32 v92, v82")
            A(f"s_mov_b64 exec, {m16}")
            s.ln_final()
            s.pair_off(68, 69, 8)
            A("v_cvt_pk_bf16_f32 v64, v64, v65\nv_min_u32 v64, -2, v64")
            A.vm(f"buffer_store_dword v64, v68, {rWS}, {sQown} offen sc1", optional=True)
            A("s_mov_b64 exec, -1")
            A("v_mov_b32 v81, v91\nv_mov_b32 v82, v92")
            A.label(skip)
            A.ds_done = A.ds_issued
            s.stamp("q0pub")
        def e_arr():
            A(f"s_cmp_lg_u32 {sW}, 0\ns_cbranch_scc1 L_noarr")
            A(f"s_waitcnt vmcnt({A.vm_issued - 1 - last})")
            A(f"s_getreg_b32 {sT0}, hwreg(HW_REG_XCC_ID)\ns_and_b32 {sT0}, {sT0}, 15\ns_mul_i32 {sT1}, {sT0}, 6\ns_add_u32 {sT1}, {sT1}, 8")
            A(f"s_lshl_b64 s[100:101], 1, {sT1}\ns_cmp_lt_u32 {sT0}, 8\ns_cselect_b64 s[100:101], s[100:101], 0\ns_or_b32 s100, s100, 1")
            A(f"v_mov_b32 v98, s100\nv_mov_b32 v99, s101\ns_lshl_b32 {sT0}, {sG}, 5\nv_mov_b32 v97, {sT0}")
            A("s_mov_b64 exec, 1")
            A.vm(f"buffer_atomic_add_x2 v[98:99], v97, {rDBG}, 0 offen sc1", optional=True)
            A("s_mov_b64 exec, -1")
            A.label("L_noarr")
        def e_chk():
            A(f"s_lshl_b32 {sT0}, {sG}, 5\ns_mov_b64 exec, 1")
            st['chk'] = A.vm(f"buffer_load_dwordx2 v[94:95], off, {rDBG}, {sT0} sc1")
            A("s_mov_b64 exec, -1")
        def e_chk2():
            A.wait_vm(st['chk'])
            ok = A.newlabel("L_arr_ok"); lp = A.newlabel("L_arr")
            A.label(lp)
            A(f"v_readfirstlane_b32 s100, v94\nv_readfirstlane_b32 s101, v95\ns_nop 0\ns_and_b32 {sT0}, s100, 0xff\ns_cmp_eq_u32 {sT0}, 32")
            A(f"s_cbranch_scc1 {ok}")
            A(f"s_sleep 16\ns_lshl_b32 {sT0}, {sG}, 5\ns_mov_b64 exec, 1")
            A.vm(f"buffer_load_dwordx2 v[94:95], off, {rDBG}, {sT0} sc1", optional=True)
            A(f"s_mov_b64 exec, -1\ns_add_u32 {sCnt}, {sCnt}, 8\ns_cmp_lt_u32 {sCnt}, {LIMIT}\ns_waitcnt vmcnt(0)\ns_cbranch_scc1 {lp}")
            A.label(ok)
            A(f"s_getreg_b32 {sT0}, hwreg(HW_REG_XCC_ID)\ns_and_b32 {sT0}, {sT0}, 15\ns_mul_i32 {sT1}, {sT0}, 6\ns_add_u32 {sT1}, {sT1}, 8")
            A(f"s_lshr_b64 s[100:101], s[100:101], {sT1}\ns_and_b32 s100, s100, 63\ns_cmp_eq_u32 s100, 32\ns_cselect_b32 {sMode}, 1, 0")
            A(f"s_cmp_lt_u32 {sT0}, 8\ns_cselect_b32 {sMode}, {sMode}, 0")
            if s.forceG: A(f"s_mov_b32 {sMode}, 0")
        def all_issue():
            A(f"v_lshlrev_b32 v97, 5, v0\ns_mov_b64 exec, {m8}")
            st['all'] = A.vm(f"buffer_load_dword v98, v97, {rDBG}, 0 offen sc1")
            A("s_mov_b64 exec, -1")
        def all_eval():
            A.wait_vm(st['all'])
            ok = A.newlabel("L_all_ok"); lp = A.newlabel("L_all")
            A(f"s_mov_b64 exec, {m8}")
            A.label(lp)
            A("v_and_b32 v99, 0xff, v98\nv_cmp_ne_u32 vcc, 32, v99")
            A(f"s_cbranch_vccz {ok}")
            A(f"s_sleep 16")
            A.vm(f"buffer_load_dword v98, v97, {rDBG}, 0 offen sc1", optional=True)
            A(f"s_add_u32 {sCnt}, {sCnt}, 8\ns_cmp_lt_u32 {sCnt}, {LIMIT}\ns_waitcnt vmcnt(0)\ns_cbranch_scc1 {lp}")
            A.label(ok)
            A("s_mov_b64 exec, -1")
        def slot(fn, k):
            def g():
                l = A.newlabel("L_slot")
                A(f"s_and_b32 {sT0}, {sI}, 3\ns_cmp_lg_u32 {sT0}, {k}\ns_cbranch_scc1 {l}")
                n = A.vm_issued
                fn()
                A.vm_issued = n
                A.label(l)
                s.m0cur = None
                if k == 3 and fn is tile_wq: wq_ids.append(n)
            return g
        def e_dry():
            A(f"s_mov_b64 {sDry}, 0")
            A(f"s_cmp_lg_u32 {sW}, 3\ns_cbranch_scc1 L_dry_ret")
            A(f"s_mov_b64 {sDry}, -1")
            if s.dry > 1:
                if s.ts: A("s_mov_b32 s54, s28\ns_mov_b32 s55, s29")
                A(f"s_mov_b32 s18, 0\ns_mov_b32 {sW}, 0")
            A("s_branch L_att2")
            A.label("L_dry_back")
            if s.dry > 1:
                A(f"s_mov_b32 s18, {s.wsbytes}\ns_mov_b32 {sW}, 3")
                if s.ts: A(f"s_mov_b32 s28, s54\ns_mov_b32 s29, s55\ns_mov_b32 s30, {4<<20}\ns_mov_b32 s31, 0x20000\ns_mov_b32 s23, 0x20000")
            A(f"s_mov_b64 {sDry}, 0\ns_waitcnt lgkmcnt(0)")
            if s.prio: A("s_setprio 3")
            A.label("L_dry_ret")
            s.m0cur = None
        plan = [(max(15, s.late), e_pers), (s.arrat, e_arr), (s.chkat, e_chk), (s.s7at, e_s7), (s.chkat + 12, e_chk2)]
        if s.stag: plan += [(s.wqat + k * s.stag, slot(tile_wq, k)) for k in range(4)]
        else: plan.append((s.wqat, tile_wq))
        if s.stag2: plan += [(s.tilesat + k * s.stag2, slot(tiles, k)) for k in range(4)]
        else: plan.append((s.tilesat, tiles))
        if 'a' in s.off:
            plan = [p for p in plan if p[1] not in (e_arr, e_chk, e_chk2)]
            A(f"s_mov_b32 {sMode}, 1")
        if 'q' in s.off: plan = [p for p in plan if p[1] is not e_s7]
        if s.wpf & 2: plan.append((s.pfb, pf_12))
        if s.wpf & 4 and not s.wolast: plan.append((s.pfb, pf_o))
        if s.dry: plan.append((s.dryat, e_dry))
        if s.early_ts:
            def mkst(f, nm):
                def g():
                    A.wait_vm(ids[("k", f)]); s.stamp(nm); s.m0cur = None
                return g
            plan += [(14, mkst(0, "k0")), (20, mkst(8, "k8")), (30, mkst(18, "k18"))]
        for pos, f in plan:
            if pos >= 4: ev.setdefault(pos, []).append(f)
        for f in range(max(4, s.late), 64): kload(f)
        assert not ev
        class P1: pass
        p1 = P1(); p1.ids = ids; p1.next = 0
        if s.touch:
            p1.next = 1
            A(f"s_mov_b32 {sSV}, {sRot}")
        def issue_upto(n):
            while p1.next <= min(n, 63):
                ids[("v", p1.next)] = s.kv_load("v", p1.next); p1.next += 1
                if s.wpf & 4 and s.wolast and p1.next == s.pfo: pf_o(59)
                if s.prio and p1.next == s.priooff: A("s_setprio 0")
                if p1.next == s.wopos and s.wobar: A("s_barrier")
                if p1.next == s.wopos and s.wolast in (1, 2, 4): tile_wo()
                if p1.next == s.w12pos and s.wolast == 2: tile_w12()
        issue_upto(s.qi - 1)
        A("v_and_b32 v62, 0xf0, v6")
        qid = A.vm(f"buffer_load_dwordx4 {q4(QREG)}, v62, {rWS}, {sQg} offen sc1")
        def code_prefetch():
            A("s_getpc_b64 s[20:21]")
            A.label("L_pc")
            A.raw("    s_add_u32 s20, s20, L_chain-L_pc\n    s_addc_u32 s21, s21, 0\n    s_mov_b32 s22, L_code_end-L_chain\n    s_and_b32 s20, s20, 0xffffffc0")
            A(f"s_lshl_b32 {sT0}, {sI}, 2\ns_add_u32 {sT0}, {sT0}, {sW}\ns_lshl_b32 {sT0}, {sT0}, 12\nv_lshlrev_b32 v59, 6, v0")
            A.vm(f"buffer_load_dword v61, v59, {rX}, {sT0} offen")
        s.ncpf = 3
        p1.issue_upto = issue_upto; p1.code_prefetch = code_prefetch; p1.all_issue = all_issue; p1.all_eval = all_eval; p1.tile_wo = tile_wo
        p1.issue_more = lambda k: issue_upto(p1.next + k - 1)
        issue_upto(s.qv - 1)
        A.wait_vm(qid)
        ok = A.newlabel("L_q_ok"); lp = A.newlabel("L_q")
        A.label(lp)
        A(f"v_max_u32 v63, v{QREG}, v{QREG+1}\nv_max3_u32 v63, v63, v{QREG+2}, v{QREG+3}\nv_cmp_eq_u32 vcc, -1, v63")
        A(f"s_cbranch_vccz {ok}")
        A.vm(f"buffer_load_dwordx4 {q4(QREG)}, v62, {rWS}, {sQg} offen sc1", optional=True)
        A(f"s_add_u32 {sCnt}, {sCnt}, 1\ns_cmp_lt_u32 {sCnt}, {LIMIT}\ns_waitcnt vmcnt(0)\ns_cbranch_scc1 {lp}")
        A.label(ok)
        A(f"s_sub_u32 {sQown}, {sQown}, {QB0 - QB}\ns_sub_u32 {sQg}, {sQg}, {QB0 - QB}")
        if 'x' in s.off:
            issue_upto(63); A.wait_vm0()
        s.stamp("q0got")
        s.att_prefetchK()
        s.attention(p1)
        if s.race:
            A(f"v_mov_b32 v28, -1\nv_mov_b32 v29, {L_RACE}")
            A.ds("ds_write_b32 v29, v28")
        def s1_writes():
            A("s_mov_b32 exec_lo, 0\ns_brev_b32 exec_hi, 1")
            A.ds("ds_write_b64 v58, v[62:63]")
            A(f"v_mov_b32 v26, {L_ST}\ns_mov_b64 exec, {mOV}")
            A.ds("ds_write_b128 v56, v[48:51]")
            A.ds("ds_write_b128 v56, v[52:55] offset:128")
            A("s_mov_b64 exec, -1")
        if not s.wolast: A.wait_vm0()
        if s.wolast in (3, 4, 5):
            s.inchain = True; s.ts0 = s.nts
            if s.ts: A("s_memrealtime s[98:99]")
            s1_writes()
            if s.wolast in (3, 5): tile_wo()
            if s.wolast != 5: tile_w12()
            s.ts_flush(True)
            if s.ts: A("s_waitcnt lgkmcnt(0)\ns_mov_b32 s20, s98")
            A("s_branch L_chain2")
        if s.padchain: s.spin_until(s.padchain)
        if s.busy and s.busyat == 0: s.busyloop()
        s.inchain = True; s.ts0 = s.nts
        s.ts_flush(True)
        A.label("L_chain")
        A.hist = [parse("v_mfma_f32_16x16x32_bf16 v[48:51], v[0:3], v[0:3], v[48:51]"), parse("v_add_f32 v63, v63, v63"),
                  parse("v_mfma_f32_16x16x32_bf16 v[52:55], v[0:3], v[0:3], v[52:55]"), parse("s_branch L_chain")]
        s.stamp("pvdone")
        s1_writes()
        A.label("L_chain2")
        A(f"v_mov_b32 v26, {L_ST}\nv_lshlrev_b32 v27, 2, v0\nv_mov_b32 v29, 0")
        A(f"s_cmp_lg_u32 {sW}, 0")
        A.wait_ds0()
        s.barrier()
        A("s_cbranch_scc1 L_S2w" if s.odelay else "s_cbranch_scc1 L_S2")
        if s.odelay: s.tail.append(f"L_S2w:\n    s_sleep {s.odelay}\n    s_branch L_S2")
        A.ds("ds_read_b128 v[64:67], v26")
        st2 = A.ds("ds_read_b128 v[68:71], v26 offset:16")
        for blk in range(8):
            A.ds(f"ds_read2st64_b32 {q2(72+2*blk)}, v57 offset0:{2*blk} offset1:{2*blk+1}")
        A.wait_ds(st2)
        A("v_max3_f32 v88, v64, v66, v68\nv_max_f32 v88, v88, v70")
        for w in range(4): A(f"v_sub_f32 v{64+2*w}, v{64+2*w}, v88")
        for w in range(4): A(f"v_exp_f32 v{64+2*w}, v{64+2*w}")
        s.mode_test()
        A.wait_ds0()
        for w in range(4): A(f"v_pk_add_f32 {q2(72+4*w)}, {q2(72+4*w)}, {q2(74+4*w)}")
        A("v_pk_mul_f32 v[90:91], v[72:73], v[64:65] op_sel_hi:[1,0]")
        A("v_mul_f32 v89, v64, v65")
        for w in range(1, 4):
            A(f"v_pk_fma_f32 v[90:91], {q2(72+4*w)}, {q2(64+2*w)}, v[90:91] op_sel_hi:[1,0,1]")
            A(f"v_fmac_f32 v89, v{64+2*w}, v{65+2*w}")
        A("v_cvt_pk_bf16_f32 v90, v90, v91\nv_min_u32 v88, -2, v88\nv_min_u32 v90, -2, v90\nv_min_u32 v89, -2, v89")
        s.publish([f"buffer_store_dword v90, v27, {rWS}, {sOown} offen {{pol}}",
                   f"s_mov_b64 exec, 1\nbuffer_store_dwordx2 v[88:89], v29, {rWS}, {sSTown} offen {{pol}}\ns_mov_b64 exec, -1"], tested=True)
        A.label("L_S2")
        A.ds_done = A.ds_issued
        s.stamp("opub")
        A("v_mov_b32 v72, 0\nv_mov_b32 v73, 0")
        A(f"s_lshl_b32 {sT0}, {sW}, 7\ns_add_u32 {sT0}, {sT0}, {RED2}")
        A(f"v_and_b32 v80, 15, v0\nv_lshrrev_b32 v81, 5, v0\nv_lshlrev_b32 v80, 2, v80\nv_lshl_add_u32 v80, v81, 6, v80\nv_add_u32 v80, {sT0}, v80")
        A(f"v_lshlrev_b32 v81, 4, v0\nv_add_u32 v82, {RED2}, v81\nv_mov_b32 v83, {L_RACE}")
        def issue():
            A(f"s_mov_b64 exec, {mR8}")
            A(f"buffer_load_dwordx2 v[72:73], v11, {rWS}, {sSTg} offen sc1")
            A("s_mov_b64 exec, -1")
            A(f"buffer_load_dwordx4 v[32:35], v6, {rWS}, {sOg} offen sc1")
            A(f"buffer_load_dwordx4 v[36:39], v6, {rWS}, {sOg} offen offset:1024 sc1")
        def primed():
            s.tr_reads(L_WO, 4, 16)
        s.poll(issue, 3, list(range(32, 40)) + [72, 73], 74, s.dL, s.gapL, primed)
        s.stamp("ogot")
        A.wait_ds0()
        side = [f"v_max_f32_dpp v74, v72, v72 quad_perm:[1,0,3,2] {FULL}",
                f"v_max_f32_dpp v74, v74, v74 quad_perm:[2,3,0,1] {FULL}",
                "v_sub_f32 v75, v72, v74", "v_exp_f32 v75, v75", "v_mul_f32 v76, v75, v73",
                f"v_add_f32_dpp v76, v76, v76 quad_perm:[1,0,3,2] {FULL}",
                f"v_add_f32_dpp v76, v76, v76 quad_perm:[2,3,0,1] {FULL}",
                "v_rcp_f32 v76, v76"]
        for b in range(2):
            for c in range(4):
                A(f"v_mfma_f32_16x16x32_bf16 {q4(40+16*b+4*c)}, {q4(32+4*b)}, {q4(16+4*c)}, 0")
                A(side.pop(0))
        A("v_mul_f32 v75, v75, v76")
        A("v_add_f32 v40, v40, v45\nv_add_f32 v50, v50, v55\nv_add_f32 v40, v40, v50")
        A(f"v_mul_f32_dpp v78, v75, v40 row_newbcast:0 {FULL}")
        A("v_add_f32 v56, v56, v61\nv_add_f32 v66, v66, v71\nv_add_f32 v56, v56, v66")
        A(f"v_mul_f32_dpp v79, v75, v56 row_newbcast:4 {FULL}")
        A("v_permlane32_swap_b32 v78, v79\nv_add_f32 v78, v78, v79\nv_mov_b32 v79, v78")
        A("v_permlane16_swap_b32 v78, v79\nv_add_f32 v78, v78, v79")
        A.ds("ds_write_b32 v80, v78")
        A(f"s_cmp_lg_u32 {sW}, 0")
        s.drain()
        A.wait_ds0()
        s.barrier()
        A("s_cbranch_scc1 L_S3")
        A(f"s_mov_b64 exec, {m8}")
        for w in range(4): A.ds(f"ds_read_b128 {q4(64+4*w)}, v82 offset:{128*w}")
        base = A.ds_issued
        if s.copy < 0 and not s.race: A.ds(f"ds_read_b64 v[84:85], v83")
        A(f"s_add_u32 {sT0}, {sAPown}, 8192")
        A.wait_ds(base - 3)
        A("v_pk_add_f32 v[64:65], v[64:65], v[68:69]\nv_pk_add_f32 v[66:67], v[66:67], v[70:71]")
        A.wait_ds(base - 1)
        A("v_pk_add_f32 v[72:73], v[72:73], v[76:77]\nv_pk_add_f32 v[74:75], v[74:75], v[78:79]")
        A("v_pk_add_f32 v[64:65], v[64:65], v[72:73]\nv_pk_add_f32 v[66:67], v[66:67], v[74:75]")
        for k in range(64, 68): A(f"v_min_u32 v{k}, -2, v{k}")
        A(f"buffer_store_dwordx4 v[64:67], v81, {rWS}, {sAPown} offen sc1")
        A(f"buffer_store_dwordx4 v[64:67], v81, {rWS}, {sT0} offen sc1")
        A("s_mov_b64 exec, -1")
        s.stamp("appub")
        if s.copy < 0 and not s.race:
            A.wait_ds0()
            s.pick_copy(84)
        A.label("L_S3")
        A.ds_done = A.ds_issued
        s.ln_pre(L_W1, RED4, sX1g)
        s.probe(4, 0, "ds_min_u32", 90, 91)
        if s.race: A(f"s_lshl_b32 {sT0}, {sLayer}, 1\ns_add_u32 {sT0}, {sT0}, {sW}\ns_cmp_lt_u32 {sT0}, 2\ns_cselect_b32 {sT0}, 0, {sW}\ns_cmp_lg_u32 {sT0}, 0")
        else: A(f"s_cmp_lg_u32 {sW}, 0")
        A("s_cbranch_scc1 L_S4")
        def xreduce(sg, addb2):
            A(f"s_mov_b64 exec, {m16}")
            A("v_lshlrev_b32 v82, 3, v0")
            A("v_lshlrev_b32 v80, 16, v13\nv_and_b32 v81, 0xffff0000, v13")
            if addb2:
                A("v_lshlrev_b32 v90, 16, v15\nv_and_b32 v91, 0xffff0000, v15")
                A("v_pk_add_f32 v[80:81], v[80:81], v[90:91]")
            s.pair_off(83, 89, 10)
            A(f"s_add_u32 {sT0}, {sg}, {sCopy}")
            def issue():
                for j in range(8): A(f"buffer_load_dwordx2 {q2(64+2*j)}, v82, {rWS}, {sT0} offen offset:{j*128} sc1")
            if s.gdelay: A(f"s_sleep {s.gdelay}")
            def total():
                A("v_pk_add_f32 v[90:91], v[64:65], v[66:67]\nv_pk_add_f32 v[92:93], v[68:69], v[70:71]")
                A("v_pk_add_f32 v[94:95], v[72:73], v[74:75]\nv_pk_add_f32 v[96:97], v[76:77], v[78:79]")
                A("v_pk_add_f32 v[90:91], v[90:91], v[92:93]\nv_pk_add_f32 v[94:95], v[94:95], v[96:97]")
                A("v_pk_add_f32 v[90:91], v[90:91], v[80:81]")
                A("v_pk_add_f32 v[90:91], v[90:91], v[94:95]")
            if not s.nanchk:
                s.poll(issue, 8, range(64, 80), 89, s.dG, s.gapG)
                total()
                s.mode_test()
            else:
                for p in range(s.dG - 1):
                    issue()
                    A(f"s_sleep {s.gapG}")
                lab = A.newlabel("L_poll"); ok = A.newlabel("L_ok"); slow = A.newlabel("L_exact")
                A.label(lab)
                issue()
                A(f"s_add_u32 {sCnt}, {sCnt}, 1")
                A(f"s_waitcnt vmcnt({(s.dG-1)*8})")
                total()
                s.mode_test()
                A("v_cmp_u_f32 vcc, v90, v91")
                A(f"s_cbranch_vccnz {slow}")
                A.label(ok)
                t = [f"{slow}:", "v_max_u32 v89, v64, v65"] + [f"v_max3_u32 v89, v89, v{k}, v{k+1}" for k in range(66, 80, 2)]
                t += ["v_cmp_eq_u32 vcc, -1, v89", f"s_cmp_lt_u32 {sCnt}, {LIMIT}", f"s_cselect_b64 {sAlive}, -1, 0", f"s_and_b64 vcc, vcc, {sAlive}", f"s_cbranch_scc1 {lab}", "s_waitcnt vmcnt(0)"]
                t += ["v_pk_add_f32 v[90:91], v[64:65], v[66:67]", "v_pk_add_f32 v[92:93], v[68:69], v[70:71]", "v_pk_add_f32 v[94:95], v[72:73], v[74:75]", "v_pk_add_f32 v[96:97], v[76:77], v[78:79]",
                      "v_pk_add_f32 v[90:91], v[90:91], v[92:93]", "v_pk_add_f32 v[94:95], v[94:95], v[96:97]", "v_pk_add_f32 v[90:91], v[90:91], v[80:81]", "v_pk_add_f32 v[90:91], v[90:91], v[94:95]"]
                t += [f"s_cmp_eq_u32 {sMode}, 0", f"s_branch {ok}"]
                s.tail.append("\n".join(l if l.endswith(":") else "    " + l for l in t))
            A("v_cvt_pk_bf16_f32 v13, v90, v91")
        xreduce(sAPg, False)
        A("v_min_u32 v90, -2, v13")
        s.publish(f"buffer_store_dword v90, v83, {rWS}, {sX1own} offen {{pol}}", tested=True)
        A("s_mov_b64 exec, -1")
        s.stamp("x1pub")
        if s.race:
            A(f"s_memtime s[100:101]\ns_cmp_eq_u32 {sW}, 0\ns_cbranch_scc1 L_S4")
            A(f"v_mov_b32 v91, {L_RACE}\ns_waitcnt lgkmcnt(0)\nv_mov_b32 v90, s100")
            A("ds_write_b32 v91, v90")
        A.label("L_S4")
        A(f"s_cmp_ge_u32 {sI}, 11\ns_cbranch_scc1 {'L_S5w' if s.hdelay else 'L_S5'}")
        if s.hdelay: s.tail.append(f"L_S5w:\n    s_sleep {s.hdelay}\n    s_branch L_S5")
        s.ln_poll(sX1g)
        s.stamp("xgot")
        s.ln_mma()
        A(f"s_cmp_lg_u32 {sW}, 0\ns_cbranch_scc1 L_S7")
        A(f"s_mov_b64 exec, {m16}")
        s.drain()
        s.ln_final_pre = None
        A(f"s_cmp_lt_u32 {sTau}, 86\ns_cselect_b32 {sT3}, -1, 0")
        k1 = -2.0 * math.sqrt(2.0 / math.pi) * math.log2(math.e)
        A("v_lshlrev_b32 v92, 16, v14\nv_and_b32 v93, 0xffff0000, v14")
        A(f"v_mov_b32 v94, {f2u(k1 * 0.044715)}\nv_mov_b32 v96, {f2u(k1)}")
        A("v_and_b32 v98, 3, v0\nv_lshlrev_b32 v98, 2, v98\nv_and_b32 v99, 4, v0\nv_lshl_add_u32 v98, v99, 3, v98\nv_and_b32 v99, 8, v0\nv_lshl_add_u32 v98, v99, 1, v98")
        s.ln_final()
        A("v_pk_add_f32 v[64:65], v[64:65], v[92:93]")
        A("v_pk_mul_f32 v[66:67], v[64:65], v[64:65]")
        A("v_pk_fma_f32 v[66:67], v[66:67], v[94:95], v[96:97] op_sel_hi:[1,0,0]")
        A("v_pk_mul_f32 v[66:67], v[66:67], v[64:65]")
        A("v_exp_f32 v66, v66\nv_exp_f32 v67, v67")
        A("v_add_f32 v66, 1.0, v66\nv_add_f32 v67, 1.0, v67")
        A("v_rcp_f32 v66, v66\nv_rcp_f32 v67, v67")
        s.mode_test()
        A("v_pk_mul_f32 v[64:65], v[64:65], v[66:67]")
        A(f"v_cvt_pk_bf16_f32 v64, v64, v65\nv_min_u32 v64, -2, v64\nv_and_b32 v64, {sT3}, v64")
        s.publish(f"buffer_store_dword v64, v98, {rWS}, {sHown} offen {{pol}}", tested=True)
        A("s_mov_b64 exec, -1")
        s.stamp("hpub")
        A.label("L_S5")
        A.ds_done = A.ds_issued
        A(f"s_cmp_lg_u32 {sW}, 0\ns_cbranch_scc1 L_S7")
        s.tr_reads(L_W2, 6, 16, "v10", 1024)
        for k in range(60, 64): A(f"v_mov_b32 v{k}, 0")
        A("v_and_b32 v86, 1, v0\nv_lshrrev_b32 v87, 4, v0\nv_lshlrev_b32 v87, 4, v87\nv_lshl_add_u32 v85, v86, 6, v87\nv_lshlrev_b32 v87, 1, v87\nv_lshl_add_u32 v84, v86, 4, v87")
        if s.race:
            A(f"v_mov_b32 v86, {L_RACE}")
            A.ds("ds_read_b32 v87, v86")
        elif s.copy < 0:
            A(f"v_mov_b32 v86, {L_RACE}")
            A.ds("ds_read_b64 v[98:99], v86")
        def issue():
            A(f"s_mov_b64 exec, {mAlo}")
            A(f"buffer_load_dwordx4 v[60:63], v84, {rWS}, {sHg} offen offset:640 sc1")
            A(f"s_mov_b64 exec, {mA}")
            for kk in range(5): A(f"buffer_load_dwordx4 {q4(40+4*kk)}, v84, {rWS}, {sHg} offen offset:{kk*128} sc1")
        s.poll(issue, 6, range(40, 64), 88, s.dL, s.gapL)
        A("s_mov_b64 exec, -1")
        A.wait_ds0()
        for kk in range(6):
            d = 90 if kk % 2 == 0 else 94
            A(f"v_mfma_f32_16x16x32_bf16 {q4(d)}, {q4(16+4*kk)}, {q4(40+4*kk)}, {'0' if kk < 2 else q4(d)}")
            if s.race and kk == 0: A(f"v_readfirstlane_b32 {sT1}, v87")
        A(f"s_add_u32 {sT0}, {sYPown}, 8192")
        A(f"s_mov_b64 exec, {mA}")
        s.drain()
        A("v_pk_add_f32 v[90:91], v[90:91], v[94:95]\nv_pk_add_f32 v[92:93], v[92:93], v[96:97]")
        for k in range(90, 94): A(f"v_min_u32 v{k}, -2, v{k}")
        A(f"buffer_store_dwordx4 v[90:93], v85, {rWS}, {sYPown} offen sc1")
        A(f"buffer_store_dwordx4 v[90:93], v85, {rWS}, {sT0} offen sc1")
        A("s_mov_b64 exec, -1")
        s.stamp("yppub")
        A(f"s_cmp_eq_u32 {sLayer}, 0\ns_cselect_b32 {sT0}, 0, {sG}\ns_cmp_lg_u32 {sT0}, 0\ns_cbranch_scc1 L_done")
        if s.race:
            A(f"s_cmp_eq_u32 {sT1}, -1\ns_cselect_b32 {sT1}, s100, {sT1}")
            A(f"s_sub_u32 {sT1}, {sT1}, s100\ns_cmp_lt_i32 {sT1}, 0\ns_cselect_b32 {sT1}, 8192, 0")
            A(f"s_cmp_eq_u32 {sLayer}, 0\ns_cselect_b32 {sCopy}, {sT1}, {sCopy}")
        s.pick_copy(98)
        s.ln_pre(L_WQ, RED4, sX2g)
        xreduce(sYPg, True)
        A(f"s_cmp_lg_u32 {sLayer}, 0\ns_cbranch_scc1 L_fin")
        A("v_min_u32 v90, -2, v13")
        s.publish(f"buffer_store_dword v90, v83, {rWS}, {sX2own} offen {{pol}}")
        A("s_mov_b64 exec, -1")
        s.stamp("x2pub")
        A("s_branch L_S7b")
        A.label("L_S7")
        A(f"s_cmp_lg_u32 {sLayer}, 0\ns_cbranch_scc1 L_done")
        s.drain()
        s.ln_pre(L_WQ, RED4, sX2g)
        A.label("L_S7b")
        s.ln_poll(sX2g)
        s.stamp("xgot")
        s.ln_mma()
        A(f"s_cmp_lg_u32 {sW}, 0\ns_cbranch_scc1 {'L_S8w' if s.qdelay else 'L_S8'}")
        if s.qdelay: s.tail.append(f"L_S8w:\n    s_sleep {s.qdelay}\n    s_branch L_S8")
        A(f"s_mov_b64 exec, {m16}")
        s.drain()
        s.pair_off(98, 99, 8)
        s.ln_final()
        s.mode_test()
        A("v_cvt_pk_bf16_f32 v64, v64, v65\nv_min_u32 v64, -2, v64")
        s.publish(f"buffer_store_dword v64, v98, {rWS}, {sQown} offen {{pol}}", tested=True)
        A("s_mov_b64 exec, -1")
        s.stamp("qpub")
        A.label("L_S8")
        A.ds_done = A.ds_issued
        s.ts_flush()
        if s.padq: s.spin_until(s.padq)
        s.att_prefetchK()
        A("v_and_b32 v62, 0xf0, v6")
        if s.dry > 1: A("s_cmp_lg_u32 s46, 0\ns_cbranch_scc1 L_dry_back")
        A(f"s_mov_b32 {sLayer}, 1")
        def issue(): A(f"buffer_load_dwordx4 {q4(QREG)}, v62, {rWS}, {sQg} offen sc1")
        s.poll(issue, 1, range(QREG, QREG + 4), 61, s.dQ, s.gapL)
        s.stamp("qgot")
        A(f"s_add_u32 s16, s16, {LSTRIDE}\ns_addc_u32 s17, s17, 0\ns_sub_u32 s18, s18, {LSTRIDE}")
        A.label("L_att2")
        s.attention(None)
        if s.dry == 1: A("s_cmp_lg_u32 s46, 0\ns_cbranch_scc1 L_dry_back")
        if s.pad2: s.spin_until(s.pad2)
        A("s_branch L_chain")
        A.label("L_fin")
        A(f"s_lshl_b32 {sT0}, {sI}, 5")
        A(f"buffer_store_dword v13, v83, {rOUT}, {sT0} offen")
        A.label("L_done")
        if s.padbase == 0 and s.padend and s.padend % 10 == 1:
            A(f"s_mov_b64 exec, 1\nbuffer_load_dword v64, off, {rDBG}, 0 offset:16 sc1\ns_waitcnt vmcnt(0)\nv_readfirstlane_b32 s97, v64\ns_nop 3\ns_not_b32 s97, s97")
        if s.padend: s.spin_until(s.padend)
        if s.busy and s.busyat == 1: s.busyloop()
        if s.padcyc:
            A("s_memtime s[98:99]\ns_waitcnt lgkmcnt(0)\ns_mov_b32 s97, s98")
            s.spin_until(s.padcyc, "s_memtime")
        if s.ts:
            A("s_mov_b64 exec, -1")
            s.stamp("end")
            s.ts_flush()
            A(f"v_writelane_b32 v12, {sCopy}, 63\nv_writelane_b32 v12, {sCnt}, 62")
            A(f"s_mul_i32 {sT0}, {sLayer}, {LSTRIDE}\ns_lshl_b32 {sT1}, s2, 2\ns_add_u32 {sT1}, {sT1}, {sW}\ns_lshl_b32 {sT1}, {sT1}, 8")
            A(f"s_add_u32 {sT1}, {sT1}, {TS_OFF}\ns_sub_u32 {sT1}, {sT1}, {sT0}\nv_lshlrev_b32 v16, 2, v0")
            A(f"buffer_store_dword v12, v16, {rWS}, {sT1} offen")
        A("L_end:\ns_endpgm")
        for t in s.tail: A.raw(t)
        A.raw("L_code_end:")
        A.raw('.section .rodata,"a"\n.p2align 6')
        A.raw(f".amdhsa_kernel {NAME}_kernel")
        A.raw("  .amdhsa_next_free_vgpr 512\n  .amdhsa_next_free_sgpr 102\n  .amdhsa_accum_offset 256\n  .amdhsa_group_segment_fixed_size 0")
        A.raw("  .amdhsa_kernarg_size 104\n  .amdhsa_user_sgpr_count 2\n  .amdhsa_user_sgpr_kernarg_segment_ptr 1\n  .amdhsa_system_sgpr_workgroup_id_x 1")
        A.raw("  .amdhsa_float_denorm_mode_32 3\n.end_amdhsa_kernel")
        return A.text()

if __name__ == "__main__":
    out = sys.argv[1] if len(sys.argv) > 1 else f"cdna_kernels/{NAME}.s"
    kw = {}
    for a in sys.argv[2:]:
        k, v = a.split("=")
        kw[k] = int(v) if v.lstrip("-").isdigit() else v
    g = Gen(**kw)
    open(out, "w").write(g.build())
    if kw.get("ts"): open(out + ".names", "w").write(" ".join(g.tsnames))
    print("wrote", out, "nops", g.A.nops)
```
